```python
import torch

def _softmax(x, axis=-1):
    return torch.softmax(x, dim=axis)

def _gelu(x):
    return torch.nn.functional.gelu(x, approximate='tanh')

def _silu(x):
    return torch.nn.functional.silu(x)

def _sigmoid(x):
    return torch.sigmoid(x)

def _layernorm(x, axis=-1, eps=1e-05):
    m = x.mean(dim=axis, keepdim=True)
    v = x.var(dim=axis, keepdim=True, unbiased=False)
    return (x - m) / torch.sqrt(v + eps)

def _scatter_add(tgt, idx, src, axis=0):
    return tgt.clone().index_add_(axis, idx, src)

def _segment_sum(src, seg, n):
    out = torch.zeros((n,) + src.shape[1:], dtype=src.dtype)
    return out.index_add_(0, seg, src)

def _pad(x, pw):
    flat = tuple((v for pair in reversed(pw) for v in pair))
    return torch.nn.functional.pad(x, flat)
kernel_name = 'interleave_layers__sliding_block__memory_aug_recurrent_mem_tr__prompt'

def setup_inputs():

    _w = lambda a: (lambda t: t.to(torch.bfloat16) if t.is_floating_point() else t)(torch.as_tensor(a))

    def _A_setup():
        B, S, D = (1, 2048, 512)
        return {'x': _w((lambda *s: torch.randn(*s, dtype=torch.bfloat16) * 0.05)(B, S, D)), 'wqkv': _w((lambda *s: torch.randn(*s, dtype=torch.bfloat16) * 0.05)(D, 3 * D)), 'wo': _w((lambda *s: torch.randn(*s, dtype=torch.bfloat16) * 0.05)(D, D))}
    _A_in = _A_setup()

    def _B_setup():
        B, S, Dm = (1, 2048, 512)
        H, Dh = (32, 128)
        M, seg = (8, 32)
        seg = min(seg, S)
        S = S // seg * seg
        return {'x': _w((lambda *s: torch.randn(*s, dtype=torch.bfloat16) * 0.05)(B, S, Dm)), 'mem0': _w((lambda *s: torch.randn(*s, dtype=torch.bfloat16) * 0.8)(B, M, Dm)), 'Wq': _w((lambda *s: torch.randn(*s, dtype=torch.bfloat16) * 1.6)(Dm, H, Dh) * Dm ** (-0.5)), 'Wk': _w((lambda *s: torch.randn(*s, dtype=torch.bfloat16) * 1.6)(Dm, H, Dh) * Dm ** (-0.5)), 'Wv': _w((lambda *s: torch.randn(*s, dtype=torch.bfloat16) * 0.8)(Dm, H, Dh) * Dm ** (-0.5)), 'Wo': _w((lambda *s: torch.randn(*s, dtype=torch.bfloat16) * 0.8)(H, Dh, Dm) * (H * Dh) ** (-0.5)), 'seg_len': seg}
    _B_in = _B_setup()
    return {'A_x': _A_in['x'], 'A_wqkv': _A_in['wqkv'], 'A_wo': _A_in['wo'], 'B_x': _B_in['x'], 'B_mem0': _B_in['mem0'], 'B_Wq': _B_in['Wq'], 'B_Wk': _B_in['Wk'], 'B_Wv': _B_in['Wv'], 'B_Wo': _B_in['Wo'], 'B_seg_len': _B_in['seg_len']}

def reference(A_x, A_wqkv, A_wo, B_x, B_mem0, B_Wq, B_Wk, B_Wv, B_Wo, B_seg_len):

    def _A_ref(x, wqkv, wo):
        B, S, D = x.shape
        H = 32
        Dh = D // H
        W = 256
        qkv = (lambda x, *d: x.permute(*d))((x @ wqkv).reshape(B, S, 3, H, Dh), 2, 0, 3, 1, 4)
        q, k, v = (qkv[0], qkv[1], qkv[2])
        scores = torch.einsum('bhqd,bhkd->bhqk', q, k) * Dh ** (-0.5)
        idx = torch.arange(S)
        mask = (idx[:, None] - idx[None, :] >= 0) & (idx[:, None] - idx[None, :] < W)
        scores = torch.where(mask[None, None], scores, -1000000000.0)
        p = _softmax(scores, axis=-1)
        o = torch.einsum('bhqk,bhkd->bhqd', p, v)
        return (lambda x, *d: x.permute(*d))(o, 0, 2, 1, 3).reshape(B, S, D) @ wo

    def _B_ref(x, mem0, Wq, Wk, Wv, Wo, seg_len):
        B, S, Dm = x.shape
        H, Dh = (Wq.shape[1], Wq.shape[2])
        M = mem0.shape[1]
        scale = Dh ** (-0.5)
        n_seg = S // seg_len
        L = M + seg_len
        idx = torch.arange(L)
        mask = (idx[:, None] < M) | (idx[:, None] >= idx[None, :])
        mem = mem0
        outs = []
        for s in range(n_seg):
            xs = x[:, s * seg_len:(s + 1) * seg_len, :].clone()
            h = torch.concatenate([mem, xs], axis=1)
            q = torch.einsum('btd,dhe->bhte', h, Wq)
            k = torch.einsum('btd,dhe->bhte', h, Wk)
            v = torch.einsum('btd,dhe->bhte', h, Wv)
            scores = torch.einsum('bhqe,bhke->bhqk', q, k) * scale
            scores = torch.where(mask[None, None], scores, -1000000000.0)
            p = _softmax(scores, axis=-1)
            o = torch.einsum('bhqk,bhke->bhqe', p, v)
            o = torch.einsum('bhte,hed->btd', o, Wo)
            mem = o[:, :M, :].clone()
            outs.append(o[:, M:, :])
        return torch.concatenate(outs, axis=1)
    x = A_x
    x = x + _A_ref(_layernorm(x, axis=-1), A_wqkv, A_wo)
    x = x + _B_ref(_layernorm(x, axis=-1), B_mem0, B_Wq, B_Wk, B_Wv, B_Wo, B_seg_len)
    x = x + _A_ref(_layernorm(x, axis=-1), A_wqkv, A_wo)
    x = x + _B_ref(_layernorm(x, axis=-1), B_mem0, B_Wq, B_Wk, B_Wv, B_Wo, B_seg_len)
    return x
```

```python
class Asm:
    def __init__(self):
        self.L = []
        self.lg = []
        self.vm = []
        self.uid = 0
    def __call__(self, s=""):
        for line in s.split("\n"):
            line = line.rstrip()
            if line.strip():
                self.L.append(line if line.startswith((" ", "\t")) or line.endswith(":") or line.startswith((".", ";")) else "  " + line)
    def c(self, s):
        self.L.append("  ; " + s)
    def label(self, name):
        self.L.append(name + ":")
    def newlabel(self, base):
        self.uid += 1
        return f"{base}_{self.uid}"
    def text(self):
        return "\n".join(self.L) + "\n"
    def ds(self, instr, tag=None):
        self(instr)
        self.lg.append(tag)
    def ds_wait(self, tag):
        idx = [i for i, t in enumerate(self.lg) if t == tag]
        if not idx:
            return
        n = len(self.lg) - 1 - idx[-1]
        n = min(n, 15)
        self(f"s_waitcnt lgkmcnt({n})")
        self.lg = self.lg[len(self.lg) - n:] if n else []
    def ds_wait_all(self):
        self("s_waitcnt lgkmcnt(0)")
        self.lg = []
    def vmem(self, instr, tag=None):
        self(instr)
        self.vm.append(tag)
    def vm_wait(self, tag):
        idx = [i for i, t in enumerate(self.vm) if t == tag]
        if not idx:
            return
        n = len(self.vm) - 1 - idx[-1]
        assert n <= 63
        self(f"s_waitcnt vmcnt({n})")
        self.vm = self.vm[len(self.vm) - n:] if n else []
    def vm_wait_all(self):
        self("s_waitcnt vmcnt(0)")
        self.vm = []
    def nops(self, n):
        while n > 0:
            k = min(n, 16)
            self(f"s_nop {k-1}")
            n -= k

def vr(b, n=1):
    return f"v{b}" if n == 1 else f"v[{b}:{b+n-1}]"
def ar(b, n=1):
    return f"a{b}" if n == 1 else f"a[{b}:{b+n-1}]"
def sr(b, n=1):
    return f"s{b}" if n == 1 else f"s[{b}:{b+n-1}]"

def kernel_header(name):
    return f""".globl {name}
.p2align 8
.type {name},@function
{name}:
"""
def kernel_desc(name, vgpr=512, accum=256, sgpr=102):
    return f""".amdhsa_kernel {name}
  .amdhsa_next_free_vgpr {vgpr}
  .amdhsa_next_free_sgpr {sgpr}
  .amdhsa_accum_offset {accum}
  .amdhsa_group_segment_fixed_size 0
  .amdhsa_kernarg_size 104
  .amdhsa_user_sgpr_count 2
  .amdhsa_user_sgpr_kernarg_segment_ptr 1
  .amdhsa_system_sgpr_workgroup_id_x 1
  .amdhsa_float_denorm_mode_32 3
  .amdhsa_float_denorm_mode_16_64 3
.end_amdhsa_kernel
"""
```

```python
from asmlib import *
from layout import *

S_KA   = 0
S_WS   = 4
S_T0   = 8
S_W    = 12
S_H    = 13
S_L    = 14
S_TMO  = 15

def srd_from_kernarg(a, sreg, ka_off, nbytes):
    a(f"s_load_dwordx2 s[{sreg}:{sreg+1}], s[0:1], {ka_off}")
    a("s_waitcnt lgkmcnt(0)")
    a(f"s_mov_b32 s{sreg+2}, {nbytes}")
    a(f"s_mov_b32 s{sreg+3}, 0x20000")

def load_slabs(a, dests, tmp, row_shift=13, nbytes=D * H * DH * 2, base_sgpr=None):
    vA, vB, vR0, vR1, t0, t1 = range(tmp, tmp + 6)
    a(f"v_lshrrev_b32 v{t0}, 4, v0")
    a(f"v_and_b32 v{t1}, 15, v0")
    a(f"v_lshrrev_b32 v{t1}, 1, v{t1}")
    a(f"v_xor_b32 v{vA}, v{t1}, v{t0}")
    a(f"v_xor_b32 v{vB}, 4, v{vA}")
    a(f"v_lshlrev_b32 v{vA}, 5, v{vA}")
    a(f"v_lshlrev_b32 v{vB}, 5, v{vB}")
    a(f"v_lshlrev_b32 v{t0}, {row_shift}, v{t0}")
    a(f"v_and_b32 v{t1}, 1, v0")
    a(f"v_lshlrev_b32 v{t1}, 4, v{t1}")
    a(f"v_add3_u32 v{vA}, v{vA}, v{t0}, v{t1}")
    a(f"v_add3_u32 v{vB}, v{vB}, v{t0}, v{t1}")
    a(f"v_lshrrev_b32 v{t0}, 4, v0")
    a(f"v_bfe_u32 v{t1}, v0, 2, 2")
    a(f"v_lshlrev_b32 v{vR0}, 3, v{t0}")
    a(f"v_add_u32 v{vR0}, v{vR0}, v{t1}")
    a(f"v_lshlrev_b32 v{vR0}, 8, v{vR0}")
    a(f"v_and_b32 v{t0}, 1, v{t0}")
    a(f"v_lshl_add_u32 v{t1}, v{t0}, 2, v{t1}")
    a(f"v_bfe_u32 v{t0}, v0, 1, 1")
    a(f"s_lshl_b32 s16, s{S_W}, 1")
    a(f"v_add_u32 v{t0}, s16, v{t0}")
    a(f"v_xor_b32 v{t0}, v{t0}, v{t1}")
    a(f"v_lshl_add_u32 v{vR0}, v{t0}, 5, v{vR0}")
    a(f"v_and_b32 v{t0}, 1, v0")
    a(f"v_lshl_add_u32 v{vR0}, v{t0}, 4, v{vR0}")
    a(f"v_add_u32 v{vR1}, 0x10000, v{vR0}")
    for (ka, rf, base) in dests:
        srd_from_kernarg(a, S_T0, ka, nbytes)
        a(f"s_lshl_b32 s16, s{S_W}, {row_shift + 7}")
        if base_sgpr is None:
            a(f"s_lshl_b32 s17, s{S_H}, 8")
            a(f"s_add_u32 s16, s16, s17")
        else:
            a(f"s_add_u32 s16, s16, s{base_sgpr}")
        a(f"s_lshl_b32 s17, s{S_W}, 15")
        for j in range(32):
            a(f"s_mov_b32 m0, s17")
            v = vA if ((j >> 1) & 1) == 0 else vB
            a(f"s_add_u32 s17, s17, 1024")
            a(f"buffer_load_dwordx4 v{v}, s[{S_T0}:{S_T0+3}], s16 offen lds")
            a(f"s_add_u32 s16, s16, {4 << row_shift}")
        a("s_waitcnt vmcnt(0)")
        a("s_barrier")
        for t in range(2):
            for ks in range(16):
                for p in range(2):
                    off = ks * 8192 + p * 1024 + 8 * t
                    vb = vR0
                    if off >= 65536:
                        off -= 65536; vb = vR1
                    r = base + t * 64 + ks * 4 + 2 * p
                    dst = f"a[{r}:{r+1}]" if rf == 'a' else f"v[{r}:{r+1}]"
                    a(f"ds_read_b64_tr_b16 {dst}, v{vb} offset:{off}")
        a("s_waitcnt lgkmcnt(0)")
        a("s_barrier")

def load_qkv_weights(a, dests, tmp):
    load_slabs(a, dests, tmp)

def flag_wait(a, vdst, vaddr, soff, uid, nz_all=True):
    lab = f"fw_{uid}"
    a.label(lab)
    a(f"buffer_load_dword v{vdst}, v{vaddr}, s[{S_WS}:{S_WS+3}], s{soff} offen sc1")
    a("s_waitcnt vmcnt(0)")
    a(f"v_cmp_eq_u32 vcc, 0, v{vdst}")
    a(f"s_cbranch_vccz {lab}_ok")
    a(f"s_sub_u32 s{S_TMO}, s{S_TMO}, 1")
    a(f"s_cbranch_scc1 {lab}_ok")
    a(f"s_branch {lab}")
    a.label(lab + "_ok")

S_STAMP = 50
S_ACC = 68
def stamp(a, i, on=True):
    if on: a(f"s_memtime s[{S_STAMP+2*i}:{S_STAMP+2*i+1}]")
def stamps_init(a):
    for i in range(8): a(f"s_mov_b32 s{S_ACC+i}, 0")
def stamps_accumulate(a, n=8):
    a("s_waitcnt lgkmcnt(0)")
    for i in range(n):
        a(f"s_sub_u32 s98, s{S_STAMP+2*i+2}, s{S_STAMP+2*i}")
        a(f"s_add_u32 s{S_ACC+i}, s{S_ACC+i}, s98")
def stamps_store(a):
    a(f"s_lshl_b32 s44, s{S_H}, 2")
    a(f"s_add_u32 s44, s44, s{S_W}")
    a(f"s_lshl_b32 s44, s44, 5")
    a(f"s_add_u32 s44, s44, {STAMP}")
    for i in range(8):
        a(f"v_mov_b32 v20, s{S_ACC+i}")
        a(f"v_mov_b32 v21, {4*i}")
        a(f"buffer_store_dword v20, v21, s[{S_WS}:{S_WS+3}], s44 offen")
    a("s_waitcnt vmcnt(0)")

def wave_allreduce_add(a, v, t):
    a("s_nop 1")
    a(f"v_add_f32_dpp v{v}, v{v}, v{v} quad_perm:[1,0,3,2] row_mask:0xf bank_mask:0xf")
    a("s_nop 1")
    a(f"v_add_f32_dpp v{v}, v{v}, v{v} quad_perm:[2,3,0,1] row_mask:0xf bank_mask:0xf")
    a("s_nop 1")
    a(f"v_add_f32_dpp v{v}, v{v}, v{v} row_ror:4 row_mask:0xf bank_mask:0xf")
    a("s_nop 1")
    a(f"v_add_f32_dpp v{v}, v{v}, v{v} row_ror:8 row_mask:0xf bank_mask:0xf")
    a(f"v_mov_b32 v{t}, v{v}")
    a("s_nop 1")
    a(f"v_permlane16_swap_b32 v{v}, v{t}")
    a(f"v_add_f32 v{v}, v{v}, v{t}")
    a(f"v_mov_b32 v{t}, v{v}")
    a("s_nop 1")
    a(f"v_permlane32_swap_b32 v{v}, v{t}")
    a(f"v_add_f32 v{v}, v{v}, v{t}")

def row_finish(a, Y, XR, T, with_ln):
    for k in range(4):
        a(f"v_cvt_pk_bf16_f32 v{T+k}, v{Y+2*k}, v{Y+2*k+1}")
    for k in range(4):
        a(f"v_lshlrev_b32 v{Y+2*k}, 16, v{T+k}")
        a(f"v_and_b32 v{Y+2*k+1}, 0xffff0000, v{T+k}")
    for k in range(4):
        a(f"v_lshlrev_b32 v{T+4+2*k}, 16, v{XR+k}")
        a(f"v_and_b32 v{T+5+2*k}, 0xffff0000, v{XR+k}")
    for k in range(4):
        a(f"v_pk_add_f32 v[{Y+2*k}:{Y+2*k+1}], v[{Y+2*k}:{Y+2*k+1}], v[{T+4+2*k}:{T+5+2*k}]")
    for k in range(4):
        a(f"v_cvt_pk_bf16_f32 v{XR+k}, v{Y+2*k}, v{Y+2*k+1}")
    if not with_ln:
        return
    for k in range(4):
        a(f"v_lshlrev_b32 v{Y+2*k}, 16, v{XR+k}")
        a(f"v_and_b32 v{Y+2*k+1}, 0xffff0000, v{XR+k}")
    m, t = T + 4, T + 5
    a(f"v_pk_add_f32 v[{T}:{T+1}], v[{Y}:{Y+1}], v[{Y+2}:{Y+3}]")
    a(f"v_pk_add_f32 v[{T+2}:{T+3}], v[{Y+4}:{Y+5}], v[{Y+6}:{Y+7}]")
    a(f"v_pk_add_f32 v[{T}:{T+1}], v[{T}:{T+1}], v[{T+2}:{T+3}]")
    a(f"v_add_f32 v{m}, v{T}, v{T+1}")
    wave_allreduce_add(a, m, t)
    a(f"v_mul_f32 v{m}, 0xbb000000, v{m}")
    a(f"v_mov_b32 v{t}, v{m}")
    for k in range(4):
        a(f"v_pk_add_f32 v[{Y+2*k}:{Y+2*k+1}], v[{Y+2*k}:{Y+2*k+1}], v[{m}:{t}]")
    a(f"v_pk_mul_f32 v[{T}:{T+1}], v[{Y}:{Y+1}], v[{Y}:{Y+1}]")
    for k in range(1, 4):
        a(f"v_pk_fma_f32 v[{T}:{T+1}], v[{Y+2*k}:{Y+2*k+1}], v[{Y+2*k}:{Y+2*k+1}], v[{T}:{T+1}]")
    s, t2 = T + 6, T + 7
    a(f"v_add_f32 v{s}, v{T}, v{T+1}")
    wave_allreduce_add(a, s, t2)
    a(f"v_mov_b32 v{t2}, 0x3727c5ac")
    a(f"v_fmac_f32 v{t2}, 0x3b000000, v{s}")
    a(f"v_rsq_f32 v{s}, v{t2}")
    a("s_nop 0")
    a(f"v_mov_b32 v{t2}, v{s}")
    for k in range(4):
        a(f"v_pk_mul_f32 v[{Y+2*k}:{Y+2*k+1}], v[{Y+2*k}:{Y+2*k+1}], v[{s}:{t2}]")
    for k in range(4):
        a(f"v_cvt_pk_bf16_f32 v{T+k}, v{Y+2*k}, v{Y+2*k+1}")

def build_sel(a, dst, n, tmp):
    for r in range(4):
        a(f"v_mov_b32 v{dst+r}, 0")
        a(f"v_cmp_eq_u32 vcc, {2*r}, v{n}")
        a(f"v_mov_b32 v{tmp}, 0x3f80")
        a(f"s_nop 0")
        a(f"v_cndmask_b32 v{dst+r}, v{dst+r}, v{tmp}, vcc")
        a(f"v_cmp_eq_u32 vcc, {2*r+1}, v{n}")
        a(f"v_mov_b32 v{tmp}, 0x3f800000")
        a(f"s_nop 0")
        a(f"v_cndmask_b32 v{dst+r}, v{dst+r}, v{tmp}, vcc")

def interleave2(a, fa, fb):
    A, B = Asm(), Asm()
    fa(A); fb(B)
    assert len(A.L) == len(B.L)
    for x, y in zip(A.L, B.L):
        xs = x.strip()
        if xs.startswith("s_nop"):
            k = int(xs.split()[1])
            if k > 0: a(f"s_nop {k-1}")
        else:
            a(x); a(y)

def load_rowmajor_chunks(a, ka, nbytes, row0_sgpr, lds_base, nrows_per_wave, tmp):
    a(f"v_lshlrev_b32 v{tmp}, 4, v0")
    a(f"s_mul_i32 s17, s{S_W}, {nrows_per_wave * 1024}")
    a(f"s_lshl_b32 s16, s{row0_sgpr}, 10")
    a(f"s_add_u32 s16, s16, s17")
    a(f"s_add_u32 s17, s17, {lds_base}")
    for j in range(nrows_per_wave):
        key = (j & 3) + 4 * ((j >> 3) & 1)
        a(f"v_xor_b32 v{tmp+1}, {key << 5}, v{tmp}")
        a(f"s_mov_b32 m0, s17")
        a(f"s_add_u32 s17, s17, 1024")
        a(f"buffer_load_dwordx4 v{tmp+1}, s[{S_T0}:{S_T0+3}], s16 offen lds")
        a(f"s_add_u32 s16, s16, 1024")
```

```python
S, D, H, DH, M, SEG, NSEG = 2048, 512, 32, 128, 8, 32, 64
KA_AX, KA_AWQKV, KA_AWO, KA_BX, KA_MEM0, KA_WQ, KA_WK, KA_WV, KA_WO, KA_SEG, KA_OUT, KA_DBG, KA_WS = [8*i for i in range(13)]
MB = 1 << 20
MEMRING   = 0
MEMRING_L = 4 * 8192
INBOX     = 1 * MB
INBOX_SLOT= 32 * 32 * 256
INBOX_L   = 2 * INBOX_SLOT
OIN       = 2 * MB
OIN_SLOT  = 32 * 8 * 1024
OIN_L     = 2 * OIN_SLOT
FF_END    = 3 * MB
FLAGS     = 4 * MB
TF        = FLAGS
TF_L      = 65 * 32 * 16
QF        = FLAGS + 0x20000
QF_L      = TF_L
AOF       = FLAGS + 0x40000
AOF_L     = 64 * 64 * 4
HF        = FLAGS + 0x48000
HF_J      = 64 * 32 * 4
OF        = FLAGS + 0x50000
OF_L      = 64 * 64 * 4
FLAGS_END = FLAGS + 0x60000
HB        = 8 * MB
XB        = 16 * MB
ROWS_J    = S * D * 2
AO        = 24 * MB
AO_L      = 64 * 32768
QX        = 32 * MB
KX        = 64 * MB
VX        = 96 * MB
KX_L      = 64 * 32 * 8192
KM        = 128 * MB
KM_L      = 65 * 32 * 4096
OB        = 160 * MB
OB_L      = 64 * 32 * 8192
STAMP     = 250 * MB
WS_BYTES  = 256 * MB
```

```python
from common import *
L_WO = 0
L_A  = 131072
L_Y  = L_A + 8192
YS   = 2048 + 64
assert L_Y + 8 * YS <= 163840
V_L16, V_LA, V_WO0, V_WO1, V_IDX, V_MP, V_YW, V_YR, V_AF, V_Z = 1, 2, 3, 4, 5, 6, 7, 8, 9, 10
AR = 16
ACC = 32
SL = [64, 72, 80, 88, 96, 104, 112, 120]
S_S, S_A, S_AOO, S_AFO, S_PRE, S_PEND, S_ROW, S_XOUT, S_HOUT, S_HFO = 18, 19, 20, 21, 22, 23, 24, 25, 26, 27
S_RES = 36
S_TMP = 44

def wfrag(tt, ks):
    i = tt * 6 + ks
    return ('a', 8 * i) if i < 32 else ('v', 128 + 8 * (i - 32))

def role_Ao_prologue(a):
    a.c("===== Ao prologue =====")
    srd_from_kernarg(a, S_T0, KA_AWO, D * D * 2)
    a("v_lshrrev_b32 v26, 4, v0")
    a("v_bfe_u32 v27, v0, 2, 2")
    a("v_lshl_add_u32 v28, v26, 3, v27")
    a("v_lshlrev_b32 v28, 10, v28")
    a("v_and_b32 v26, 1, v26")
    a("v_lshl_add_u32 v27, v26, 2, v27")
    a("v_lshl_add_u32 v28, v27, 5, v28")
    a("v_and_b32 v26, 3, v0")
    a("v_lshl_add_u32 v28, v26, 3, v28")
    a(f"s_lshl_b32 s16, s{S_W}, 8")
    a("v_add_u32 v28, s16, v28")
    for rho in range(3):
        a(f"s_mov_b32 s18, {128 * rho}")
        load_rowmajor_chunks(a, KA_AWO, D*D*2, 18, 0, 32, 24)
        a("s_waitcnt vmcnt(0)")
        a("s_barrier")
        for c in range(4):
            ks, half = 2 * rho + (c >> 1), c & 1
            for tt in range(8):
                a(f"v_xor_b32 v30, {tt << 5}, v28")
                if c >= 2: a("v_add_u32 v30, 0x10000, v30")
                rf, r = wfrag(tt, ks)
                for p in range(2):
                    rr = r + 4 * half + 2 * p
                    a(f"ds_read_b64_tr_b16 {rf}[{rr}:{rr+1}], v30 offset:{(c & 1) * 32768 + p * 4096}")
        a("s_waitcnt lgkmcnt(0)")
        a("s_barrier")
    a(f"s_mov_b32 s18, 384")
    load_rowmajor_chunks(a, KA_AWO, D*D*2, 18, 32768, 32, 24)
    a("v_add_u32 v28, 0x8000, v28")
    a(f"s_lshl_b32 s16, s{S_W}, 13")
    a("v_lshlrev_b32 v29, 4, v0")
    a("v_add_u32 v29, s16, v29")
    a("s_waitcnt vmcnt(0)")
    a("s_barrier")
    for c in range(4):
        for tt in range(8):
            a(f"v_xor_b32 v30, {tt << 5}, v28")
            for p in range(2):
                r = 32 + tt * 4 + 2 * p
                a(f"ds_read_b64_tr_b16 v[{r}:{r+1}], v30 offset:{p * 4096}")
        a("s_waitcnt lgkmcnt(0)")
        for tt in range(8):
            r = 32 + tt * 4
            a(f"ds_write_b128 v29, v[{r}:{r+3}] offset:{tt * 1024}")
        a("v_add_u32 v28, 0x8000, v28")
        a("v_add_u32 v29, 0x8000, v29")
        a("s_waitcnt lgkmcnt(0)")
        a("s_barrier")
    n, g, t = 24, 25, 26
    a(f"v_and_b32 v{n}, 15, v0")
    a(f"v_lshrrev_b32 v{g}, 4, v0")
    a(f"v_lshlrev_b32 v{V_L16}, 4, v0")
    a(f"v_add_u32 v{V_LA}, {L_A}, v{V_L16}")
    a(f"s_lshl_b32 s16, s{S_W}, 13")
    a(f"v_add_u32 v{V_WO0}, s16, v{V_L16}")
    a(f"v_add_u32 v{V_WO1}, 0x10000, v{V_WO0}")
    a(f"s_lshl_b32 s16, s{S_W}, 11")
    a(f"v_add_u32 v{V_MP}, s16, v{V_L16}")
    a(f"v_bfe_u32 v{t}, v{n}, 1, 1")
    a(f"v_mul_u32_u24 v{t}, 0xAAAA, v{t}")
    a(f"v_add_u32 v{V_IDX}, 0x4444, v{t}")
    a(f"v_mul_u32_u24 v{V_YW}, {YS}, v{g}")
    a(f"v_lshl_add_u32 v{V_YW}, v{n}, 2, v{V_YW}")
    a(f"s_lshl_b32 s16, s{S_W}, 9")
    a(f"s_add_u32 s16, s16, {L_Y}")
    a(f"v_add_u32 v{V_YW}, s16, v{V_YW}")
    a(f"s_mul_i32 s16, s{S_W}, {2*YS}")
    a(f"s_add_u32 s16, s16, {L_Y}")
    a(f"v_lshlrev_b32 v{V_YR}, 5, v0")
    a(f"v_add_u32 v{V_YR}, s16, v{V_YR}")
    a(f"v_and_b32 v{t}, 31, v0")
    a(f"v_lshlrev_b32 v{V_AF}, 2, v{t}")
    a(f"v_mov_b32 v{V_Z}, 0")
    a(f"s_lshr_b32 s{S_A}, s{S_H}, 2")
    a(f"s_and_b32 s17, s{S_H}, 3")
    a(f"s_mul_i32 s{S_AOO}, s{S_A}, {AO_L}")
    a(f"s_lshl_b32 s16, s17, 13")
    a(f"s_add_u32 s{S_AOO}, s{S_AOO}, s16")
    a(f"s_add_u32 s{S_AOO}, s{S_AOO}, {AO}")
    a(f"s_mul_i32 s{S_AFO}, s{S_A}, {AOF_L}")
    a(f"s_add_u32 s{S_AFO}, s{S_AFO}, {AOF}")
    a(f"s_lshl_b32 s16, s17, 3")
    a(f"s_lshl_b32 s17, s{S_W}, 1")
    a(f"s_add_u32 s16, s16, s17")
    a(f"s_lshl_b32 s{S_ROW}, s16, 10")
    a(f"s_lshl_b32 s17, s{S_A}, 1")
    a(f"s_add_u32 s17, s17, 1")
    a(f"s_mul_i32 s{S_XOUT}, s17, {ROWS_J}")
    a(f"s_add_u32 s{S_HOUT}, s{S_XOUT}, {HB}")
    a(f"s_add_u32 s{S_XOUT}, s{S_XOUT}, {XB}")
    a(f"s_mul_i32 s{S_HFO}, s17, {HF_J}")
    a(f"s_lshl_b32 s16, s16, 2")
    a(f"s_add_u32 s{S_HFO}, s{S_HFO}, s16")
    a(f"s_add_u32 s{S_HFO}, s{S_HFO}, {HF}")
    a(f"s_cmp_eq_u32 s{S_A}, 0")
    a(f"s_cbranch_scc0 Ao_res1")
    srd_from_kernarg(a, S_RES, KA_AX, S * D * 2)
    a(f"s_branch Ao_res2")
    a.label("Ao_res1")
    a(f"s_load_dwordx2 s[{S_RES}:{S_RES+1}], s[0:1], {KA_WS}")
    a("s_waitcnt lgkmcnt(0)")
    a(f"s_add_u32 s{S_RES}, s{S_RES}, {XB + 2*ROWS_J}")
    a(f"s_addc_u32 s{S_RES+1}, s{S_RES+1}, 0")
    a(f"s_mov_b32 s{S_RES+2}, {S*D*2}")
    a(f"s_mov_b32 s{S_RES+3}, 0x20000")
    a.label("Ao_res2")
    a(f"s_mov_b32 s{S_S}, 0")
    a(f"s_mov_b32 s{S_PEND}, 0")

def dma_a(a):
    a(f"s_lshl_b32 s{S_TMP}, s{S_W}, 11")
    a(f"s_add_u32 m0, s{S_TMP}, {L_A}")
    a("s_nop 0")
    a(f"buffer_load_dwordx4 v{V_MP}, s[{S_WS}:{S_WS+3}], s{S_AOO} offen sc1 lds")
    a(f"buffer_load_dwordx4 v{V_MP}, s[{S_WS}:{S_WS+3}], s{S_AOO} offen offset:1024 sc1 lds")

def role_Ao_main(a, uid="Ao", st=False):
    WS = f"s[{S_WS}:{S_WS+3}]"
    if st: stamps_init(a)
    flag_wait(a, 11, V_AF, S_AFO, uid + "0")
    dma_a(a)
    a("s_waitcnt vmcnt(0)")
    a("s_barrier")
    a.label(f"{uid}_item")
    a.lg = []
    stamp(a, 0, st)
    def aread(ks):
        r = AR + 4 * (ks % 4)
        a.ds(f"ds_read_b128 v[{r}:{r+3}], v{V_LA} offset:{ks*1024}", f"A{ks}")
    def fread(tt, ks, slot):
        vb = V_WO0 if ks == 6 else V_WO1
        for half in range(2):
            r = SL[slot] + 4 * half
            a.ds(f"ds_read_b128 v[{r}:{r+3}], v{vb} offset:{half*32768 + tt*1024}", f"F{tt}_{ks}")
    for ks in range(4): aread(ks)
    for r in range(ACC, ACC + 32, 2):
        a(f"v_mov_b64 v[{r}:{r+1}], 0")
    a(f"s_add_u32 s{S_AFO}, s{S_AFO}, 128")
    a(f"buffer_load_dword v11, v{V_AF}, {WS}, s{S_AFO} offen sc1")
    RES0, RES1 = 12, 16
    def smf(acc, A, rf, r):
        a(f"v_smfmac_f32_16x16x64_bf16 v[{acc}:{acc+3}], v[{A}:{A+3}], {rf}[{r}:{r+7}], v{V_IDX}")
    for ks in range(8):
        a.ds_wait(f"A{ks}")
        A = AR + 4 * (ks % 4)
        for tt in range(8):
            if ks < 6:
                rf, r = wfrag(tt, ks)
                smf(ACC + 4*tt, A, rf, r)
                if ks in (1, 2) and tt % 2 == 0:
                    fread((ks - 1) * 4 + tt // 2, 6, (ks - 1) * 4 + tt // 2)
            else:
                a.ds_wait(f"F{tt}_{ks}")
                smf(ACC + 4*tt, A, 'v', SL[tt])
                if ks == 6: fread(tt, 7, tt)
        if ks + 4 < 8: aread(ks + 4)
        if ks == 5:
            a(f"s_lshl_b32 s{S_TMP}, s{S_S}, 15")
            a(f"s_add_u32 s{S_TMP}, s{S_TMP}, s{S_ROW}")
            a(f"buffer_load_dwordx4 v[16:19], v{V_L16}, s[{S_RES}:{S_RES+3}], s{S_TMP} offen sc1")
            a(f"buffer_load_dwordx4 v[20:23], v{V_L16}, s[{S_RES}:{S_RES+3}], s{S_TMP} offen offset:1024 sc1")
    stamp(a, 1, st)
    lab = f"{uid}_pf"
    a(f"s_cmp_eq_u32 s{S_PEND}, 0")
    a(f"s_cbranch_scc1 {lab}")
    a("s_waitcnt vmcnt(3)")
    a(f"v_mov_b32 v24, 1")
    a(f"v_lshlrev_b32 v25, 2, v0")
    a(f"s_sub_u32 s{S_TMP+1}, s{S_HFO}, 128")
    a("s_mov_b64 exec, 3")
    a(f"buffer_store_dword v24, v25, {WS}, s{S_TMP+1} offen sc1")
    a("s_mov_b64 exec, -1")
    a(f"s_mov_b32 s{S_PEND}, 0")
    a.label(lab)
    a.nops(2)
    for tt in range(8):
        d = ACC + 4 * tt
        a(f"v_pk_add_f32 v[{d}:{d+1}], v[{d}:{d+1}], v[{d+2}:{d+3}]")
        a(f"ds_write_b32 v{V_YW}, v{d} offset:{64*tt}")
        a(f"ds_write_b32 v{V_YW}, v{d+1} offset:{64*tt + 4*YS}")
    a("s_waitcnt lgkmcnt(0)")
    a("s_barrier")
    stamp(a, 2, st)
    lab = f"{uid}_pre"
    a(f"s_add_u32 s{S_AOO}, s{S_AOO}, 32768")
    a(f"s_mov_b32 s{S_PRE}, 0")
    Y0, Y1, T0_, T1_ = 64, 72, 80, 96
    a(f"ds_read_b128 v[{Y0}:{Y0+3}], v{V_YR}")
    a(f"ds_read_b128 v[{Y0+4}:{Y0+7}], v{V_YR} offset:16")
    a(f"ds_read_b128 v[{Y1}:{Y1+3}], v{V_YR} offset:{YS}")
    a(f"ds_read_b128 v[{Y1+4}:{Y1+7}], v{V_YR} offset:{YS+16}")
    a("s_waitcnt vmcnt(0)")
    a(f"s_cmp_eq_u32 s{S_S}, 63")
    a(f"s_cbranch_scc1 {lab}")
    a("v_cmp_eq_u32 vcc, 0, v11")
    a(f"s_cbranch_vccnz {lab}")
    dma_a(a)
    a(f"s_mov_b32 s{S_PRE}, 1")
    a.label(lab)
    a("s_waitcnt lgkmcnt(0)")
    interleave2(a, lambda x: row_finish(x, Y0, 16, T0_, True), lambda x: row_finish(x, Y1, 20, T1_, True))
    a(f"s_lshl_b32 s{S_TMP}, s{S_S}, 15")
    a(f"s_add_u32 s{S_TMP}, s{S_TMP}, s{S_ROW}")
    a(f"s_add_u32 s{S_TMP+1}, s{S_TMP}, s{S_XOUT}")
    a(f"s_add_u32 s{S_TMP+2}, s{S_TMP}, s{S_HOUT}")
    a(f"buffer_store_dwordx4 v[{T0_}:{T0_+3}], v{V_L16}, {WS}, s{S_TMP+2} offen sc1")
    a(f"buffer_store_dwordx4 v[{T1_}:{T1_+3}], v{V_L16}, {WS}, s{S_TMP+2} offen offset:1024 sc1")
    a(f"buffer_store_dwordx4 v[16:19], v{V_L16}, {WS}, s{S_TMP+1} offen sc1")
    a(f"buffer_store_dwordx4 v[20:23], v{V_L16}, {WS}, s{S_TMP+1} offen offset:1024 sc1")
    stamp(a, 3, st)
    a(f"s_cmp_lg_u32 s{S_PRE}, 0")
    a(f"s_cbranch_scc1 {uid}_defer")
    a("s_waitcnt vmcnt(0)")
    a(f"v_mov_b32 v24, 1")
    a(f"v_lshlrev_b32 v25, 2, v0")
    a("s_mov_b64 exec, 3")
    a(f"buffer_store_dword v24, v25, {WS}, s{S_HFO} offen sc1")
    a("s_mov_b64 exec, -1")
    a(f"s_cmp_eq_u32 s{S_S}, 63")
    a(f"s_cbranch_scc1 {uid}_end")
    flag_wait(a, 11, V_AF, S_AFO, uid + "1")
    dma_a(a)
    a("s_waitcnt vmcnt(0)")
    a(f"s_branch {uid}_go")
    a.label(f"{uid}_defer")
    a(f"s_mov_b32 s{S_PEND}, 1")
    a("s_waitcnt vmcnt(4)")
    a.label(f"{uid}_go")
    a(f"s_add_u32 s{S_S}, s{S_S}, 1")
    a(f"s_add_u32 s{S_HFO}, s{S_HFO}, 128")
    a("s_barrier")
    if st:
        stamp(a, 4); stamp(a, 5); stamp(a, 6); stamp(a, 7); stamp(a, 8); stamps_accumulate(a)
    a(f"s_branch {uid}_item")
    a.label(f"{uid}_end")
    a("s_waitcnt vmcnt(0)")
    if st: stamps_store(a)
```

```python
from common import *
XBUF = 32 * 1024
KSEG  = 1024
L_K   = 0
L_V   = L_K + 2 * 9 * KSEG
L_Q   = L_V + 2 * 9 * KSEG
L_MG  = L_Q + 1024
L_O   = L_MG + 2 * 64 * 32
L_END = L_O + 1024
L_X   = 44032
assert L_END + 64 <= L_X
V_L16, V_XR, V_L8, V_HF, V_OW, V_Z, V_MGA = 1, 2, 3, 4, 5, 6, 7
V_AOA = 63
XA = 204
VD = 208
XF = 16
AQ_, AK_ = 32, 36
QB = 40
KA = 42
SC = 64
VA = 104
PB = 124
OA = 44 + 20
T0 = 8
WQ, WK, WV = 128, 0, 64
S_S, S_A, S_HIN, S_HFO, S_AOO, S_AFO, S_BUF, S_C, S_SLOT, S_FIRST, S_RB = 18, 19, 20, 21, 22, 23, 24, 25, 26, 27, 28
S_NA, S_NS, S_TURN, S_PRE, S_PEND, S_PAFO = 80, 81, 82, 83, 84, 85
N0 = 20
PATTERN, PATLEN = 0b01, 2
ADR = 192
S_MSK = 30
S_CNT = 46
S_TMP = 48
S_T2 = 76

def role_Aq_prologue(a):
    a.c("===== Aq prologue =====")
    srd_from_kernarg(a, S_T0, KA_AWQKV, D * 3 * D * 2)
    a("v_lshrrev_b32 v16, 1, v0")
    a("v_mul_u32_u24 v16, 3072, v16")
    a("v_and_b32 v17, 1, v0")
    a("v_lshl_add_u32 v16, v17, 4, v16")
    a(f"s_lshl_b32 s16, s{S_H}, 5")
    a(f"s_mul_i32 s17, s{S_W}, {128 * 3072}")
    a(f"s_add_u32 s16, s16, s17")
    a(f"s_lshl_b32 s17, s{S_W}, 12")
    for m in range(3):
        for j in range(4):
            a(f"s_add_u32 s18, s17, {m * 16384 + j * 1024}")
            a(f"s_mov_b32 m0, s18")
            a(f"s_add_u32 s19, s16, {m * 1024 + j * 32 * 3072}")
            a(f"buffer_load_dwordx4 v16, s[{S_T0}:{S_T0+3}], s19 offen lds")
    a("v_lshrrev_b32 v17, 4, v0")
    a("v_bfe_u32 v18, v0, 2, 2")
    a("v_lshl_add_u32 v17, v17, 3, v18")
    a("v_lshlrev_b32 v17, 5, v17")
    a("v_and_b32 v18, 3, v0")
    a("v_lshl_add_u32 v17, v18, 3, v17")
    a("s_waitcnt vmcnt(0)")
    a("s_barrier")
    for m, (rf, base) in enumerate((('v', WQ), ('a', WK), ('a', WV))):
        for ks in range(16):
            for p in range(2):
                r = base + 4 * ks + 2 * p
                a(f"ds_read_b64_tr_b16 {rf}[{r}:{r+1}], v17 offset:{m * 16384 + ks * 1024 + p * 128}")
    a("s_waitcnt lgkmcnt(0)")
    a("s_barrier")
    n, g, t = 16, 17, 18
    a(f"v_and_b32 v{n}, 15, v0")
    a(f"v_lshrrev_b32 v{g}, 4, v0")
    a(f"v_lshlrev_b32 v{V_L16}, 4, v0")
    a(f"v_lshlrev_b32 v{V_L8}, 3, v0")
    a(f"s_and_b32 s16, s{S_W}, 1")
    a(f"s_lshl_b32 s16, s16, 14")
    a(f"s_add_u32 s16, s16, {L_X}")
    for q in range(4):
        a(f"v_add_u32 v{t}, {4*q}, v{g}")
        a(f"v_xor_b32 v{t}, v{t}, v{n}")
        a(f"v_lshlrev_b32 v{XA+q}, 4, v{t}")
        a(f"v_lshl_add_u32 v{XA+q}, v{n}, 10, v{XA+q}")
        a(f"v_add_u32 v{XA+q}, s16, v{XA+q}")
    a(f"s_and_b32 s16, s{S_W}, 1")
    a(f"s_lshl_b32 s16, s16, 3")
    for j in range(8):
        a(f"s_add_u32 s17, s16, {j}")
        a(f"v_xor_b32 v{t}, s17, v0")
        a(f"v_lshlrev_b32 v{VD+j}, 4, v{t}")
    a(f"v_and_b32 v{t}, 31, v0")
    a(f"v_lshlrev_b32 v{V_HF}, 2, v{t}")
    a(f"v_mov_b32 v{V_Z}, 0")
    a(f"s_and_b32 s16, s{S_W}, 1")
    a(f"s_lshl_b32 s16, s16, 9")
    a(f"v_lshrrev_b32 v{t}, 3, v{n}")
    a(f"v_lshlrev_b32 v{V_OW}, 8, v{t}")
    a(f"v_and_b32 v{t}, 3, v{n}")
    a(f"v_lshl_add_u32 v{V_OW}, v{t}, 6, v{V_OW}")
    a(f"v_bfe_u32 v{t}, v{n}, 2, 1")
    a(f"v_lshl_add_u32 v{V_OW}, v{t}, 4, v{V_OW}")
    a(f"v_lshl_add_u32 v{V_OW}, v{g}, 2, v{V_OW}")
    a(f"s_add_u32 s16, s16, {L_O}")
    a(f"v_add_u32 v{V_OW}, s16, v{V_OW}")
    a(f"v_lshlrev_b32 v{V_AOA}, 13, v{g}")
    a(f"v_lshl_add_u32 v{V_AOA}, v{n}, 4, v{V_AOA}")
    a(f"s_and_b32 s16, s{S_W}, 1")
    a(f"s_lshl_b32 s16, s16, 11")
    a(f"s_add_u32 s16, s16, {L_MG}")
    a(f"v_lshlrev_b32 v{V_MGA}, 5, v0")
    a(f"v_add_u32 v{V_MGA}, s16, v{V_MGA}")
    a(f"v_lshlrev_b32 v{t}, 2, v{g}")
    a(f"v_sub_u32 v{t}, v{n}, v{t}")
    a(f"s_and_b32 s16, s{S_W}, 1")
    a(f"s_lshl_b32 s16, s16, 4")
    a(f"v_add_u32 v{t}, s16, v{t}")
    for kt in range(2):
        for r in range(4):
            m = S_MSK + 2 * (4*kt + r)
            a(f"v_cmp_gt_i32 s[{m}:{m+1}], {16*kt + r}, v{t}")
    a(f"v_mov_b32 v20, 0")
    a(f"v_mov_b32 v21, 0")
    a(f"v_mov_b32 v22, 0")
    a(f"v_mov_b32 v23, 0")
    a(f"s_lshl_b32 s16, s{S_W}, 10")
    a(f"s_add_u32 s16, s16, {L_K}")
    a(f"v_add_u32 v{t}, s16, v{V_L16}")
    for j in range(9):
        a(f"ds_write_b128 v{t}, v[20:23] offset:{j * 4096}")
    a(f"s_mov_b32 s{S_C}, 0x3eb8aa3b")
    a(f"s_mov_b32 s{S_CNT}, 0")
    a(f"s_mov_b32 s{S_CNT+1}, 0")
    a(f"s_mov_b32 s{S_BUF}, {L_X}")
    a("s_waitcnt lgkmcnt(0)")
    a("s_barrier")

def dma_x_units(srow, sbuf):
    u = []
    u.append(f"s_lshl_b32 s{S_TMP}, s{S_W}, 13")
    u.append(f"s_add_u32 s{S_TMP+1}, s{S_TMP}, s{sbuf}")
    u.append(f"s_add_u32 s{S_TMP}, s{S_TMP}, s{srow}")
    for half in range(2):
        u.append(f"s_mov_b32 m0, s{S_TMP+1}\n  s_nop 0" if half == 0 else f"s_add_u32 m0, s{S_TMP+1}, 4096\n  s_add_u32 s{S_TMP}, s{S_TMP}, 4096")
        for j in range(4):
            u.append(f"buffer_load_dwordx4 v{VD+4*half+j}, s[{S_WS}:{S_WS+3}], s{S_TMP} offen offset:{1024*j} sc1 lds")
    return u
def dma_x(a, srow, sbuf):
    for x in dma_x_units(srow, sbuf): a(x)

def next_item_units():
    T = S_T2
    u = []
    u.append(f"s_lshr_b32 s{T}, {PATTERN}, s{S_TURN}")
    u.append(f"s_and_b32 s{S_NA}, s{T}, 1")
    u.append(f"s_add_u32 s{T}, s{S_TURN}, 1")
    u.append(f"s_cmp_ge_u32 s{T}, {PATLEN}\n  s_cselect_b32 s{T}, 0, s{T}")
    u.append(f"s_cmp_lt_u32 s{S_CNT}, {N0}\n  s_cselect_b32 s{S_NA}, 0, s{S_NA}")
    u.append(f"s_cmp_lt_u32 s{S_CNT}, {N0}\n  s_cselect_b32 s{S_TURN}, s{S_TURN}, s{T}")
    u.append(f"s_cmp_ge_u32 s{S_CNT}, 64\n  s_cselect_b32 s{S_NA}, 1, s{S_NA}")
    u.append(f"s_cmp_lt_u32 s{S_CNT}, 64\n  s_cselect_b32 s{T}, 0, 2")
    u.append(f"s_cmp_ge_u32 s{S_CNT+1}, 64\n  s_cselect_b32 s{S_NA}, s{T}, s{S_NA}")
    u.append(f"s_cmp_eq_u32 s{S_NA}, 1\n  s_cselect_b32 s{S_NS}, s{S_CNT+1}, s{S_CNT}")
    u.append(f"s_and_b32 s{T}, s{S_NA}, 1")
    u.append(f"s_mul_i32 s{S_HIN}, s{T}, {2*ROWS_J}")
    u.append(f"s_lshl_b32 s{T+1}, s{S_NS}, 15")
    u.append(f"s_add_u32 s{S_HIN}, s{S_HIN}, s{T+1}")
    u.append(f"s_add_u32 s{S_HIN}, s{S_HIN}, {HB}")
    u.append(f"s_lshl_b32 s{T+1}, s{S_NS}, 7")
    u.append(f"s_add_u32 s{S_HFO}, s{T+1}, {HF + 2*HF_J}")
    return u
def next_item(a, uid):
    for x in next_item_units(): a(x)

def start_item(a):
    a(f"s_mov_b32 s{S_A}, s{S_NA}")
    a(f"s_mov_b32 s{S_S}, s{S_NS}")
    a(f"s_add_u32 s{S_CNT+1}, s{S_CNT+1}, s{S_NA}")
    a(f"s_xor_b32 s{S_T2}, s{S_NA}, 1")
    a(f"s_add_u32 s{S_CNT}, s{S_CNT}, s{S_T2}")

def other_buf(a, dst):
    a(f"s_sub_u32 s{dst}, {2*L_X + XBUF}, s{S_BUF}")

def pending_flag(a, uid):
    WS = f"s[{S_WS}:{S_WS+3}]"
    a(f"v_mov_b32 v{T0}, 1")
    a("s_mov_b64 exec, 1")
    a(f"buffer_store_dword v{T0}, v{V_Z}, {WS}, s{S_PAFO} offen sc1")
    a("s_mov_b64 exec, -1")
    a(f"s_mov_b32 s{S_PEND}, 0")

def role_Aq_main(a, uid="Aq", st=False):
    WS = f"s[{S_WS}:{S_WS+3}]"
    if st: stamps_init(a)
    a(f"s_mov_b32 s{S_TURN}, 0")
    a(f"s_mov_b32 s{S_PEND}, 0")
    next_item(a, uid)
    dma_x(a, S_HIN, S_BUF)
    start_item(a)
    a("s_waitcnt vmcnt(0)")
    a("s_barrier")
    a.label(f"{uid}_item")
    a.lg = []
    stamp(a, 0, st)
    def xread(ks):
        r = XF + 4 * (ks % 4)
        a.ds(f"ds_read_b128 v[{r}:{r+3}], v{XA + (ks & 3)} offset:{256*(ks >> 2)}", f"x{ks}")
    for ks in range(3): xread(ks)
    a(f"s_mul_i32 s{S_T2}, s{S_S}, 57")
    a(f"s_lshr_b32 s{S_T2}, s{S_T2}, 9")
    a(f"s_mul_i32 s{S_T2}, s{S_T2}, 9")
    a(f"s_sub_u32 s{S_SLOT}, s{S_S}, s{S_T2}")
    a(f"s_mul_i32 s{S_RB}, s{S_A}, {9*KSEG}")
    def fillers(tagp):
        F = []
        T = S_T2 + 2
        F.append(f"s_lshr_b32 s{T}, s{S_W}, 1")
        F.append(f"s_mul_i32 s{T}, s{T}, 5")
        F.append(f"s_sub_u32 s{S_FIRST}, s{S_S}, 8")
        F.append(f"s_add_u32 s{S_FIRST}, s{S_FIRST}, s{T}")
        F.append(f"s_add_u32 s{T}, s{T}, s{S_SLOT}")
        F.append(f"s_add_u32 s{T}, s{T}, 1")
        F.append(f"s_lshl_b32 s{T}, s{T}, 10")
        for i in range(5):
            F.append(f"s_cmp_ge_u32 s{T}, {9*1024}\n  s_cselect_b32 s{T+1}, {9*1024}, 0")
            F.append(f"s_sub_u32 s{T}, s{T}, s{T+1}")
            F.append(f"s_add_u32 s{T+1}, s{T}, s{S_RB}")
            F.append(f"v_add_u32 v{ADR+i}, s{T+1}, v{V_L8}")
            F.append(f"v_add_u32 v{ADR+5+i}, s{T+1}, v{V_L16}")
            F.append(f"s_add_u32 s{T}, s{T}, 1024")
        F += next_item_units()
        F.append(f"s_mov_b32 s{S_PRE}, 0")
        F.append(f"s_sub_u32 s{S_T2+3}, {2*L_X + XBUF}, s{S_BUF}")
        lab = f"{uid}_{tagp}_fl"
        F.append(f"s_cmp_eq_u32 s{S_NA}, 1\n  s_cbranch_scc0 {lab}\n  buffer_load_dword v{T0+7}, v{V_HF}, {WS}, s{S_HFO} offen sc1\n{lab}:")
        du = dma_x_units(S_HIN, S_T2 + 3)
        for k, x in enumerate(du):
            lab = f"{uid}_{tagp}_d{k}"
            F.append(f"s_cmp_eq_u32 s{S_NA}, 0\n  s_cbranch_scc0 {lab}\n  {x}\n{lab}:")
        F.append(f"s_cmp_eq_u32 s{S_NA}, 0\n  s_cselect_b32 s{S_PRE}, 1, 0")
        return F
    a(f"s_cmp_ge_u32 s{S_W}, 2")
    a(f"s_cbranch_scc1 {uid}_vproj")
    sv = list(a.lg)
    a(f"s_lshl_b32 s{S_T2}, s{S_SLOT}, 10")
    a(f"s_add_u32 s{S_T2}, s{S_T2}, s{S_RB}")
    a(f"s_lshl_b32 s{S_T2+1}, s{S_W}, 9")
    a(f"s_add_u32 s{S_T2}, s{S_T2}, s{S_T2+1}")
    a(f"v_add_u32 v{T0}, s{S_T2}, v{V_L8}")
    a(f"s_add_u32 s{S_T2+1}, s{S_T2+1}, {L_Q}")
    a(f"v_add_u32 v{T0+1}, s{S_T2+1}, v{V_L8}")
    F = fillers("a")
    per = -(-len(F) // 31)
    for ks in range(16):
        if ks + 3 < 16: xread(ks + 3)
        a.ds_wait(f"x{ks}")
        r = XF + 4 * (ks % 4)
        cq = "0" if ks == 0 else f"v[{AQ_}:{AQ_+3}]"
        ck = "0" if ks == 0 else f"v[{AK_}:{AK_+3}]"
        a(f"v_mfma_f32_16x16x32_bf16 v[{AK_}:{AK_+3}], a[{WK+4*ks}:{WK+4*ks+3}], v[{r}:{r+3}], {ck}")
        for _ in range(per):
            if F: a(F.pop(0))
        a(f"v_mfma_f32_16x16x32_bf16 v[{AQ_}:{AQ_+3}], v[{WQ+4*ks}:{WQ+4*ks+3}], v[{r}:{r+3}], {cq}")
        if ks < 15:
            for _ in range(per):
                if F: a(F.pop(0))
    assert not F
    a.nops(7)
    a(f"v_cvt_pk_bf16_f32 v{T0+2}, v{AK_}, v{AK_+1}")
    a(f"v_cvt_pk_bf16_f32 v{T0+3}, v{AK_+2}, v{AK_+3}")
    a(f"ds_write_b64 v{T0}, v[{T0+2}:{T0+3}] offset:{L_K}")
    a(f"v_cvt_pk_bf16_f32 v{T0+4}, v{AQ_}, v{AQ_+1}")
    a(f"v_cvt_pk_bf16_f32 v{T0+5}, v{AQ_+2}, v{AQ_+3}")
    a(f"ds_write_b64 v{T0+1}, v[{T0+4}:{T0+5}]")
    a(f"s_branch {uid}_pdone")
    a.label(f"{uid}_vproj")
    a.lg = sv
    a(f"s_lshl_b32 s{S_T2}, s{S_SLOT}, 10")
    a(f"s_add_u32 s{S_T2}, s{S_T2}, s{S_RB}")
    a(f"s_and_b32 s{S_T2+1}, s{S_W}, 1")
    a(f"s_lshl_b32 s{S_T2+1}, s{S_T2+1}, 3")
    a(f"s_add_u32 s{S_T2}, s{S_T2}, s{S_T2+1}")
    a(f"v_add_u32 v{T0}, s{S_T2}, v{V_L16}")
    F = fillers("b")
    per = -(-len(F) // 15)
    for ks in range(16):
        if ks + 3 < 16: xread(ks + 3)
        a.ds_wait(f"x{ks}")
        r = XF + 4 * (ks % 4)
        c = "0" if ks == 0 else f"v[{AQ_}:{AQ_+3}]"
        a(f"v_mfma_f32_16x16x32_bf16 v[{AQ_}:{AQ_+3}], v[{r}:{r+3}], a[{WV+4*ks}:{WV+4*ks+3}], {c}")
        if ks < 15:
            for _ in range(per):
                if F: a(F.pop(0))
    assert not F
    a.nops(8)
    a(f"v_cvt_pk_bf16_f32 v{T0+2}, v{AQ_}, v{AQ_+1}")
    a(f"v_cvt_pk_bf16_f32 v{T0+3}, v{AQ_+2}, v{AQ_+3}")
    a(f"ds_write_b64 v{T0}, v[{T0+2}:{T0+3}] offset:{L_V}")
    a.label(f"{uid}_pdone")
    a("s_waitcnt lgkmcnt(0)")
    a("s_barrier")
    stamp(a, 1, st)
    a.lg = []
    a(f"s_and_b32 s{S_T2}, s{S_W}, 1")
    a(f"s_lshl_b32 s{S_T2}, s{S_T2}, 9")
    a(f"s_add_u32 s{S_T2}, s{S_T2}, {L_Q}")
    a(f"v_add_u32 v{T0}, s{S_T2}, v{V_L8}")
    a.ds(f"ds_read_b64 v[{QB}:{QB+1}], v{T0}", "q")
    for i in range(5):
        a.ds(f"ds_read_b64 v[{KA+4*i}:{KA+4*i+1}], v{ADR+i} offset:{L_K}", f"k{i}")
        a.ds(f"ds_read_b64 v[{KA+4*i+2}:{KA+4*i+3}], v{ADR+i} offset:{L_K + 512}", f"k{i}")
    for i in range(5):
        a.ds(f"ds_read_b128 v[{VA+4*i}:{VA+4*i+3}], v{ADR+5+i} offset:{L_V}", f"v{i}")
    lab = f"{uid}_mid"
    a(f"s_mov_b32 s{S_T2+2}, s{S_PEND}")
    a(f"s_cmp_eq_u32 s{S_PEND}, 0")
    a(f"s_cbranch_scc1 {lab}_a")
    a(f"s_cmp_eq_u32 s{S_PRE}, 0")
    a(f"s_cbranch_scc1 {lab}_w1")
    a("s_waitcnt vmcnt(8)")
    a(f"s_branch {lab}_w2")
    a.label(lab + "_w1")
    a("s_waitcnt vmcnt(0)")
    a.label(lab + "_w2")
    pending_flag(a, uid)
    a.label(lab + "_a")
    for i in range(5):
        a.ds_wait(f"k{i}")
        for kt in range(2):
            d = SC + 8*i + 4*kt
            a(f"v_mfma_f32_16x16x16_bf16 v[{d}:{d+3}], v[{KA+4*i+2*kt}:{KA+4*i+2*kt+1}], v[{QB}:{QB+1}], 0")
    lab = f"{uid}_p1"
    a(f"s_cmp_eq_u32 s{S_NA}, 1")
    a(f"s_cbranch_scc0 {lab}")
    a(f"s_cmp_lg_u32 s{S_T2+2}, 0")
    a(f"s_cbranch_scc1 {lab}_w")
    a("s_waitcnt vmcnt(0)")
    a.label(lab + "_w")
    a(f"v_cmp_eq_u32 vcc, 0, v{T0+7}")
    a(f"s_cbranch_vccnz {lab}")
    other_buf(a, S_T2 + 3)
    dma_x(a, S_HIN, S_T2 + 3)
    a(f"s_mov_b32 s{S_PRE}, 1")
    a.label(lab)
    a(f"v_mov_b32 v{T0+2}, 0xff800000")
    a(f"s_cmp_ge_u32 s{S_W}, 2")
    a(f"s_cbranch_scc1 {uid}_m1")
    for kt in range(2):
        for r in range(4):
            m = S_MSK + 2 * (4*kt + r)
            a(f"v_cndmask_b32 v{SC+4*kt+r}, v{T0+2}, v{SC+4*kt+r}, s[{m}:{m+1}]")
    a(f"s_branch {uid}_m2")
    a.label(f"{uid}_m1")
    a.nops(4)
    for kt in range(2):
        for r in range(4):
            m = S_MSK + 2 * (4*kt + r)
            a(f"v_cndmask_b32 v{SC+24+4*kt+r}, v{SC+24+4*kt+r}, v{T0+2}, s[{m}:{m+1}]")
    for r in range(8):
        a(f"v_mov_b32 v{SC+32+r}, v{T0+2}")
    a.label(f"{uid}_m2")
    a(f"s_cmp_ge_i32 s{S_FIRST}, 0")
    a(f"s_cbranch_scc1 {uid}_allvalid")
    a.nops(8)
    for i in range(5):
        lab = f"{uid}_nv{i}"
        a(f"s_add_i32 s{S_TMP}, s{S_FIRST}, {i}")
        a(f"s_cmp_ge_i32 s{S_TMP}, 0")
        a(f"s_cbranch_scc1 {lab}")
        for r in range(8):
            a(f"v_mov_b32 v{SC+8*i+r}, v{T0+2}")
        a.label(lab)
    a.label(f"{uid}_allvalid")
    stamp(a, 2, st)
    mx, t1 = T0 + 3, T0 + 4
    a(f"v_max3_f32 v{mx}, v{SC}, v{SC+1}, v{SC+2}")
    a(f"v_max3_f32 v{t1}, v{SC+3}, v{SC+4}, v{SC+5}")
    for k in range(6, 38, 4):
        a(f"v_max3_f32 v{mx}, v{mx}, v{SC+k}, v{SC+k+1}")
        a(f"v_max3_f32 v{t1}, v{t1}, v{SC+k+2}, v{SC+k+3}")
    a(f"v_max3_f32 v{mx}, v{mx}, v{SC+38}, v{SC+39}")
    a(f"v_max_f32 v{mx}, v{mx}, v{t1}")
    a(f"v_mov_b32 v{t1}, v{mx}")
    a("s_nop 1")
    a(f"v_permlane16_swap_b32 v{mx}, v{t1}")
    a(f"v_max_f32 v{mx}, v{mx}, v{t1}")
    a(f"v_mov_b32 v{t1}, v{mx}")
    a("s_nop 1")
    a(f"v_permlane32_swap_b32 v{mx}, v{t1}")
    a(f"v_max_f32 v{mx}, v{mx}, v{t1}")
    a(f"v_max_f32 v{mx}, 0xff7fffff, v{mx}")
    a(f"v_mul_f32 v{t1}, s{S_C}, v{mx}")
    a(f"v_mov_b32 v{t1+1}, v{t1}")
    a(f"v_mov_b32 v{T0+6}, s{S_C}")
    a(f"v_mov_b32 v{T0+7}, s{S_C}")
    OAcc, LS = AQ_, AK_
    a.ds_wait("v4")
    for i in range(5):
        b = SC + 8 * i
        for r in range(0, 8, 2):
            a(f"v_pk_fma_f32 v[{b+r}:{b+r+1}], v[{b+r}:{b+r+1}], v[{T0+6}:{T0+7}], v[{t1}:{t1+1}] neg_lo:[0,0,1] neg_hi:[0,0,1]")
        for r in range(8):
            a(f"v_exp_f32 v{b+r}, v{b+r}")
        if i == 0:
            a("s_nop 0")
            a(f"v_pk_add_f32 v[{LS}:{LS+1}], v[{b}:{b+1}], v[{b+2}:{b+3}]")
        else:
            a(f"v_pk_add_f32 v[{LS}:{LS+1}], v[{LS}:{LS+1}], v[{b}:{b+1}]")
            a(f"v_pk_add_f32 v[{LS}:{LS+1}], v[{LS}:{LS+1}], v[{b+2}:{b+3}]")
        for k in range(4):
            a(f"v_cvt_pk_bf16_f32 v{PB+k}, v{b+2*k}, v{b+2*k+1}")
        c = "0" if i == 0 else f"v[{OAcc}:{OAcc+3}]"
        a(f"v_pk_add_f32 v[{LS}:{LS+1}], v[{LS}:{LS+1}], v[{b+4}:{b+5}]")
        a(f"v_pk_add_f32 v[{LS}:{LS+1}], v[{LS}:{LS+1}], v[{b+6}:{b+7}]")
        a(f"v_mfma_f32_16x16x32_bf16 v[{OAcc}:{OAcc+3}], v[{VA+4*i}:{VA+4*i+3}], v[{PB}:{PB+3}], {c}")
    lsum = LS
    a(f"v_add_f32 v{lsum}, v{LS}, v{LS+1}")
    a(f"v_mov_b32 v{T0+6}, v{lsum}")
    a("s_nop 1")
    a(f"v_permlane16_swap_b32 v{lsum}, v{T0+6}")
    a(f"v_add_f32 v{lsum}, v{lsum}, v{T0+6}")
    a(f"v_mov_b32 v{T0+6}, v{lsum}")
    a("s_nop 1")
    a(f"v_permlane32_swap_b32 v{lsum}, v{T0+6}")
    a(f"v_add_f32 v{lsum}, v{lsum}, v{T0+6}")
    stamp(a, 3, st)
    a(f"s_cmp_ge_u32 s{S_W}, 2")
    a(f"s_cbranch_scc1 {uid}_mg1")
    a(f"v_mov_b32 v{t1+1}, v{lsum}")
    a(f"ds_write_b128 v{V_MGA}, v[{OAcc}:{OAcc+3}]")
    a(f"ds_write_b64 v{V_MGA}, v[{t1}:{t1+1}] offset:16")
    a("s_waitcnt lgkmcnt(0)")
    a("s_barrier")
    a(f"s_branch {uid}_mgdone")
    a.label(f"{uid}_mg1")
    a("s_barrier")
    B = SC
    a(f"ds_read_b128 v[{B}:{B+3}], v{V_MGA}")
    a(f"ds_read_b64 v[{B+4}:{B+5}], v{V_MGA} offset:16")
    a("s_waitcnt lgkmcnt(0)")
    a(f"v_max_f32 v{B+6}, v{B+4}, v{t1}")
    a(f"v_sub_f32 v{B+4}, v{B+4}, v{B+6}")
    a(f"v_sub_f32 v{B+7}, v{t1}, v{B+6}")
    a(f"v_exp_f32 v{B+4}, v{B+4}")
    a(f"v_exp_f32 v{B+7}, v{B+7}")
    a("s_nop 0")
    a(f"v_mul_f32 v{B+5}, v{B+5}, v{B+4}")
    a(f"v_fmac_f32 v{B+5}, v{lsum}, v{B+7}")
    a(f"v_rcp_f32 v{B+5}, v{B+5}")
    a("s_nop 0")
    a(f"v_mul_f32 v{B+4}, v{B+4}, v{B+5}")
    a(f"v_mul_f32 v{B+7}, v{B+7}, v{B+5}")
    for r in range(4):
        a(f"v_mul_f32 v{B+r}, v{B+r}, v{B+4}")
        a(f"v_fmac_f32 v{B+r}, v{OAcc+r}, v{B+7}")
    a(f"v_cvt_pk_bf16_f32 v{B}, v{B}, v{B+1}")
    a(f"v_cvt_pk_bf16_f32 v{B+1}, v{B+2}, v{B+3}")
    a(f"ds_write_b32 v{V_OW}, v{B}")
    a(f"ds_write_b32 v{V_OW}, v{B+1} offset:32")
    a("s_waitcnt lgkmcnt(0)")
    a.label(f"{uid}_mgdone")
    a("s_barrier")
    stamp(a, 4, st)
    a(f"s_cmp_lg_u32 s{S_W}, 0")
    a(f"s_cbranch_scc1 {uid}_noout")
    a(f"v_add_u32 v{T0}, {L_O}, v{V_L16}")
    a(f"ds_read_b128 v[{SC}:{SC+3}], v{T0}")
    a(f"s_mul_i32 s{S_AOO}, s{S_A}, {AO_L}")
    a(f"s_lshl_b32 s{S_T2}, s{S_S}, 15")
    a(f"s_add_u32 s{S_AOO}, s{S_AOO}, s{S_T2}")
    a(f"s_lshl_b32 s{S_T2}, s{S_H}, 8")
    a(f"s_add_u32 s{S_AOO}, s{S_AOO}, s{S_T2}")
    a(f"s_add_u32 s{S_AOO}, s{S_AOO}, {AO}")
    a(f"s_mul_i32 s{S_PAFO}, s{S_A}, {AOF_L}")
    a(f"s_lshl_b32 s{S_T2}, s{S_S}, 7")
    a(f"s_add_u32 s{S_PAFO}, s{S_PAFO}, s{S_T2}")
    a(f"s_lshl_b32 s{S_T2}, s{S_H}, 2")
    a(f"s_add_u32 s{S_PAFO}, s{S_PAFO}, s{S_T2}")
    a(f"s_add_u32 s{S_PAFO}, s{S_PAFO}, {AOF}")
    a("s_waitcnt lgkmcnt(0)")
    a(f"buffer_store_dwordx4 v[{SC}:{SC+3}], v{V_AOA}, {WS}, s{S_AOO} offen sc1")
    a(f"s_mov_b32 s{S_PEND}, 1")
    a.label(f"{uid}_noout")
    stamp(a, 5, st)
    a(f"s_cmp_eq_u32 s{S_NA}, 2")
    a(f"s_cbranch_scc1 {uid}_end")
    a(f"s_cmp_lg_u32 s{S_PRE}, 0")
    a(f"s_cbranch_scc1 {uid}_have")
    lab = f"{uid}_np"
    a("s_waitcnt vmcnt(0)")
    a(f"s_cmp_eq_u32 s{S_PEND}, 0")
    a(f"s_cbranch_scc1 {lab}")
    pending_flag(a, uid)
    a.label(lab)
    flag_wait(a, T0 + 7, V_HF, S_HFO, uid + "w")
    other_buf(a, S_T2 + 3)
    dma_x(a, S_HIN, S_T2 + 3)
    a("s_waitcnt vmcnt(0)")
    a(f"s_branch {uid}_go")
    a.label(f"{uid}_have")
    a("s_waitcnt vmcnt(1)")
    a(f"s_cmp_eq_u32 s{S_W}, 0")
    a(f"s_cbranch_scc1 {uid}_go")
    a("s_waitcnt vmcnt(0)")
    a.label(f"{uid}_go")
    other_buf(a, S_T2 + 3)
    a(f"s_sub_u32 s{S_T2}, s{S_T2+3}, s{S_BUF}")
    for q in range(4):
        a(f"v_add_u32 v{XA+q}, s{S_T2}, v{XA+q}")
    a(f"s_mov_b32 s{S_BUF}, s{S_T2+3}")
    start_item(a)
    a("s_barrier")
    if st:
        stamp(a, 6); stamp(a, 7); stamp(a, 8); stamps_accumulate(a)
    a(f"s_branch {uid}_item")
    a.label(f"{uid}_end")
    a("s_waitcnt vmcnt(0)")
    lab = f"{uid}_lastf"
    a(f"s_cmp_eq_u32 s{S_PEND}, 0")
    a(f"s_cbranch_scc1 {lab}")
    pending_flag(a, uid)
    a.label(lab)
    a("s_waitcnt vmcnt(0)")
    if st: stamps_store(a)
```

```python
from common import *
L_Y = 65536
V_L16, V_XRD, V_OF, V_PST, V_INR, V_YW, V_YR, V_Z = 1, 2, 3, 4, 5, 6, 7, 8
SEL = 12
XF = 24
ACC = 56
MSG = 72
INA, INB, RD = 80, 84, 88
Y_, RES, TT = 96, 104, 108
W_ = 0
S_S, S_OBO, S_OFO, S_BUF, S_PRE, S_INS, S_TAG, S_XIN, S_XOUT, S_HOUT, S_HFO, S_PEND, S_OINB = 18, 19, 20, 21, 22, 23, 24, 25, 26, 27, 28, 29, 30
S_LO8 = 32
S_OUT = 36
S_TMP = 44

def role_O_prologue(a):
    a.c("===== O prologue =====")
    a(f"s_lshr_b32 s18, s{S_H}, 2")
    a(f"s_lshl_b32 s18, s18, 19")
    a(f"s_and_b32 s19, s{S_H}, 3")
    a(f"s_lshl_b32 s19, s19, 8")
    a(f"s_add_u32 s18, s18, s19")
    load_slabs(a, [(KA_WO, 'a', W_)], tmp=24, row_shift=10, nbytes=H * DH * D * 2, base_sgpr=18)
    n, g, t = 24, 25, 26
    a(f"v_and_b32 v{n}, 15, v0")
    a(f"v_lshrrev_b32 v{g}, 4, v0")
    a(f"v_lshlrev_b32 v{V_L16}, 4, v0")
    a(f"v_mov_b32 v{V_XRD}, v{V_L16}")
    a(f"v_mov_b32 v{V_Z}, 0")
    a(f"v_and_b32 v{t}, 7, v0")
    a(f"v_lshlrev_b32 v{V_OF}, 2, v{t}")
    a(f"s_lshr_b32 s16, s{S_H}, 2")
    a(f"s_lshl_b32 s16, s16, 5")
    a(f"v_add_u32 v{V_OF}, s16, v{V_OF}")
    a(f"v_lshlrev_b32 v{V_PST}, 13, v{n}")
    a(f"v_lshl_add_u32 v{V_PST}, v{g}, 4, v{V_PST}")
    a(f"s_lshr_b32 s16, s{S_H}, 2")
    a(f"s_lshl_b32 s16, s16, 10")
    a(f"s_and_b32 s17, s{S_H}, 3")
    a(f"s_lshl_b32 s17, s17, 8")
    a(f"s_add_u32 s16, s16, s17")
    a(f"s_lshl_b32 s17, s{S_W}, 6")
    a(f"s_add_u32 s16, s16, s17")
    a(f"v_add_u32 v{V_PST}, s16, v{V_PST}")
    a(f"v_lshlrev_b32 v{V_INR}, 10, v{g}")
    a(f"v_lshl_add_u32 v{V_INR}, v{n}, 4, v{V_INR}")
    a(f"s_lshl_b32 s16, s{S_H}, 13")
    a(f"s_lshl_b32 s17, s{S_W}, 8")
    a(f"s_add_u32 s16, s16, s17")
    a(f"v_add_u32 v{V_INR}, s16, v{V_INR}")
    a(f"v_lshl_add_u32 v{t}, v{g}, 5, v{n}")
    a(f"s_lshl_b32 s16, s{S_W}, 7")
    a(f"v_add_u32 v{t}, s16, v{t}")
    a(f"v_lshlrev_b32 v{V_YW}, 2, v{t}")
    a(f"v_add_u32 v{V_YW}, {L_Y}, v{V_YW}")
    a(f"v_lshlrev_b32 v{V_YR}, 5, v0")
    a(f"v_add_u32 v{V_YR}, {L_Y}, v{V_YR}")
    build_sel(a, SEL, n, t)
    a(f"s_mov_b32 s{S_LO8}, 0x00FF00FF")
    a(f"s_mov_b32 s{S_LO8+1}, 0x00FF00FF")
    a(f"s_mul_i32 s{S_OBO}, s{S_L}, {OB_L}")
    a(f"s_lshr_b32 s16, s{S_H}, 2")
    a(f"s_lshl_b32 s16, s16, 15")
    a(f"s_add_u32 s{S_OBO}, s{S_OBO}, s16")
    a(f"s_add_u32 s{S_OBO}, s{S_OBO}, {OB}")
    a(f"s_mul_i32 s{S_OFO}, s{S_L}, {OF_L}")
    a(f"s_add_u32 s{S_OFO}, s{S_OFO}, {OF}")
    a(f"s_mul_i32 s{S_OINB}, s{S_L}, {OIN_L}")
    a(f"s_add_u32 s{S_OINB}, s{S_OINB}, {OIN}")
    a(f"s_lshl_b32 s16, s{S_L}, 1")
    a(f"s_add_u32 s16, s16, 1")
    a(f"s_mul_i32 s{S_XIN}, s16, {ROWS_J}")
    a(f"s_lshl_b32 s17, s{S_H}, 10")
    a(f"s_add_u32 s{S_XIN}, s{S_XIN}, s17")
    a(f"s_add_u32 s{S_XIN}, s{S_XIN}, {XB}")
    a(f"s_add_u32 s{S_XOUT}, s17, {XB + 2*ROWS_J}")
    a(f"s_add_u32 s{S_HOUT}, s17, {HB + 2*ROWS_J}")
    a(f"s_lshl_b32 s{S_HFO}, s{S_H}, 2")
    a(f"s_add_u32 s{S_HFO}, s{S_HFO}, {HF + 2*HF_J}")
    srd_from_kernarg(a, S_OUT, KA_OUT, S * D * 2)
    a(f"s_mov_b32 s{S_S}, 0")
    a(f"s_mov_b32 s{S_BUF}, 0")
    a(f"s_mov_b32 s{S_PEND}, 0")

def dma_o(a, sbuf):
    a(f"s_lshl_b32 s{S_TMP}, s{S_W}, 13")
    a(f"s_add_u32 s{S_TMP+1}, s{S_TMP}, s{sbuf}")
    a(f"s_add_u32 s{S_TMP}, s{S_TMP}, s{S_OBO}")
    for r in range(8):
        a(f"s_mov_b32 m0, s{S_TMP+1}")
        a(f"s_add_u32 s{S_TMP+1}, s{S_TMP+1}, 1024")
        a(f"buffer_load_dwordx4 v{V_L16}, s[{S_WS}:{S_WS+3}], s{S_TMP} offen sc1 lds")
        a(f"s_add_u32 s{S_TMP}, s{S_TMP}, 1024")

def role_O_main(a, layer, local=True, uid="O", st=False):
    WS = f"s[{S_WS}:{S_WS+3}]"
    stf = "" if local else "sc1"
    ldf = "nt" if local else "sc1"
    if st: stamps_init(a)
    flag_wait(a, 20, V_OF, S_OFO, uid + "0")
    dma_o(a, S_BUF)
    a("s_waitcnt vmcnt(0)")
    a("s_barrier")
    a.label(f"{uid}_item")
    a.lg = []
    stamp(a, 0, st)
    a(f"s_add_u32 s{S_OFO}, s{S_OFO}, {64*4}")
    a(f"s_add_u32 s{S_OBO}, s{S_OBO}, {32*8192}")
    a(f"buffer_load_dword v20, v{V_OF}, {WS}, s{S_OFO} offen sc1")
    a(f"buffer_load_dwordx4 v[{RES}:{RES+3}], v{V_L16}, {WS}, s{S_XIN} offen sc1")
    a(f"s_and_b32 s{S_TMP}, s{S_S}, 1")
    a(f"s_mul_i32 s{S_TMP}, s{S_TMP}, {OIN_SLOT}")
    a(f"s_add_u32 s{S_INS}, s{S_TMP}, s{S_OINB}")
    a(f"s_bfe_u32 s{S_TAG}, s{S_S}, 0x10001")
    def xread(ks, slot):
        r = XF + 8 * slot
        hh, k4 = ks // 4, ks % 4
        a.ds(f"ds_read_b128 v[{r}:{r+3}], v{V_XRD} offset:{hh*8192 + k4*1024}", f"x{ks}")
        a.ds(f"ds_read_b128 v[{r+4}:{r+7}], v{V_XRD} offset:{hh*8192 + 4096 + k4*1024}", f"x{ks}")
    for ks in range(3): xread(ks, ks)
    for ks in range(16):
        if ks + 3 < 16: xread(ks + 3, (ks + 3) % 4)
        a.ds_wait(f"x{ks}")
        r = XF + 8 * (ks % 4)
        for t in range(2):
            for tt in range(2):
                d = ACC + 8*t + 4*tt; wr = W_ + t * 64 + ks * 4
                c = "0" if ks == 0 else f"v[{d}:{d+3}]"
                a(f"v_mfma_f32_16x16x32_bf16 v[{d}:{d+3}], a[{wr}:{wr+3}], v[{r+4*tt}:{r+4*tt+3}], {c}")
    stamp(a, 1, st)
    lab = f"{uid}_pf"
    a(f"s_cmp_eq_u32 s{S_PEND}, 0")
    a(f"s_cbranch_scc1 {lab}")
    a("s_waitcnt vmcnt(0)")
    a(f"v_mov_b32 v21, 1")
    a(f"s_sub_u32 s{S_TMP}, s{S_HFO}, 128")
    a("s_mov_b64 exec, 1")
    a(f"buffer_store_dword v21, v{V_Z}, {WS}, s{S_TMP} offen sc1")
    a("s_mov_b64 exec, -1")
    a(f"s_mov_b32 s{S_PEND}, 0")
    a.label(lab)
    a.nops(4)
    for tt in range(2):
        mq = MSG + 4 * tt
        A0, A1 = ACC + 4*tt, ACC + 8 + 4*tt
        a(f"v_cvt_pk_bf16_f32 v{mq}, v{A0}, v{A0+1}")
        a(f"v_cvt_pk_bf16_f32 v{mq+1}, v{A0+2}, v{A0+3}")
        a(f"v_cvt_pk_bf16_f32 v{mq+2}, v{A1}, v{A1+1}")
        a(f"v_cvt_pk_bf16_f32 v{mq+3}, v{A1+2}, v{A1+3}")
        a(f"v_bfi_b32 v{mq}, 1, s{S_TAG}, v{mq}")
        a(f"s_add_u32 s{S_TMP}, s{S_INS}, {tt * 16 * 8192}")
        a(f"buffer_store_dwordx4 v[{mq}:{mq+3}], v{V_PST}, {WS}, s{S_TMP} offen {stf}")
    lab = f"{uid}_pre"
    a(f"s_mov_b32 s{S_PRE}, 0")
    a(f"s_cmp_eq_u32 s{S_S}, 63")
    a(f"s_cbranch_scc1 {lab}")
    a("s_waitcnt vmcnt(2)")
    a("v_cmp_eq_u32 vcc, 0, v20")
    a(f"s_cbranch_vccnz {lab}")
    a(f"s_sub_u32 s{S_TMP+2}, 32768, s{S_BUF}")
    dma_o(a, S_TMP + 2)
    a(f"s_mov_b32 s{S_PRE}, 1")
    a("s_waitcnt vmcnt(8)")
    a(f"s_branch {lab}_b")
    a.label(lab)
    a("s_waitcnt vmcnt(0)")
    a.label(lab + "_b")
    stamp(a, 2, st)
    def both():
        a(f"buffer_load_dwordx4 v[{INA}:{INA+3}], v{V_INR}, {WS}, s{S_INS} offen {ldf}")
        a(f"s_add_u32 s{S_TMP}, s{S_INS}, 4096")
        a(f"buffer_load_dwordx4 v[{INB}:{INB+3}], v{V_INR}, {WS}, s{S_TMP} offen {ldf}")
    lab = f"{uid}_in"
    both()
    a("s_waitcnt vmcnt(0)")
    a.label(lab)
    a(f"v_bitop3_b32 v21, v{INA}, v{INB}, s{S_TAG} bitop3:0x7E")
    a(f"v_and_b32 v21, 1, v21")
    a("v_cmp_ne_u32 vcc, 0, v21")
    a(f"s_cbranch_vccz {lab}_ok")
    a(f"s_sub_u32 s{S_TMO}, s{S_TMO}, 1")
    a(f"s_cbranch_scc1 {lab}_ok")
    a("s_mov_b64 exec, vcc")
    both()
    a("s_waitcnt vmcnt(0)")
    a(f"s_branch {lab}")
    a.label(lab + "_ok")
    a("s_mov_b64 exec, -1")
    a.nops(4)
    a(f"v_mfma_f32_16x16x32_bf16 v[{RD}:{RD+3}], v[{INA}:{INA+3}], v[{SEL}:{SEL+3}], 0")
    a(f"v_mfma_f32_16x16x32_bf16 v[{RD}:{RD+3}], v[{INB}:{INB+3}], v[{SEL}:{SEL+3}], v[{RD}:{RD+3}]")
    a.nops(8)
    a(f"s_mov_b64 exec, s[{S_LO8}:{S_LO8+1}]")
    for r in range(4):
        a(f"ds_write_b32 v{V_YW}, v{RD+r} offset:{32*r}")
    a("s_mov_b64 exec, -1")
    a("s_waitcnt lgkmcnt(0)")
    a("s_barrier")
    stamp(a, 3, st)
    fin = f"{uid}_fin"
    a(f"s_cmp_lg_u32 s{S_W}, 0")
    a(f"s_cbranch_scc1 {fin}")
    a(f"ds_read_b128 v[{Y_}:{Y_+3}], v{V_YR}")
    a(f"ds_read_b128 v[{Y_+4}:{Y_+7}], v{V_YR} offset:16")
    a("s_waitcnt lgkmcnt(0)")
    row_finish(a, Y_, RES, TT, with_ln=(layer == 0))
    if layer == 0:
        a(f"buffer_store_dwordx4 v[{RES}:{RES+3}], v{V_L16}, {WS}, s{S_XOUT} offen sc1")
        a(f"buffer_store_dwordx4 v[{TT}:{TT+3}], v{V_L16}, {WS}, s{S_HOUT} offen sc1")
        a(f"s_cmp_lg_u32 s{S_PRE}, 0")
        a(f"s_cbranch_scc1 {fin}_defer")
        a("s_waitcnt vmcnt(0)")
        a(f"v_mov_b32 v21, 1")
        a("s_mov_b64 exec, 1")
        a(f"buffer_store_dword v21, v{V_Z}, {WS}, s{S_HFO} offen sc1")
        a("s_mov_b64 exec, -1")
        a(f"s_branch {fin}")
        a.label(fin + "_defer")
        a(f"s_mov_b32 s{S_PEND}, 1")
    else:
        a(f"s_lshl_b32 s{S_TMP}, s{S_S}, 15")
        a(f"s_lshl_b32 s{S_TMP+1}, s{S_H}, 10")
        a(f"s_add_u32 s{S_TMP}, s{S_TMP}, s{S_TMP+1}")
        a(f"buffer_store_dwordx4 v[{RES}:{RES+3}], v{V_L16}, s[{S_OUT}:{S_OUT+3}], s{S_TMP} offen")
    a.label(fin)
    stamp(a, 4, st)
    a(f"s_cmp_eq_u32 s{S_S}, 63")
    a(f"s_cbranch_scc1 {uid}_end")
    a(f"s_cmp_lg_u32 s{S_PRE}, 0")
    a(f"s_cbranch_scc1 {uid}_have")
    flag_wait(a, 20, V_OF, S_OFO, uid + "1")
    a(f"s_sub_u32 s{S_TMP+2}, 32768, s{S_BUF}")
    dma_o(a, S_TMP + 2)
    a("s_waitcnt vmcnt(0)")
    a(f"s_branch {uid}_go")
    a.label(f"{uid}_have")
    a.label(f"{uid}_go")
    a(f"s_sub_u32 s{S_TMP+2}, 32768, s{S_BUF}")
    a(f"s_sub_u32 s{S_TMP}, s{S_TMP+2}, s{S_BUF}")
    a(f"v_add_u32 v{V_XRD}, s{S_TMP}, v{V_XRD}")
    a(f"s_mov_b32 s{S_BUF}, s{S_TMP+2}")
    a(f"s_add_u32 s{S_S}, s{S_S}, 1")
    for sreg in (S_XIN, S_XOUT, S_HOUT):
        a(f"s_add_u32 s{sreg}, s{sreg}, 32768")
    a(f"s_add_u32 s{S_HFO}, s{S_HFO}, 128")
    a("s_barrier")
    if st:
        stamp(a, 5); stamp(a, 6); stamp(a, 7); stamp(a, 8); stamps_accumulate(a)
    a(f"s_branch {uid}_item")
    a.label(f"{uid}_end")
    a("s_waitcnt vmcnt(0)")
    if layer == 0:
        pass
    if st: stamps_store(a)
```

```python
from common import *

L_WO   = 0
L_SM   = 131072
L_MEM  = L_SM
L_KX   = L_SM + 8192
L_VX   = L_SM + 16384
L_Q    = L_SM + 24576
L_K    = L_Q + 2304
L_O    = L_K + 2304
L_SEL  = L_O + 2048
assert L_SEL + 1024 <= 163840
QS = 288

V_L16, V_WO0, V_WO1, V_QW, V_QR, V_KR, V_OW, V_VXR = 1, 2, 3, 4, 5, 6, 7, 8
V_IDX, V_MP, V_MW, V_PST, V_INR, V_PUB, V_SH, V_KMS, V_VMS, V_TF, V_KRO = 9, 10, 11, 12, 13, 14, 15, 16, 17, 18, 19
V_T = 20
A_MEM = 24
ACC_Q0, ACC_Q1, ACC_K0, ACC_K1, ACC_V0, ACC_V1 = 56, 60, 64, 68, 72, 76
Q_OP = 80
KX_OP = 96
WQ, WK = 0, 128
WV = 128
S_S, S_MEMS, S_TAG = 16, 17, 18
S_IN0 = 20
S_PS0 = 24
S_HI8, S_LO8, S_PUBM = 28, 30, 32
S_KXO, S_VXO, S_KMO, S_TFO = 34, 35, 36, 38
S_C = 40
S_PUBS, S_RSTS = 41, 42
S_TMP = 44
S_PB0 = 76
S_INB = 80
S_TFOK = 82
S_NDUP = 96
S_RINGB = 81
S_STAMP = 50
S_ACC = 68

def smf(a, acc, aop, wfile, wreg):
    w = f"a[{wreg}:{wreg+7}]" if wfile == 'a' else f"v[{wreg}:{wreg+7}]"
    a(f"v_smfmac_f32_16x16x64_bf16 v[{acc}:{acc+3}], v[{aop}:{aop+3}], {w}, v{V_IDX}")

def timeout_check(a, lab_fail_to):
    a(f"s_sub_u32 s{S_TMO}, s{S_TMO}, 1")
    a(f"s_cbranch_scc1 {lab_fail_to}")

def role_R_prologue(a):
    a.c("===== R prologue =====")
    load_qkv_weights(a, [(KA_WQ, 'a', WQ), (KA_WK, 'a', WK), (KA_WV, 'v', WV)], tmp=24)
    srd_from_kernarg(a, S_T0, KA_WO, H * DH * D * 2)
    a(f"v_lshlrev_b32 v24, 4, v0")
    a(f"s_lshl_b32 s16, s{S_H}, 17")
    a(f"s_lshl_b32 s17, s{S_W}, 15")
    a(f"s_add_u32 s16, s16, s17")
    a(f"s_add_u32 s17, s17, 32768")
    for j in range(32):
        key = (j & 3) + 4 * ((j >> 3) & 1)
        a(f"v_xor_b32 v25, {key << 5}, v24")
        a(f"s_mov_b32 m0, s17")
        a(f"s_add_u32 s17, s17, 1024")
        a(f"buffer_load_dwordx4 v25, s[{S_T0}:{S_T0+3}], s16 offen lds")
        a(f"s_add_u32 s16, s16, 1024")
    a("v_lshrrev_b32 v26, 4, v0")
    a("v_bfe_u32 v27, v0, 2, 2")
    a("v_lshl_add_u32 v28, v26, 3, v27")
    a("v_lshlrev_b32 v28, 10, v28")
    a("v_and_b32 v26, 1, v26")
    a("v_lshl_add_u32 v27, v26, 2, v27")
    a("v_lshl_add_u32 v28, v27, 5, v28")
    a("v_and_b32 v26, 3, v0")
    a("v_lshl_add_u32 v28, v26, 3, v28")
    a(f"s_lshl_b32 s16, s{S_W}, 8")
    a("v_add_u32 v28, s16, v28")
    a("v_add_u32 v28, 0x8000, v28")
    a(f"s_lshl_b32 s16, s{S_W}, 13")
    a("v_lshlrev_b32 v29, 4, v0")
    a("v_add_u32 v29, s16, v29")
    for tp in range(8):
        a(f"s_add_u32 s16, s{S_H}, {tp >> 2}")
        a(f"s_and_b32 s16, s16, 1")
        a(f"s_lshl_b32 s16, s16, 2")
        a(f"s_or_b32 s16, s16, {tp & 3}")
        a(f"s_lshl_b32 s{24 + tp}, s16, 5")
    a("s_waitcnt vmcnt(0)")
    a("s_barrier")
    for c in range(4):
        for tt in range(8):
            a(f"v_xor_b32 v30, s{24 + tt}, v28")
            for p in range(2):
                r = 32 + tt * 4 + 2 * p
                a(f"ds_read_b64_tr_b16 v[{r}:{r+1}], v30 offset:{p * 4096}")
        a("s_waitcnt lgkmcnt(0)")
        for tt in range(8):
            r = 32 + tt * 4
            a(f"ds_write_b128 v29, v[{r}:{r+3}] offset:{tt * 1024}")
        a("v_add_u32 v28, 0x8000, v28")
        a("v_add_u32 v29, 0x8000, v29")
        a("s_waitcnt lgkmcnt(0)")
        a("s_barrier")
    a.c("lane constants")
    n, g, t, u = 24, 25, 26, 27
    a(f"v_and_b32 v{n}, 15, v0")
    a(f"v_lshrrev_b32 v{g}, 4, v0")
    a(f"v_lshlrev_b32 v{V_L16}, 4, v0")
    a(f"s_lshl_b32 s16, s{S_W}, 13")
    a(f"v_add_u32 v{V_WO0}, s16, v{V_L16}")
    a(f"v_add_u32 v{V_WO1}, 0x10000, v{V_WO0}")
    a(f"s_lshl_b32 s16, s{S_W}, 11")
    a(f"v_add_u32 v{V_MP}, s16, v{V_L16}")
    a(f"v_add_u32 v{V_MW}, {L_MEM}, v{V_MP}")
    a(f"v_add_u32 v{V_VXR}, {L_VX}, v{V_MP}")
    a(f"s_lshl_b32 s16, s{S_W}, 10")
    a(f"v_add_u32 v{V_KMS}, s16, v{V_L16}")
    a(f"v_add_u32 v{V_L16}, {L_SM}, v{V_L16}")
    a(f"v_mul_u32_u24 v{V_QW}, {QS}, v{g}")
    a(f"v_lshrrev_b32 v{t}, 2, v{n}")
    a(f"v_lshl_add_u32 v{V_QW}, v{t}, 4, v{V_QW}")
    a(f"v_and_b32 v{t}, 3, v{n}")
    a(f"v_lshl_add_u32 v{V_QW}, v{t}, 1, v{V_QW}")
    a(f"s_lshl_b32 s16, s{S_W}, 6")
    a(f"s_add_u32 s16, s16, {L_Q}")
    a(f"v_add_u32 v{V_QW}, s16, v{V_QW}")
    a(f"v_and_b32 v{t}, 7, v{n}")
    a(f"v_mul_u32_u24 v{V_QR}, {QS}, v{t}")
    a(f"v_lshl_add_u32 v{V_QR}, v{g}, 4, v{V_QR}")
    a(f"v_add_u32 v{V_QR}, {L_Q}, v{V_QR}")
    a(f"v_lshrrev_b32 v{t}, 2, v{n}")
    a(f"v_and_b32 v{u}, 1, v{n}")
    a(f"v_lshl_add_u32 v{t}, v{u}, 2, v{t}")
    a(f"v_mul_u32_u24 v{V_KR}, {QS}, v{t}")
    a(f"v_lshl_add_u32 v{V_KR}, v{g}, 4, v{V_KR}")
    a(f"v_add_u32 v{V_KR}, {L_K}, v{V_KR}")
    a(f"s_lshl_b32 s16, s{S_W}, 6")
    a(f"v_add_u32 v{V_KRO}, s16, v{V_KR}")
    a(f"v_lshrrev_b32 v{t}, 1, v{g}")
    a(f"s_and_b32 s16, s{S_W}, 1")
    a(f"s_lshl_b32 s16, s16, 1")
    a(f"v_add_u32 v{t}, s16, v{t}")
    a(f"v_lshlrev_b32 v{t}, 4, v{t}")
    a(f"v_and_b32 v{u}, 3, v{n}")
    a(f"v_lshl_add_u32 v{t}, v{u}, 2, v{t}")
    a(f"v_lshrrev_b32 v{u}, 2, v{n}")
    a(f"v_add_u32 v{t}, v{t}, v{u}")
    a(f"v_lshlrev_b32 v{V_OW}, 4, v{t}")
    a(f"v_and_b32 v{u}, 1, v{g}")
    a(f"v_lshl_add_u32 v{V_OW}, v{u}, 3, v{V_OW}")
    a(f"s_lshr_b32 s16, s{S_W}, 1")
    a(f"s_lshl_b32 s16, s16, 10")
    a(f"s_add_u32 s16, s16, {L_O}")
    a(f"v_add_u32 v{V_OW}, s16, v{V_OW}")
    a(f"v_bfe_u32 v{t}, v{n}, 1, 1")
    a(f"v_mul_u32_u24 v{t}, 0xAAAA, v{t}")
    a(f"v_add_u32 v{V_IDX}, 0x4444, v{t}")
    a(f"v_lshrrev_b32 v{t}, 3, v{n}")
    a(f"v_lshlrev_b32 v{V_SH}, 4, v{t}")
    a(f"s_lshl_b32 s16, s{S_W}, 3")
    a(f"v_add_u32 v{t}, s16, v{g}")
    a(f"v_lshlrev_b32 v{V_PST}, 13, v{t}")
    a(f"v_lshl_add_u32 v{V_PST}, v{n}, 4, v{V_PST}")
    a(f"s_lshr_b32 s16, s{S_H}, 1")
    a(f"s_lshl_b32 s16, s16, 8")
    a(f"v_add_u32 v{V_PST}, s16, v{V_PST}")
    for k in range(2):
        a(f"s_add_u32 s16, s{S_H}, {k}")
        a(f"s_and_b32 s16, s16, 1")
        a(f"s_lshl_b32 s16, s16, 15")
        a(f"s_add_u32 s{S_PB0+k}, s16, {k*4096}")
    a(f"v_lshrrev_b32 v{t}, 2, v{n}")
    a(f"v_lshl_add_u32 v{t}, v{g}, 2, v{t}")
    a(f"v_lshlrev_b32 v{V_INR}, 8, v{t}")
    a(f"v_and_b32 v{t}, 3, v{n}")
    a(f"v_lshl_add_u32 v{V_INR}, v{t}, 4, v{V_INR}")
    a(f"s_lshl_b32 s16, s{S_H}, 13")
    a(f"s_lshl_b32 s17, s{S_W}, 6")
    a(f"s_add_u32 s16, s16, s17")
    a(f"v_add_u32 v{V_INR}, s16, v{V_INR}")
    a(f"s_lshr_b32 s16, s{S_H}, 2")
    a(f"s_lshl_b32 s16, s16, 6")
    a(f"s_lshl_b32 s17, s{S_W}, 2")
    a(f"s_add_u32 s16, s16, s17")
    a(f"v_lshrrev_b32 v{t}, 1, v{n}")
    a(f"v_lshl_add_u32 v{t}, v{t}, 4, v{g}")
    a(f"v_add_u32 v{t}, s16, v{t}")
    a(f"s_and_b32 s16, s{S_H}, 3")
    a(f"s_lshl_b32 s16, s16, 2")
    a(f"v_and_b32 v{u}, 1, v{n}")
    a(f"v_add_u32 v{u}, s16, v{u}")
    a(f"v_bfe_u32 v20, v{t}, 1, 1")
    a(f"v_lshl_add_u32 v{u}, v20, 1, v{u}")
    a(f"v_bfe_u32 v20, v{t}, 4, 2")
    a(f"v_lshl_add_u32 v{u}, v20, 4, v{u}")
    a(f"v_lshlrev_b32 v{V_PUB}, 4, v{u}")
    a(f"v_bfe_u32 v20, v{t}, 2, 2")
    a(f"v_lshl_add_u32 v{V_PUB}, v20, 2, v{V_PUB}")
    a(f"v_lshrrev_b32 v20, 6, v{t}")
    a(f"v_and_b32 v20, 7, v20")
    a(f"v_lshl_add_u32 v{V_PUB}, v20, 10, v{V_PUB}")
    for r in range(4):
        a(f"v_mov_b32 v{32+r}, 0")
        a(f"v_cmp_eq_u32 vcc, {2*r}, v{n}")
        a(f"v_mov_b32 v20, 0x3f80")
        a(f"s_nop 0")
        a(f"v_cndmask_b32 v{32+r}, v{32+r}, v20, vcc")
        a(f"v_cmp_eq_u32 vcc, {2*r+1}, v{n}")
        a(f"v_mov_b32 v20, 0x3f800000")
        a(f"s_nop 0")
        a(f"v_cndmask_b32 v{32+r}, v{32+r}, v20, vcc")
    a(f"ds_write_b128 v{V_L16}, v[32:35] offset:{L_SEL - L_SM}")
    a(f"s_lshl_b32 s16, s{S_H}, 4")
    a(f"v_and_b32 v{t}, 3, v0")
    a(f"v_lshlrev_b32 v{t}, 2, v{t}")
    a(f"v_add_u32 v{V_TF}, s16, v{t}")
    a(f"s_mov_b32 s{S_HI8}, 0xFF00FF00")
    a(f"s_mov_b32 s{S_HI8+1}, 0xFF00FF00")
    a(f"s_mov_b32 s{S_LO8}, 0x00FF00FF")
    a(f"s_mov_b32 s{S_LO8+1}, 0x00FF00FF")
    a(f"s_mov_b32 s{S_PUBM}, 0x000000FF")
    a(f"s_mov_b32 s{S_PUBM+1}, 0x000000FF")
    a(f"s_mov_b32 s{S_NDUP}, 0x33333333")
    a(f"s_mov_b32 s{S_NDUP+1}, 0x33333333")
    a(f"s_mov_b32 s{S_C}, 0x3e0293ee")
    srd_from_kernarg(a, S_T0, KA_MEM0, M * D * 2)
    a(f"v_lshrrev_b32 v{t}, 2, v{n}")
    a(f"v_and_b32 v{u}, 1, v{n}")
    a(f"v_lshl_add_u32 v{t}, v{u}, 2, v{t}")
    a(f"v_lshlrev_b32 v{t}, 10, v{t}")
    a(f"v_lshl_add_u32 v{t}, v{g}, 5, v{t}")
    a(f"v_bfe_u32 v{u}, v{n}, 1, 1")
    a(f"v_lshl_add_u32 v{t}, v{u}, 2, v{t}")
    a(f"s_lshl_b32 s16, s{S_W}, 8")
    a(f"v_add_u32 v{t}, s16, v{t}")
    for k in range(2):
        for p in range(4):
            a(f"buffer_load_dword v{32 + 4*k + p}, v{t}, s[{S_T0}:{S_T0+3}], 0 offen offset:{128*k + 8*p}")
    a("s_waitcnt vmcnt(0)")
    a(f"ds_write_b128 v{V_MW}, v[32:35]")
    a(f"ds_write_b128 v{V_MW}, v[36:39] offset:1024")
    a(f"s_mul_i32 s{S_KXO}, s{S_L}, {KX_L}")
    a(f"s_lshl_b32 s16, s{S_H}, 13")
    a(f"s_add_u32 s{S_KXO}, s{S_KXO}, s16")
    a(f"s_add_u32 s{S_VXO}, s{S_KXO}, {VX}")
    a(f"s_add_u32 s{S_KXO}, s{S_KXO}, {KX}")
    a(f"s_mul_i32 s{S_KMO}, s{S_L}, {KM_L}")
    a(f"s_lshl_b32 s16, s{S_H}, 12")
    a(f"s_add_u32 s{S_KMO}, s{S_KMO}, s16")
    a(f"s_add_u32 s{S_KMO}, s{S_KMO}, {KM}")
    a(f"s_mul_i32 s{S_TFO}, s{S_L}, {TF_L}")
    a(f"s_add_u32 s{S_TFO}, s{S_TFO}, {TF}")
    a(f"s_mul_i32 s{S_INB}, s{S_L}, {INBOX_L}")
    a(f"s_add_u32 s{S_INB}, s{S_INB}, {INBOX}")
    a(f"s_mul_i32 s{S_RINGB}, s{S_L}, {MEMRING_L}")
    a(f"s_add_u32 s{S_RINGB}, s{S_RINGB}, {MEMRING}")
    a(f"s_mov_b32 s{S_S}, 0")

def wait_flag_T(a, uid):
    lab = f"R_tf_{uid}"
    a.label(lab)
    a(f"buffer_load_dword v20, v{V_TF}, s[{S_WS}:{S_WS+3}], s{S_TFO} offen sc1")
    a("s_waitcnt vmcnt(0)")
    a("v_cmp_eq_u32 vcc, 0, v20")
    a(f"s_cbranch_vccz {lab}_ok")
    timeout_check(a, lab + "_ok")
    a(f"s_branch {lab}")
    a.label(lab + "_ok")

def dma_kx(a):
    a(f"s_lshl_b32 s{S_TMP}, s{S_W}, 11")
    a(f"s_add_u32 m0, s{S_TMP}, {L_KX}")
    a("s_nop 0")
    a(f"buffer_load_dwordx4 v{V_MP}, s[{S_WS}:{S_WS+3}], s{S_KXO} offen sc1 lds")
    a(f"buffer_load_dwordx4 v{V_MP}, s[{S_WS}:{S_WS+3}], s{S_KXO} offen offset:1024 sc1 lds")
def dma_vx(a):
    a(f"s_lshl_b32 s{S_TMP}, s{S_W}, 11")
    a(f"s_add_u32 m0, s{S_TMP}, {L_VX}")
    a("s_nop 0")
    a(f"buffer_load_dwordx4 v{V_MP}, s[{S_WS}:{S_WS+3}], s{S_VXO} offen sc1 lds")
    a(f"buffer_load_dwordx4 v{V_MP}, s[{S_WS}:{S_WS+3}], s{S_VXO} offen offset:1024 sc1 lds")

REALTIME = False
NOSTREAM = False
BAR = set()
SKIP = set()
HOTKV = False
HOP1_DEPTH = 1
HOP2_DEPTH = 1
HOP2_GATE = True
def stamp(a, i, on):
    if on:
        a(f"{'s_memrealtime' if REALTIME else 's_memtime'} s[{S_STAMP+2*i}:{S_STAMP+2*i+1}]")


def step_scalars(a):
    a(f"s_and_b32 s{S_TMP}, s{S_S}, 1")
    a(f"s_mul_i32 s{S_TMP}, s{S_TMP}, {INBOX_SLOT}")
    a(f"s_add_u32 s{S_TMP}, s{S_TMP}, s{S_INB}")
    for k in range(2):
        a(f"s_add_u32 s{S_PS0+k}, s{S_TMP}, s{S_PB0+k}")
        a(f"s_add_u32 s{S_IN0+k}, s{S_TMP}, {k*4096}")
    a(f"s_bfe_u32 s{S_TAG}, s{S_S}, 0x10001")
def ring_scalars(a):
    a(f"s_add_u32 s{S_TMP}, s{S_S}, 1")
    a(f"s_and_b32 s{S_TMP}, s{S_TMP}, 3")
    a(f"s_lshl_b32 s{S_TMP}, s{S_TMP}, 13")
    a(f"s_add_u32 s{S_PUBS}, s{S_TMP}, s{S_RINGB}")
    a(f"s_add_u32 s{S_TMP}, s{S_S}, 3")
    a(f"s_and_b32 s{S_TMP}, s{S_TMP}, 3")
    a(f"s_lshl_b32 s{S_TMP}, s{S_TMP}, 13")
    a(f"s_add_u32 s{S_RSTS}, s{S_TMP}, s{S_RINGB}")

def role_R_main(a, local=True, stamps=False, uid="R", nodma=False, nopub=False, probe=False, trace=False, ldf=None):
    LD = ldf if ldf is not None else ('nt' if local else 'sc1')
    st = "" if local else "sc1"
    WS = f"s[{S_WS}:{S_WS+3}]"
    if stamps:
        for i in range(8):
            a(f"s_mov_b32 s{S_ACC+i}, 0")
        for i in range(84, 89):
            a(f"s_mov_b32 s{i}, 0")
    wait_flag_T(a, uid + "first")
    dma_kx(a)
    dma_vx(a)
    a(f"s_add_u32 s{S_KXO}, s{S_KXO}, {32*8192}")
    a(f"s_add_u32 s{S_VXO}, s{S_VXO}, {32*8192}")
    a(f"s_add_u32 s{S_TFO}, s{S_TFO}, {32*16}")
    a(f"buffer_load_dword v22, v{V_TF}, s[{S_WS}:{S_WS+3}], s{S_TFO} offen sc1")
    for r in range(ACC_Q0, ACC_V1 + 4, 2):
        a(f"v_mov_b64 v[{r}:{r+1}], 0")
    step_scalars(a)
    a("s_waitcnt vmcnt(0) lgkmcnt(0)")
    a("s_barrier")
    a.label(f"{uid}_step")
    a.lg = []; a.vm = []
    stamp(a, 0, stamps and not probe)
    a.c("---- P1: q,k projection")
    for ks in range(8):
        a.ds(f"ds_read_b128 v[{A_MEM+4*ks}:{A_MEM+4*ks+3}], v{V_L16} offset:{L_MEM-L_SM + ks*1024}", f"A{ks}")
    for ks in range(8):
        a.ds_wait(f"A{ks}")
        A = A_MEM + 4 * ks
        smf(a, ACC_Q0, A, 'a', WQ + 0 * 64 + ks * 8)
        smf(a, ACC_K0, A, 'a', WK + 0 * 64 + ks * 8)
        a.ds(f"ds_read_b128 v[{KX_OP+4*ks}:{KX_OP+4*ks+3}], v{V_L16} offset:{L_KX-L_SM + ks*1024}", f"KX{ks}")
        smf(a, ACC_Q1, A, 'a', WQ + 1 * 64 + ks * 8)
        smf(a, ACC_K1, A, 'a', WK + 1 * 64 + ks * 8)
    stamp(a, 1, stamps and not probe)
    a.c("---- P2: q,k epilogue")
    def vstep(ks):
        A = A_MEM + 4 * ks
        smf(a, ACC_V0, A, 'v', WV + 0 * 64 + ks * 8)
        smf(a, ACC_V1, A, 'v', WV + 1 * 64 + ks * 8)
    for acc, base, t in ((ACC_Q0, 0, 0), (ACC_K0, L_K - L_Q, 0), (ACC_Q1, 0, 1), (ACC_K1, L_K - L_Q, 1)):
        a(f"v_pk_add_f32 v[{acc}:{acc+1}], v[{acc}:{acc+1}], v[{acc+2}:{acc+3}]")
        a(f"v_cvt_pk_bf16_f32 v{acc}, v{acc}, v{acc+1}")
        a.ds(f"ds_write_b16 v{V_QW}, v{acc} offset:{base + 8*t}", "qkw")
        a.ds(f"ds_write_b16_d16_hi v{V_QW}, v{acc} offset:{base + 8*t + 4*QS}", "qkw")
    vstep(0); vstep(1)
    a.ds_wait("qkw")
    a("s_barrier")
    stamp(a, 2, stamps and not probe)
    a.c("---- P3: scores")
    a("s_waitcnt vmcnt(3)")
    for ks in range(4):
        a.ds(f"ds_read_b128 v[{Q_OP+4*ks}:{Q_OP+4*ks+3}], v{V_QR} offset:{64*ks}", f"q{ks}")
    for ks in range(2):
        a.ds(f"ds_read_b128 v[{A_MEM+4*ks}:{A_MEM+4*ks+3}], v{V_KR} offset:{64*ks}", f"km{ks}")
    a.ds(f"ds_read_b128 v[{ACC_K1}:{ACC_K1+3}], v{V_KRO}", "kmo")
    vstep(2); vstep(3)
    for ks in range(2, 4):
        a.ds(f"ds_read_b128 v[{A_MEM+4*ks}:{A_MEM+4*ks+3}], v{V_KR} offset:{64*ks}", f"km{ks}")
    lab = f"{uid}_tf"
    a(f"s_cmp_eq_u32 s{S_S}, 63")
    a(f"s_cbranch_scc1 {lab}_skip")
    a("v_cmp_eq_u32 vcc, 0, v22")
    a(f"s_cbranch_vccz {lab}_ok")
    wait_flag_T(a, uid + "slow")
    a.label(lab + "_ok")
    if not nodma: dma_kx(a)
    a.label(lab + "_skip")
    a.vm = []
    X0, X1, MM = ACC_Q0, ACC_Q1, ACC_K0
    for ks in range(4):
        a.ds_wait(f"q{ks}")
        c0 = "0" if ks == 0 else f"v[{X0}:{X0+3}]"
        c1 = "0" if ks == 0 else f"v[{X1}:{X1+3}]"
        a(f"v_mfma_f32_16x16x32_bf16 v[{X0}:{X0+3}], v[{KX_OP+4*ks}:{KX_OP+4*ks+3}], v[{Q_OP+4*ks}:{Q_OP+4*ks+3}], {c0}")
        a(f"v_mfma_f32_16x16x32_bf16 v[{X1}:{X1+3}], v[{KX_OP+16+4*ks}:{KX_OP+16+4*ks+3}], v[{Q_OP+4*ks}:{Q_OP+4*ks+3}], {c1}")
    for ks in range(4):
        a.ds_wait(f"km{ks}")
        c = "0" if ks == 0 else f"v[{MM}:{MM+3}]"
        a(f"v_mfma_f32_16x16x32_bf16 v[{MM}:{MM+3}], v[{A_MEM+4*ks}:{A_MEM+4*ks+3}], v[{Q_OP+4*ks}:{Q_OP+4*ks+3}], {c}")
    a("s_waitcnt vmcnt(3)")
    for t in range(2):
        for hh in range(2):
            r = KX_OP + 8 * t + 4 * hh
            a.ds(f"ds_read_b64 v[{r}:{r+1}], v{V_VXR} offset:{1024*t + 8*hh}", "vx")
    vstep(4)
    SL = [112, 120, 80, 88, 96, 104, 40, 48]
    def wo_read(i, slot, halves=(0, 1)):
        tt, ks = i // 2, i % 2
        vb = V_WO0 if ks == 0 else V_WO1
        for half in halves:
            r = SL[slot] + 4 * half
            a.ds(f"ds_read_b128 v[{r}:{r+3}], v{vb} offset:{half*32768 + tt*1024}", f"F{i}")
    stamp(a, 3, stamps and not probe)
    a.c("---- softmax")
    for r in range(4):
        a(f"v_cndmask_b32 v{X0+r}, v{X0+r}, v{X1+r}, s[{S_HI8}:{S_HI8+1}]")
    def vhalf(ks, t):
        A = A_MEM + 4 * ks
        smf(a, ACC_V0 if t == 0 else ACC_V1, A, 'v', WV + t * 64 + ks * 8)
    a(f"v_cndmask_b32 v{MM}, v{MM}, v{MM+1}, s[{S_HI8}:{S_HI8+1}]")
    a(f"v_max3_f32 v20, v{X0}, v{X0+1}, v{X0+2}")
    a(f"v_max3_f32 v20, v20, v{X0+3}, v{MM}")
    vhalf(5, 0); a("s_nop 0")
    a("v_max_f32_dpp v20, v20, v20 row_ror:8 row_mask:0xf bank_mask:0xf")
    a("v_mov_b32 v21, v20")
    vhalf(5, 1); a("s_nop 0")
    a("v_permlane16_swap_b32 v20, v21")
    a("v_max_f32 v20, v20, v21")
    a("v_mov_b32 v21, v20")
    vhalf(6, 0); a("s_nop 0")
    a("v_permlane32_swap_b32 v20, v21")
    a("v_max_f32 v20, v20, v21")
    a(f"v_mul_f32 v20, s{S_C}, v20")
    vhalf(6, 1)
    for i, r in enumerate((X0, X0+1, X0+2, X0+3, MM)):
        a(f"v_fma_f32 v{r}, v{r}, s{S_C}, -v20")
        if i == 1: vhalf(7, 0)
        if i == 3: vhalf(7, 1)
    ex = (X0, X0+1, X0+2, X0+3, MM)
    for i, r in enumerate(ex):
        a(f"v_exp_f32 v{r}, v{r}")
        if i < 4: wo_read(i, i, halves=(0,))
    for i in range(4): wo_read(i, i, halves=(1,))
    for t, acc in ((0, ACC_V0), (1, ACC_V1)):
        a(f"v_pk_add_f32 v[{acc}:{acc+1}], v[{acc}:{acc+1}], v[{acc+2}:{acc+3}]")
    P = X1
    a(f"v_cvt_pk_bf16_f32 v{P+2}, v{MM}, 0")
    a(f"v_cvt_pk_bf16_f32 v{P}, v{X0}, v{X0+1}")
    a(f"v_cvt_pk_bf16_f32 v{P+1}, v{X0+2}, v{X0+3}")
    a(f"v_mov_b32 v{P+3}, 0")
    a(f"v_lshlrev_b32 v{P+2}, v{V_SH}, v{P+2}")
    a.ds_wait("vx")
    for t, acc in ((0, ACC_V0), (1, ACC_V1)):
        r = KX_OP + 8 * t
        a(f"v_cvt_pk_bf16_f32 v{r+2}, v{acc}, v{acc+1}")
        a(f"v_cvt_pk_bf16_f32 v{r+6}, v{acc}, v{acc+1}")
    stamp(a, 4, stamps and not probe)
    a.c("---- PV")
    Dq = A_MEM
    a("s_nop 0")
    for t in range(2):
        for hh in range(2):
            r = KX_OP + 8 * t + 4 * hh
            d = Dq + 8 * t + 4 * hh
            a(f"v_mfma_f32_16x16x32_bf16 v[{d}:{d+3}], v[{r}:{r+3}], v[{P}:{P+3}], 0")
    a.ds_wait("kmo")
    a(f"s_mov_b64 vcc, s[{S_NDUP}:{S_NDUP+1}]")
    KQ = ACC_K1
    a(f"v_cndmask_b32_dpp v{KQ}, v{KX_OP+2}, v{KQ}, vcc row_shr:2 row_mask:0xf bank_mask:0xf")
    a(f"v_cndmask_b32_dpp v{KQ+1}, v{KX_OP+10}, v{KQ+1}, vcc row_shr:2 row_mask:0xf bank_mask:0xf")
    a(f"v_cndmask_b32 v{KQ+2}, v{KX_OP+2}, v{KQ+2}, vcc")
    a(f"v_cndmask_b32 v{KQ+3}, v{KX_OP+10}, v{KQ+3}, vcc")
    if not nopub: a.vmem(f"buffer_store_dwordx4 v[{KQ}:{KQ+3}], v{V_KMS}, {WS}, s{S_KMO} offen sc1", "kms")
    a(f"s_cmp_eq_u32 s{S_S}, 63")
    a(f"s_cbranch_scc1 {uid}_last")
    a(f"v_add_f32 v20, v{X0}, v{X0+1}")
    a(f"v_add_f32 v21, v{X0+2}, v{X0+3}")
    a(f"v_add_f32 v20, v20, v{MM}")
    a(f"v_add_f32 v20, v20, v21")
    wo_read(6, 6)
    a("v_add_f32_dpp v20, v20, v20 row_ror:8 row_mask:0xf bank_mask:0xf")
    a("v_mov_b32 v21, v20")
    wo_read(7, 7)
    a("v_permlane16_swap_b32 v20, v21")
    a("v_add_f32 v20, v20, v21")
    a("v_mov_b32 v21, v20")
    wo_read(4, 4)
    a("v_permlane32_swap_b32 v20, v21")
    a("v_add_f32 v20, v20, v21")
    a("v_rcp_f32 v20, v20")
    wo_read(5, 5)
    for t in range(2):
        for r in range(4):
            d1 = Dq + 8 * t + r; d2 = d1 + 4
            a(f"v_add_f32_dpp v{d1}, v{d2}, v{d1} row_ror:8 row_mask:0xf bank_mask:0xf")
    a("v_mov_b32 v21, v20")
    for t in range(2):
        for r in (0, 2):
            d1 = Dq + 8 * t + r
            a(f"v_pk_mul_f32 v[{d1}:{d1+1}], v[{d1}:{d1+1}], v[20:21]")
    a(f"s_mov_b64 exec, s[{S_LO8}:{S_LO8+1}]")
    for t in range(2):
        for rp in range(2):
            d1 = Dq + 8 * t + 2 * rp
            a(f"v_cvt_pk_bf16_f32 v{d1}, v{d1}, v{d1+1}")
            a.ds(f"ds_write_b32 v{V_OW}, v{d1} offset:{4*t + 32*rp}", "ow")
    a("s_mov_b64 exec, -1")
    WACC = [56, 60, 64, 68, 72, 76, 24, 28]
    for r in range(56, 80, 2):
        a(f"v_mov_b64 v[{r}:{r+1}], 0")
    a.ds_wait("ow")
    a("s_barrier")
    stamp(a, 5, stamps and not probe)
    a.c("---- P5: output projection")
    OOP = 32
    for ks in range(2):
        a.ds(f"ds_read_b128 v[{OOP+4*ks}:{OOP+4*ks+3}], v{V_L16} offset:{L_O-L_SM + ks*1024}", f"o{ks}")
    for r in range(24, 32, 2):
        a(f"v_mov_b64 v[{r}:{r+1}], 0")
    a.ds_wait("o1")
    def wo_epi(stg):
        base = WACC[4*stg]
        for r in range(4):
            A_ = WACC[4*stg + r]
            a(f"v_pk_add_f32 v[{A_}:{A_+1}], v[{A_}:{A_+1}], v[{A_+2}:{A_+3}]")
        mq = MSG[stg]
        for r in range(4):
            A_ = WACC[4*stg + r]
            a(f"v_cvt_pk_bf16_f32 v{mq+r}, v{A_}, v{A_+1}")
        a(f"v_bfi_b32 v{mq}, 1, s{S_TAG}, v{mq}")
        a.vmem(f"buffer_store_dwordx4 v[{mq}:{mq+3}], v{V_PST}, {WS}, s{S_PS0+stg} offen {st}", "pst")
    MSG = [56, 72]
    for i in range(16):
        tt, ks = i // 2, i % 2
        slot = i % 8
        a.ds_wait(f"F{i}")
        smf(a, WACC[tt], OOP + 4 * ks, 'v', SL[slot])
        if i + 8 < 16 and not NOSTREAM:
            wo_read(i + 8, slot)
        if i == 9: wo_epi(0)
    SEL, RD = 80, 84
    mq = MSG[1]
    for r in range(3):
        A_ = WACC[4 + r]
        a(f"v_pk_add_f32 v[{A_}:{A_+1}], v[{A_}:{A_+1}], v[{A_+2}:{A_+3}]")
    for r in range(3):
        A_ = WACC[4 + r]
        a(f"v_cvt_pk_bf16_f32 v{mq+r}, v{A_}, v{A_+1}")
    a(f"v_bfi_b32 v{mq}, 1, s{S_TAG}, v{mq}")
    a.ds(f"ds_read_b128 v[{SEL}:{SEL+3}], v{V_L16} offset:{L_SEL - L_SM}", "sel")
    A_ = WACC[7]
    a(f"v_pk_add_f32 v[{A_}:{A_+1}], v[{A_}:{A_+1}], v[{A_+2}:{A_+3}]")
    a(f"v_cvt_pk_bf16_f32 v{mq+3}, v{A_}, v{A_+1}")
    a.vmem(f"buffer_store_dwordx4 v[{mq}:{mq+3}], v{V_PST}, {WS}, s{S_PS0+1} offen {st}", "pst")
    stamp(a, 0 if probe else 6, stamps)
    a.c("---- P6: reduce")
    INA, INB0, INB1 = 40, 44, 48
    def in_load(u, r):
        a(f"buffer_load_dwordx4 v[{r}:{r+3}], v{V_INR}, {WS}, s{S_IN0+u} offen {LD}")
    def tagtest(r):
        a(f"v_xor_b32 v20, s{S_TAG}, v{r}")
        a(f"v_and_b32 v20, 1, v20")
        a("v_cmp_ne_u32 vcc, 0, v20")
    ring_scalars(a)
    for r in range(ACC_Q0, ACC_V1 + 4, 2):
        a(f"v_mov_b64 v[{r}:{r+1}], 0")
    a("s_waitcnt vmcnt(0)")
    if "b1" in BAR: a("s_barrier")
    if probe: stamp(a, 1, True)
    lab = f"{uid}_in"
    def both(rA, rB):
        in_load(0, rA); in_load(1, rB)
    def test2(rA, rB):
        a(f"v_bitop3_b32 v20, v{rA}, v{rB}, s{S_TAG} bitop3:0x7E")
        a(f"v_and_b32 v20, 1, v20")
        a("v_cmp_ne_u32 vcc, 0, v20")
    def red(rA, rB):
        a(f"v_mfma_f32_16x16x32_bf16 v[{RD}:{RD+3}], v[{rA}:{rA+3}], v[{SEL}:{SEL+3}], 0")
        a(f"v_mfma_f32_16x16x32_bf16 v[{RD}:{RD+3}], v[{rB}:{rB+3}], v[{SEL}:{SEL+3}], v[{RD}:{RD+3}]")
    A0, B0, A1, B1 = 40, 44, 48, 52
    both(A0, B0)
    a.ds_wait("sel")
    if HOP1_DEPTH == 1:
        a("s_waitcnt vmcnt(0)")
        a.label(lab)
        test2(A0, B0)
        a(f"s_cbranch_vccz {lab}_ok0")
        timeout_check(a, lab + "_ok0")
        if probe: a(f"s_add_u32 s85, s85, 1")
        a("s_mov_b64 exec, vcc")
        both(A0, B0)
        a("s_waitcnt vmcnt(0)")
        a(f"s_branch {lab}")
        a.label(lab + "_ok0")
        a("s_mov_b64 exec, -1")
        a.nops(4)
        red(A0, B0)
    else:
        a.label(lab)
        both(A1, B1)
        a("s_waitcnt vmcnt(2)")
        test2(A0, B0)
        a(f"s_cbranch_vccz {lab}_ok0")
        timeout_check(a, lab + "_ok0")
        if probe: a(f"s_add_u32 s85, s85, 1")
        both(A0, B0)
        a("s_waitcnt vmcnt(2)")
        test2(A1, B1)
        a(f"s_cbranch_vccz {lab}_ok1")
        if probe: a(f"s_add_u32 s85, s85, 1")
        a(f"s_branch {lab}")
        a.label(lab + "_ok1")
        red(A1, B1)
        a(f"s_branch {lab}_done")
        a.label(lab + "_ok0")
        red(A0, B0)
        a.label(lab + "_done")
    if probe:
        stamp(a, 2, True); stamp(a, 3, True); stamp(a, 4, True); stamp(a, 5, True)
    a.vm = []
    a.nops(8)
    a(f"v_permlane32_swap_b32 v{RD}, v{RD+2}")
    a(f"v_permlane32_swap_b32 v{RD+1}, v{RD+3}")
    a(f"v_add_f32 v{RD}, v{RD}, v{RD+2}")
    a(f"v_add_f32 v{RD+1}, v{RD+1}, v{RD+3}")
    a("s_nop 1")
    a(f"v_permlane16_swap_b32 v{RD}, v{RD+1}")
    a(f"v_add_f32 v{RD}, v{RD}, v{RD+1}")
    a(f"v_mov_b32 v{RD+1}, v{RD}")
    a("s_nop 1")
    a(f"v_permlane16_swap_b32 v{RD}, v{RD+1}")
    a(f"v_cvt_pk_bf16_f32 v{RD}, v{RD}, v{RD+1}")
    a(f"s_mov_b64 exec, s[{S_PUBM}:{S_PUBM+1}]")
    a(f"buffer_store_dword v{RD}, v{V_PUB}, {WS}, s{S_PUBS} offen {st}")
    a("s_mov_b64 exec, -1")
    stamp(a, 6 if probe else 7, stamps)
    a.c("---- P0: receive mem(s+1)")
    MP0, MP1 = 80, 88
    lab = f"{uid}_mp"
    def mp_load(r):
        a(f"buffer_load_dwordx4 v[{r}:{r+3}], v{V_MP}, {WS}, s{S_PUBS} offen {LD}")
        a(f"buffer_load_dwordx4 v[{r+4}:{r+7}], v{V_MP}, {WS}, s{S_PUBS} offen offset:1024 {LD}")
    def mp_test(r):
        a(f"v_max3_u32 v20, v{r}, v{r+1}, v{r+2}")
        a(f"v_max3_u32 v21, v{r+3}, v{r+4}, v{r+5}")
        a(f"v_max3_u32 v20, v{r+6}, v{r+7}, v20")
        a(f"v_max_u32 v20, v20, v21")
        a("v_cmp_eq_u32 vcc, -1, v20")
    def mp_write(r):
        a(f"ds_write_b128 v{V_MW}, v[{r}:{r+3}]")
        a(f"ds_write_b128 v{V_MW}, v[{r+4}:{r+7}] offset:1024")
    a(f"s_add_u32 s{S_S}, s{S_S}, 1")
    a(f"s_add_u32 s{S_TFO}, s{S_TFO}, {32*16}")
    if not HOTKV: a(f"s_add_u32 s{S_KXO}, s{S_KXO}, {32*8192}")
    a(f"s_add_u32 s{S_KMO}, s{S_KMO}, {32*4096}")
    step_scalars(a)
    if HOP2_GATE: a("s_waitcnt vmcnt(0)")
    if "b2" in BAR: a("s_barrier")
    mp_load(MP0)
    if HOP2_DEPTH == 1:
        a("s_waitcnt vmcnt(0)")
        a.label(lab)
        mp_test(MP0)
        a(f"s_cbranch_vccz {lab}_ok0")
        timeout_check(a, lab + "_ok0")
        if probe: a(f"s_add_u32 s88, s88, 1")
        a("s_mov_b64 exec, vcc")
        mp_load(MP0)
        a("s_waitcnt vmcnt(0)")
        a(f"s_branch {lab}")
        a.label(lab + "_ok0")
        a("s_mov_b64 exec, -1")
        if probe: stamp(a, 7, True)
        mp_write(MP0)
    else:
        a.label(lab)
        mp_load(MP1)
        a("s_waitcnt vmcnt(2)")
        mp_test(MP0)
        a(f"s_cbranch_vccz {lab}_ok0")
        timeout_check(a, lab + "_ok0")
        if probe: a(f"s_add_u32 s88, s88, 1")
        mp_load(MP0)
        a("s_waitcnt vmcnt(2)")
        mp_test(MP1)
        a(f"s_cbranch_vccz {lab}_ok1")
        if probe: a(f"s_add_u32 s88, s88, 1")
        a(f"s_branch {lab}")
        a.label(lab + "_ok1")
        if probe: stamp(a, 7, True)
        mp_write(MP1)
        a(f"s_branch {lab}_done")
        a.label(lab + "_ok0")
        if probe: stamp(a, 7, True)
        mp_write(MP0)
        a.label(lab + "_done")
    a(f"buffer_load_dword v22, v{V_TF}, {WS}, s{S_TFO} offen sc1")
    if not nodma: dma_vx(a)
    if not HOTKV: a(f"s_add_u32 s{S_VXO}, s{S_VXO}, {32*8192}")
    a(f"v_mov_b32 v21, -1")
    a(f"s_mov_b64 exec, s[{S_PUBM}:{S_PUBM+1}]")
    a(f"buffer_store_dword v21, v{V_PUB}, {WS}, s{S_RSTS} offen {st}")
    a(f"s_mov_b64 exec, -1")
    a("s_waitcnt lgkmcnt(0)")
    a("s_barrier")
    if trace:
        a(f"s_memrealtime s[{S_STAMP+16}:{S_STAMP+17}]")
        a("s_memrealtime s[46:47]")
        a("s_waitcnt lgkmcnt(0)")
        skip = a.newlabel("trskip")
        a(f"s_cmp_lt_u32 s{S_S}, 20")
        a(f"s_cbranch_scc1 {skip}")
        a(f"s_cmp_ge_u32 s{S_S}, 28")
        a(f"s_cbranch_scc1 {skip}")
        a(f"s_lshl_b32 s{S_TMP}, s{S_H}, 2")
        a(f"s_add_u32 s{S_TMP}, s{S_TMP}, s{S_W}")
        a(f"s_lshl_b32 s{S_TMP}, s{S_TMP}, 3")
        a(f"s_add_u32 s{S_TMP}, s{S_TMP}, s{S_S}")
        a(f"s_sub_u32 s{S_TMP}, s{S_TMP}, 20")
        a(f"s_lshl_b32 s{S_TMP}, s{S_TMP}, 6")
        a(f"s_add_u32 s{S_TMP}, s{S_TMP}, {STAMP + 2*MB}")
        for i in range(9):
            a(f"v_mov_b32 v20, s{S_STAMP+2*i}")
            a(f"v_mov_b32 v21, {4*i}")
            a(f"buffer_store_dword v20, v21, {WS}, s{S_TMP} offen")
        a(f"v_mov_b32 v20, s46")
        a(f"v_mov_b32 v21, 36")
        a(f"buffer_store_dword v20, v21, {WS}, s{S_TMP} offen")
        a.label(skip)
    elif stamps:
        a(f"s_memtime s[{S_STAMP+16}:{S_STAMP+17}]")
        a("s_waitcnt lgkmcnt(0)")
        for i in range(8):
            a(f"s_sub_u32 s{S_TMP}, s{S_STAMP+2*i+2}, s{S_STAMP+2*i}")
            a(f"s_add_u32 s{S_ACC+i}, s{S_ACC+i}, s{S_TMP}")
    a(f"s_branch {uid}_step")
    a.label(f"{uid}_last")
    a("s_waitcnt vmcnt(0)")
    a(f"s_add_u32 s{S_KMO}, s{S_KMO}, {32*4096}")
    a(f"v_mov_b32 v20, 0")
    a(f"s_mov_b64 exec, 1")
    a(f"buffer_store_dword v20, v{V_KMS}, {WS}, s{S_KMO} offen sc1")
    a(f"s_mov_b64 exec, -1")
    a("s_waitcnt vmcnt(0)")
```

```python
from common import *

XS = 1056
XBUF = 32 * XS
V_XR, V_L16, V_KO0, V_KO1, V_VO, V_HF, V_FL, V_FLD = 1, 2, 3, 4, 5, 6, 7, 8
XR = 24
AK, AV, AQ = 56, 72, 88
TO = 104
WQ, WK, WV = 0, 128, 128
S_S, S_HIN, S_HFO, S_KXO, S_VXO, S_QXO, S_TFO, S_QFO, S_PRE, S_BUF, S_QPEND = 18, 19, 20, 21, 22, 23, 24, 25, 26, 27, 28
S_TMP = 44

def role_T_prologue(a):
    a.c("===== T prologue =====")
    load_qkv_weights(a, [(KA_WQ, 'a', WQ), (KA_WK, 'a', WK), (KA_WV, 'v', WV)], tmp=24)
    n, g, t = 24, 25, 26
    a(f"v_and_b32 v{n}, 15, v0")
    a(f"v_lshrrev_b32 v{g}, 4, v0")
    a(f"v_mul_u32_u24 v{V_XR}, {XS}, v{n}")
    a(f"v_lshl_add_u32 v{V_XR}, v{g}, 4, v{V_XR}")
    a(f"v_lshlrev_b32 v{V_L16}, 4, v0")
    a(f"s_lshl_b32 s16, s{S_W}, 10")
    a(f"v_add_u32 v{V_KO0}, s16, v{V_L16}")
    a(f"v_add_u32 v{V_KO1}, 4096, v{V_KO0}")
    a(f"s_lshl_b32 s16, s{S_W}, 11")
    a(f"v_add_u32 v{V_VO}, s16, v{V_L16}")
    a(f"v_and_b32 v{t}, 31, v0")
    a(f"v_lshlrev_b32 v{V_HF}, 2, v{t}")
    a(f"s_lshl_b32 s16, s{S_H}, 4")
    a(f"s_lshl_b32 s17, s{S_W}, 2")
    a(f"s_add_u32 s16, s16, s17")
    a(f"v_mov_b32 v{V_FL}, s16")
    a(f"s_lshl_b32 s16, s{S_L}, 1")
    a(f"s_add_u32 s16, s16, 1")
    a(f"s_mul_i32 s{S_HIN}, s16, {ROWS_J}")
    a(f"s_add_u32 s{S_HIN}, s{S_HIN}, {HB}")
    a(f"s_mul_i32 s{S_HFO}, s16, {HF_J}")
    a(f"s_add_u32 s{S_HFO}, s{S_HFO}, {HF}")
    a(f"s_mul_i32 s{S_KXO}, s{S_L}, {KX_L}")
    a(f"s_lshl_b32 s16, s{S_H}, 13")
    a(f"s_add_u32 s{S_KXO}, s{S_KXO}, s16")
    a(f"s_add_u32 s{S_VXO}, s{S_KXO}, {VX}")
    a(f"s_add_u32 s{S_QXO}, s{S_KXO}, {QX}")
    a(f"s_add_u32 s{S_KXO}, s{S_KXO}, {KX}")
    a(f"s_mul_i32 s{S_TFO}, s{S_L}, {TF_L}")
    a(f"s_add_u32 s{S_QFO}, s{S_TFO}, {QF}")
    a(f"s_add_u32 s{S_TFO}, s{S_TFO}, {TF}")
    a(f"s_mov_b32 s{S_S}, 0")
    a(f"s_mov_b32 s{S_BUF}, 0")
    a(f"s_mov_b32 s{S_QPEND}, 0")

def dma_rows(a, srow, sbuf, shift_rows=None):
    a(f"s_lshl_b32 s{S_TMP}, s{S_W}, 13")
    a(f"s_add_u32 s{S_TMP}, s{S_TMP}, s{srow}")
    a(f"s_mul_i32 s{S_TMP+1}, s{S_W}, {8*XS}")
    a(f"s_add_u32 s{S_TMP+1}, s{S_TMP+1}, s{sbuf}")
    for r in range(8):
        a(f"s_mov_b32 m0, s{S_TMP+1}")
        a(f"s_add_u32 s{S_TMP+1}, s{S_TMP+1}, {XS}")
        a(f"buffer_load_dwordx4 v{V_L16}, s[{S_WS}:{S_WS+3}], s{S_TMP} offen sc1 lds")
        a(f"s_add_u32 s{S_TMP}, s{S_TMP}, 1024")

def flag_store(a, soff):
    a(f"v_mov_b32 v{V_FLD}, 1")
    a("s_mov_b64 exec, 1")
    a(f"buffer_store_dword v{V_FLD}, v{V_FL}, s[{S_WS}:{S_WS+3}], s{soff} offen sc1")
    a("s_mov_b64 exec, -1")

def role_T_main(a, uid="T", st=False):
    if st: stamps_init(a)
    WS = f"s[{S_WS}:{S_WS+3}]"
    flag_wait(a, 20, V_HF, S_HFO, uid + "0")
    dma_rows(a, S_HIN, S_BUF)
    a("s_waitcnt vmcnt(0)")
    a("s_barrier")
    a.label(f"{uid}_item")
    a.lg = []; a.vm = []
    stamp(a, 0, st)
    a(f"s_add_u32 s{S_HFO}, s{S_HFO}, 128")
    a(f"s_add_u32 s{S_HIN}, s{S_HIN}, 32768")
    a(f"buffer_load_dword v20, v{V_HF}, {WS}, s{S_HFO} offen sc1")
    def xread(ks, slot):
        r = XR + 8 * slot
        a.ds(f"ds_read_b128 v[{r}:{r+3}], v{V_XR} offset:{64*ks}", f"x{ks}")
        a.ds(f"ds_read_b128 v[{r+4}:{r+7}], v{V_XR} offset:{16*XS + 64*ks}", f"x{ks}")
    def W(rf, base, t, ks):
        r = base + t * 64 + ks * 4
        return f"{rf}[{r}:{r+3}]"
    def mm(d, A, B, first):
        c = "0" if first else f"v[{d}:{d+3}]"
        a(f"v_mfma_f32_16x16x32_bf16 v[{d}:{d+3}], {A}, {B}, {c}")
    for ks in range(3): xread(ks, ks)
    for ks in range(16):
        if ks + 3 < 16: xread(ks + 3, (ks + 3) % 4)
        a.ds_wait(f"x{ks}")
        r = XR + 8 * (ks % 4)
        for t in range(2):
            for tt in range(2):
                mm(AK + 8*t + 4*tt, W('a', WK, t, ks), f"v[{r+4*tt}:{r+4*tt+3}]", ks == 0)
        for t in range(2):
            for tt in range(2):
                mm(AV + 8*t + 4*tt, f"v[{r+4*tt}:{r+4*tt+3}]", W('v', WV, t, ks), ks == 0)
        if ks == 10:
            lab = f"{uid}_qf"
            a(f"s_cmp_eq_u32 s{S_QPEND}, 0")
            a(f"s_cbranch_scc1 {lab}")
            a("s_waitcnt vmcnt(1)")
            a(f"s_sub_u32 s{S_TMP}, s{S_QFO}, {32*16}")
            flag_store(a, S_TMP)
            a.label(lab)
    stamp(a, 1, st)
    a.lg = []
    for ks in range(3): xread(ks, ks)
    def cvt4(dst, accA, accB):
        return [f"v_cvt_pk_bf16_f32 v{dst}, v{accA}, v{accA+1}", f"v_cvt_pk_bf16_f32 v{dst+1}, v{accA+2}, v{accA+3}",
                f"v_cvt_pk_bf16_f32 v{dst+2}, v{accB}, v{accB+1}", f"v_cvt_pk_bf16_f32 v{dst+3}, v{accB+2}, v{accB+3}"]
    epi = []
    for tt in range(2):
        epi += cvt4(TO + 4*tt, AK + 4*tt, AK + 8 + 4*tt)
        epi.append(f"buffer_store_dwordx4 v[{TO+4*tt}:{TO+4*tt+3}], v{V_KO0 if tt == 0 else V_KO1}, {WS}, s{S_KXO} offen sc1")
    for t in range(2):
        epi += cvt4(TO + 8 + 4*t, AV + 8*t, AV + 8*t + 4)
        epi.append(f"buffer_store_dwordx4 v[{TO+8+4*t}:{TO+8+4*t+3}], v{V_VO}, {WS}, s{S_VXO} offen offset:{1024*t} sc1")
    for ks in range(16):
        if ks + 3 < 16: xread(ks + 3, (ks + 3) % 4)
        a.ds_wait(f"x{ks}")
        r = XR + 8 * (ks % 4)
        k = 0
        for t in range(2):
            for tt in range(2):
                mm(AQ + 8*t + 4*tt, W('a', WQ, t, ks), f"v[{r+4*tt}:{r+4*tt+3}]", ks == 0)
                if ks >= 1 and epi:
                    a(epi.pop(0))
                    if epi and epi[0].startswith("buffer"): a(epi.pop(0))
        if ks == 6:
            assert not epi
            stamp(a, 2, st)
            lab = f"{uid}_pre"
            a(f"s_mov_b32 s{S_PRE}, 0")
            a(f"s_cmp_eq_u32 s{S_S}, 63")
            a(f"s_cbranch_scc1 {lab}")
            a("s_waitcnt vmcnt(4)")
            a("v_cmp_eq_u32 vcc, 0, v20")
            a(f"s_cbranch_vccnz {lab}")
            a(f"s_sub_u32 s{S_TMP+2}, {XBUF}, s{S_BUF}")
            dma_rows(a, S_HIN, S_TMP + 2)
            a(f"s_mov_b32 s{S_PRE}, 1")
            a.label(lab)
            stamp(a, 3, st)
        if ks == 14:
            stamp(a, 4, st)
            lab = f"{uid}_kvf"
            a(f"s_cmp_eq_u32 s{S_PRE}, 0")
            a(f"s_cbranch_scc1 {lab}_a")
            a("s_waitcnt vmcnt(8)")
            a(f"s_branch {lab}_b")
            a.label(lab + "_a")
            a("s_waitcnt vmcnt(0)")
            a.label(lab + "_b")
            flag_store(a, S_TFO)
            stamp(a, 5, st)
    a.nops(6)
    for tt in range(2):
        for ins in cvt4(TO + 4*tt, AQ + 4*tt, AQ + 8 + 4*tt): a(ins)
        a(f"buffer_store_dwordx4 v[{TO+4*tt}:{TO+4*tt+3}], v{V_KO0 if tt == 0 else V_KO1}, {WS}, s{S_QXO} offen sc1")
    stamp(a, 6, st)
    a(f"s_mov_b32 s{S_QPEND}, 1")
    a(f"s_cmp_eq_u32 s{S_S}, 63")
    a(f"s_cbranch_scc1 {uid}_end")
    a(f"s_cmp_lg_u32 s{S_PRE}, 0")
    a(f"s_cbranch_scc1 {uid}_have")
    flag_wait(a, 20, V_HF, S_HFO, uid + "1")
    a(f"s_sub_u32 s{S_TMP+2}, {XBUF}, s{S_BUF}")
    dma_rows(a, S_HIN, S_TMP + 2)
    a("s_waitcnt vmcnt(0)")
    a(f"s_branch {uid}_go")
    a.label(f"{uid}_have")
    a("s_waitcnt vmcnt(3)")
    a.label(f"{uid}_go")
    stamp(a, 7, st)
    a(f"s_sub_u32 s{S_TMP+2}, {XBUF}, s{S_BUF}")
    a(f"s_sub_u32 s{S_TMP}, s{S_TMP+2}, s{S_BUF}")
    a(f"v_add_u32 v{V_XR}, s{S_TMP}, v{V_XR}")
    a(f"s_mov_b32 s{S_BUF}, s{S_TMP+2}")
    a(f"s_add_u32 s{S_S}, s{S_S}, 1")
    for sreg in (S_KXO, S_VXO, S_QXO):
        a(f"s_add_u32 s{sreg}, s{sreg}, {32*8192}")
    a(f"s_add_u32 s{S_TFO}, s{S_TFO}, {32*16}")
    a(f"s_add_u32 s{S_QFO}, s{S_QFO}, {32*16}")
    a("s_barrier")
    if st:
        stamp(a, 8); stamps_accumulate(a)
    a(f"s_branch {uid}_item")
    a.label(f"{uid}_end")
    a("s_waitcnt vmcnt(0)")
    flag_store(a, S_QFO)
    a("s_waitcnt vmcnt(0)")
    if st: stamps_store(a)
```

```python
from common import *
V_L16, V_F4, V_M4, V_VM, V_D, V_Z, V_F = 1, 2, 3, 4, 5, 6, 7
Q_, K_, V_, KM_, VM_ = 200, 32, 64, 96, 112
XS_ = 232
MM = 136
P_, PM_ = 140, 144
OD = 148
T0 = 180
S_S, S_HH, S_QT0, S_BASE, S_KMO, S_TFO, S_OFO, S_C, S_PRE = 18, 19, 21, 23, 24, 25, 27, 28, 29
S_MSK = 30
S_TMP = 46

def role_TA_prologue(a, split):
    a.c("===== TA prologue =====")
    a(f"s_lshl_b32 s16, s{S_H}, 2")
    a(f"s_add_u32 s16, s16, s{S_W}")
    if split:
        a(f"s_lshr_b32 s{S_HH}, s16, 1")
        a(f"s_and_b32 s{S_QT0}, s16, 1")
    else:
        a(f"s_mov_b32 s{S_HH}, s16")
        a(f"s_mov_b32 s{S_QT0}, 0")
    n, g, t = 16, 17, 18
    a(f"v_and_b32 v{n}, 15, v0")
    a(f"v_lshrrev_b32 v{g}, 4, v0")
    a(f"v_lshlrev_b32 v{V_L16}, 4, v0")
    a(f"v_and_b32 v{t}, 3, v0")
    a(f"v_lshlrev_b32 v{V_F4}, 2, v{t}")
    a(f"v_bfe_u32 v19, v0, 2, 1")
    a(f"v_mul_u32_u24 v19, {QF - TF}, v19")
    a(f"v_add_u32 v{V_F4}, v{V_F4}, v19")
    a(f"v_lshlrev_b32 v{V_M4}, 10, v{t}")
    a(f"v_or_b32 v{t}, 2, v{n}")
    a(f"v_lshl_add_u32 v{t}, v{g}, 4, v{t}")
    a(f"v_lshlrev_b32 v{V_VM}, 4, v{t}")
    a(f"v_bfe_u32 v{t}, v{n}, 1, 1")
    a(f"v_lshl_add_u32 v{V_VM}, v{t}, 3, v{V_VM}")
    a(f"v_lshlrev_b32 v{t}, 2, v{g}")
    a(f"v_sub_u32 v{V_D}, v{n}, v{t}")
    a(f"v_mov_b32 v{V_Z}, 0")
    for w in range(8):
        a(f"v_mov_b32 v{VM_ + 2*w + 1}, 0")
    a(f"v_mov_b32 v{PM_+1}, 0")
    a(f"s_mul_i32 s{S_BASE}, s{S_L}, {KX_L}")
    a(f"s_lshl_b32 s16, s{S_HH}, 13")
    a(f"s_add_u32 s{S_BASE}, s{S_BASE}, s16")
    a(f"s_mul_i32 s{S_KMO}, s{S_L}, {KM_L}")
    a(f"s_lshl_b32 s16, s{S_HH}, 12")
    a(f"s_add_u32 s{S_KMO}, s{S_KMO}, s16")
    a(f"s_add_u32 s{S_KMO}, s{S_KMO}, {KM}")
    a(f"s_mul_i32 s{S_TFO}, s{S_L}, {TF_L}")
    a(f"s_lshl_b32 s16, s{S_HH}, 4")
    a(f"s_add_u32 s{S_TFO}, s{S_TFO}, s16")
    a(f"s_add_u32 s{S_TFO}, s{S_TFO}, {TF}")
    a(f"s_mul_i32 s{S_OFO}, s{S_L}, {OF_L}")
    a(f"s_lshl_b32 s16, s{S_HH}, 3")
    a(f"s_add_u32 s{S_OFO}, s{S_OFO}, s16")
    a(f"s_add_u32 s{S_OFO}, s{S_OFO}, {OF}")
    a(f"s_mov_b32 s{S_C}, 0x3e0293ee")
    a(f"s_mov_b32 s{S_S}, 0")

def role_TA_main(a, nqt, uid="TA", st=False):
    WS = f"s[{S_WS}:{S_WS+3}]"
    NLD = 16 + 4 * nqt
    if st: stamps_init(a)
    def issue_qkv():
        a(f"s_add_u32 s{S_TMP}, s{S_BASE}, {KX}")
        a(f"s_add_u32 s{S_TMP+1}, s{S_TMP}, 4096")
        for i in range(8):
            so = S_TMP if i < 4 else S_TMP + 1
            a(f"buffer_load_dwordx4 v[{K_+4*i}:{K_+4*i+3}], v{V_L16}, {WS}, s{so} offen offset:{1024*(i%4)} sc1")
        for u in range(nqt):
            a(f"s_add_u32 s{S_TMP+2}, s{S_QT0}, {u}")
            a(f"s_lshl_b32 s{S_TMP+2}, s{S_TMP+2}, 12")
            a(f"s_add_u32 s{S_TMP+2}, s{S_TMP+2}, s{S_BASE}")
            a(f"s_add_u32 s{S_TMP+2}, s{S_TMP+2}, {QX}")
            for i in range(4):
                r = Q_ + 16 * u + 4 * i
                a(f"buffer_load_dwordx4 v[{r}:{r+3}], v{V_L16}, {WS}, s{S_TMP+2} offen offset:{1024*i} sc1")
        a(f"s_add_u32 s{S_TMP}, s{S_BASE}, {VX}")
        a(f"s_add_u32 s{S_TMP+1}, s{S_TMP}, 4096")
        for i in range(8):
            so = S_TMP if i < 4 else S_TMP + 1
            a(f"buffer_load_dwordx4 v[{V_+4*i}:{V_+4*i+3}], v{V_L16}, {WS}, s{so} offen offset:{1024*(i%4)} sc1")
    flag_wait(a, T0, V_F4, S_TFO, uid + "0")
    issue_qkv()
    a("s_waitcnt vmcnt(8)")
    a.label(f"{uid}_item")
    stamp(a, 0, st)
    for u in range(nqt):
        X0, X1 = XS_ + 8 * u, XS_ + 8 * u + 4
        for ks in range(4):
            q = Q_ + 16 * u + 4 * ks
            c0 = "0" if ks == 0 else f"v[{X0}:{X0+3}]"
            c1 = "0" if ks == 0 else f"v[{X1}:{X1+3}]"
            a(f"v_mfma_f32_16x16x32_bf16 v[{X0}:{X0+3}], v[{K_+4*ks}:{K_+4*ks+3}], v[{q}:{q+3}], {c0}")
            a(f"v_mfma_f32_16x16x32_bf16 v[{X1}:{X1+3}], v[{K_+16+4*ks}:{K_+16+4*ks+3}], v[{q}:{q+3}], {c1}")
    a(f"s_add_u32 s{S_TFO}, s{S_TFO}, {32*16}")
    a(f"buffer_load_dword v{V_F}, v{V_F4}, {WS}, s{S_TFO} offen sc1")
    lab = f"{uid}_m"
    a(f"s_add_u32 s{S_TMP}, s{S_KMO}, {32*4096}")
    def mloads():
        a(f"buffer_load_dword v{T0+2}, v{V_M4}, {WS}, s{S_TMP} offen sc1")
        for ks in range(4):
            a(f"buffer_load_dwordx4 v[{KM_+4*ks}:{KM_+4*ks+3}], v{V_L16}, {WS}, s{S_KMO} offen offset:{1024*ks} sc1")
        for w in range(4):
            for t in range(2):
                a(f"buffer_load_dword v{VM_+2*(2*w+t)}, v{V_VM}, {WS}, s{S_KMO} offen offset:{1024*w + 4*t} sc1")
    stamp(a, 1, st)
    mloads()
    for u in range(nqt):
        X0, X1 = XS_ + 8 * u, XS_ + 8 * u + 4
        a(f"s_add_u32 s{S_TMP+3}, s{S_QT0}, {u}")
        a(f"s_lshl_b32 s{S_TMP+3}, s{S_TMP+3}, 4")
        a(f"v_add_u32 v{T0}, s{S_TMP+3}, v{V_D}")
        for kt in range(2):
            for r in range(4):
                m = S_MSK + 2 * (4*kt + r)
                a(f"v_cmp_le_i32 s[{m}:{m+1}], {16*kt + r}, v{T0}")
        a(f"v_mov_b32 v{T0+1}, 0xff800000")
        for kt, X in ((0, X0), (1, X1)):
            for r in range(4):
                m = S_MSK + 2 * (4*kt + r)
                a(f"v_cndmask_b32 v{X+r}, v{T0+1}, v{X+r}, s[{m}:{m+1}]")
    a.label(lab)
    a("s_waitcnt vmcnt(0)")
    a(f"v_cmp_eq_u32 vcc, -1, v{T0+2}")
    a(f"s_cbranch_vccz {lab}_ok")
    a(f"s_sub_u32 s{S_TMO}, s{S_TMO}, 1")
    a(f"s_cbranch_scc1 {lab}_ok")
    mloads()
    a(f"s_branch {lab}")
    a.label(lab + "_ok")
    stamp(a, 2, st)
    for u in range(nqt):
        X0, X1 = XS_ + 8 * u, XS_ + 8 * u + 4
        for ks in range(4):
            q = Q_ + 16 * u + 4 * ks
            c = "0" if ks == 0 else f"v[{MM}:{MM+3}]"
            a(f"v_mfma_f32_16x16x32_bf16 v[{MM}:{MM+3}], v[{KM_+4*ks}:{KM_+4*ks+3}], v[{q}:{q+3}], {c}")
        a(f"v_max3_f32 v{T0}, v{X0}, v{X0+1}, v{X0+2}")
        a(f"v_max3_f32 v{T0+1}, v{X0+3}, v{X1}, v{X1+1}")
        a(f"v_max3_f32 v{T0}, v{T0}, v{X1+2}, v{X1+3}")
        a(f"v_max_f32 v{T0}, v{T0}, v{T0+1}")
        a.nops(5)
        a(f"v_max3_f32 v{T0}, v{T0}, v{MM}, v{MM+1}")
        a(f"v_mov_b32 v{T0+1}, v{T0}")
        a("s_nop 1")
        a(f"v_permlane16_swap_b32 v{T0}, v{T0+1}")
        a(f"v_max_f32 v{T0}, v{T0}, v{T0+1}")
        a(f"v_mov_b32 v{T0+1}, v{T0}")
        a("s_nop 1")
        a(f"v_permlane32_swap_b32 v{T0}, v{T0+1}")
        a(f"v_max_f32 v{T0}, v{T0}, v{T0+1}")
        a(f"v_mul_f32 v{T0}, s{S_C}, v{T0}")
        vals = [X0+r for r in range(4)] + [X1+r for r in range(4)] + [MM, MM+1]
        for r in vals: a(f"v_fma_f32 v{r}, v{r}, s{S_C}, -v{T0}")
        for r in vals: a(f"v_exp_f32 v{r}, v{r}")
        a("s_nop 0")
        a(f"v_cvt_pk_bf16_f32 v{P_}, v{X0}, v{X0+1}")
        a(f"v_cvt_pk_bf16_f32 v{P_+1}, v{X0+2}, v{X0+3}")
        a(f"v_cvt_pk_bf16_f32 v{P_+2}, v{X1}, v{X1+1}")
        a(f"v_cvt_pk_bf16_f32 v{P_+3}, v{X1+2}, v{X1+3}")
        a(f"v_cvt_pk_bf16_f32 v{PM_}, v{MM}, v{MM+1}")
        a("s_nop 1")
        for i in range(8):
            d = OD + 4 * i
            a(f"v_mfma_f32_16x16x32_bf16 v[{d}:{d+3}], v[{V_+4*i}:{V_+4*i+3}], v[{P_}:{P_+3}], 0")
        for i in range(8):
            d = OD + 4 * i
            a(f"v_mfma_f32_16x16x16_bf16 v[{d}:{d+3}], v[{VM_+2*i}:{VM_+2*i+1}], v[{PM_}:{PM_+1}], v[{d}:{d+3}]")
        a(f"v_add_f32 v{T0}, v{X0}, v{X0+1}")
        a(f"v_add_f32 v{T0+1}, v{X0+2}, v{X0+3}")
        a(f"v_add_f32 v{T0+2}, v{X1}, v{X1+1}")
        a(f"v_add_f32 v{T0+3}, v{X1+2}, v{X1+3}")
        a(f"v_add_f32 v{T0}, v{T0}, v{T0+1}")
        a(f"v_add_f32 v{T0+2}, v{T0+2}, v{T0+3}")
        a(f"v_add_f32 v{T0+1}, v{MM}, v{MM+1}")
        a(f"v_add_f32 v{T0}, v{T0}, v{T0+2}")
        a(f"v_add_f32 v{T0}, v{T0}, v{T0+1}")
        a(f"v_mov_b32 v{T0+1}, v{T0}")
        a("s_nop 1")
        a(f"v_permlane16_swap_b32 v{T0}, v{T0+1}")
        a(f"v_add_f32 v{T0}, v{T0}, v{T0+1}")
        a(f"v_mov_b32 v{T0+1}, v{T0}")
        a("s_nop 1")
        a(f"v_permlane32_swap_b32 v{T0}, v{T0+1}")
        a(f"v_add_f32 v{T0}, v{T0}, v{T0+1}")
        a(f"v_rcp_f32 v{T0}, v{T0}")
        a(f"s_add_u32 s{S_TMP+2}, s{S_QT0}, {u}")
        a(f"s_lshl_b32 s{S_TMP+2}, s{S_TMP+2}, 12")
        a(f"s_add_u32 s{S_TMP+2}, s{S_TMP+2}, s{S_BASE}")
        a(f"s_add_u32 s{S_TMP+2}, s{S_TMP+2}, {OB}")
        a(f"v_mov_b32 v{T0+1}, v{T0}")
        for w in range(4):
            for t in range(2):
                d = OD + 4 * (2*w + t)
                a(f"v_pk_mul_f32 v[{d}:{d+1}], v[{d}:{d+1}], v[{T0}:{T0+1}]")
                a(f"v_pk_mul_f32 v[{d+2}:{d+3}], v[{d+2}:{d+3}], v[{T0}:{T0+1}]")
            o = T0 + 4 + 4 * (w & 1)
            d = OD + 8 * w
            for k in range(4):
                a(f"v_cvt_pk_bf16_f32 v{o+k}, v{d+2*k}, v{d+2*k+1}")
            a(f"buffer_store_dwordx4 v[{o}:{o+3}], v{V_L16}, {WS}, s{S_TMP+2} offen offset:{1024*w} sc1")
    stamp(a, 3, st)
    a(f"s_add_u32 s{S_BASE}, s{S_BASE}, {32*8192}")
    a(f"s_mov_b32 s{S_PRE}, 0")
    lab = f"{uid}_pre"
    a(f"s_cmp_eq_u32 s{S_S}, 63")
    a(f"s_cbranch_scc1 {lab}_no")
    a(f"v_cmp_eq_u32 vcc, 0, v{V_F}")
    a(f"s_cbranch_vccnz {lab}_no")
    issue_qkv()
    a("s_waitcnt vmcnt(8)")
    a(f"s_mov_b32 s{S_PRE}, 1")
    a(f"s_branch {lab}_fl")
    a.label(lab + "_no")
    a("s_waitcnt vmcnt(0)")
    a.label(lab + "_fl")
    stamp(a, 4, st)
    a(f"s_lshl_b32 s{S_TMP}, s{S_QT0}, 2")
    a(f"s_add_u32 s{S_TMP}, s{S_TMP}, s{S_OFO}")
    a(f"v_mov_b32 v{T0}, 1")
    a(f"v_lshlrev_b32 v{T0+1}, 2, v0")
    a(f"s_mov_b64 exec, {(1 << nqt) - 1}")
    a(f"buffer_store_dword v{T0}, v{T0+1}, {WS}, s{S_TMP} offen sc1")
    a("s_mov_b64 exec, -1")
    a(f"s_cmp_eq_u32 s{S_S}, 63")
    a(f"s_cbranch_scc1 {uid}_end")
    a(f"s_add_u32 s{S_S}, s{S_S}, 1")
    a(f"s_add_u32 s{S_KMO}, s{S_KMO}, {32*4096}")
    a(f"s_add_u32 s{S_OFO}, s{S_OFO}, {64*4}")
    a(f"s_cmp_lg_u32 s{S_PRE}, 0")
    a(f"s_cbranch_scc1 {uid}_go")
    flag_wait(a, T0, V_F4, S_TFO, uid + "1")
    issue_qkv()
    a("s_waitcnt vmcnt(8)")
    a.label(f"{uid}_go")
    if st:
        stamp(a, 5); stamp(a, 6); stamp(a, 7); stamp(a, 8); stamps_accumulate(a)
    a(f"s_branch {uid}_item")
    a.label(f"{uid}_end")
    a("s_waitcnt vmcnt(0)")
    if st: stamps_store(a)
```

```python
import sys
from common import *
import role_R, role_T, role_TA, role_O, role_Ao, role_Aq
opts = set(sys.argv[2:])
out = sys.argv[1]
NAME = "interleave_layers__sliding_block__memory_aug_recurrent_mem_tr__prompt"
S_LOCAL = 100
S_TEAM = 99
TMO = 1 << 20

HEADER = f"""; Sliding-window attention / recurrent-memory transformer stack, two launches:
;   {NAME}_kernel : persistent dataflow kernel, one workgroup per CU, one role per group of 32 workgroups
; @launch kernel=prep_kernel grid=(256,1,1) block=(256,1,1) lds=0
; @launch kernel={NAME}_kernel grid=(256,1,1) block=(256,1,1) lds=163840
"""

def prep_kernel(a):
    name = "prep_kernel"
    a(kernel_header(name))
    a("s_cmp_ge_u32 s2, 256")
    a("s_cbranch_scc1 prep_exit")
    srd_from_kernarg(a, S_WS, KA_WS, WS_BYTES)
    srd_from_kernarg(a, S_T0, KA_AX, S * D * 2)
    WS = f"s[{S_WS}:{S_WS+3}]"
    a("v_lshrrev_b32 v1, 6, v0")
    a("s_nop 0")
    a(f"v_readfirstlane_b32 s{S_W}, v1")
    a("v_and_b32 v2, 63, v0")
    a("v_lshlrev_b32 v3, 4, v2")
    a("s_lshl_b32 s16, s2, 2")
    a(f"s_add_u32 s16, s16, s{S_W}")
    a("s_lshl_b32 s16, s16, 11")
    a(f"buffer_load_dwordx4 v[16:19], v3, s[{S_T0}:{S_T0+3}], s16 offen")
    a(f"buffer_load_dwordx4 v[20:23], v3, s[{S_T0}:{S_T0+3}], s16 offen offset:1024")
    a("v_lshlrev_b32 v4, 4, v0")
    for r in range(8, 12): a(f"v_mov_b32 v{r}, -1")
    for r in range(12, 16): a(f"v_mov_b32 v{r}, 0")
    assert FF_END == 3 * MB
    a("s_lshl_b32 s17, s2, 12")
    for k in range(3):
        a(f"s_add_u32 s18, s17, {k * MB}")
        a(f"buffer_store_dwordx4 v[8:11], v4, {WS}, s18 offen")
    nfl = (FLAGS_END - FLAGS) // 4096
    a(f"s_cmp_ge_u32 s2, {nfl}")
    a("s_cbranch_scc1 prep_nofl")
    a(f"s_add_u32 s18, s17, {FLAGS}")
    a(f"buffer_store_dwordx4 v[12:15], v4, {WS}, s18 offen")
    a.label("prep_nofl")
    nmark = 2 * 65 * 32 * 4
    a("s_lshl_b32 s18, s2, 8")
    a("v_add_u32 v5, s18, v0")
    a(f"v_cmp_gt_u32 vcc, {nmark}, v5")
    a("s_and_saveexec_b64 s[20:21], vcc")
    a("s_cbranch_execz prep_nomark")
    a("v_lshlrev_b32 v5, 10, v5")
    a(f"s_mov_b32 s18, {KM}")
    a(f"buffer_store_dword v8, v5, {WS}, s18 offen")
    a.label("prep_nomark")
    a("s_mov_b64 exec, s[20:21]")
    a("s_waitcnt vmcnt(0)")
    def ln_only(x, XR, Y, T):
        for k in range(4):
            x(f"v_lshlrev_b32 v{Y+2*k}, 16, v{XR+k}")
            x(f"v_and_b32 v{Y+2*k+1}, 0xffff0000, v{XR+k}")
        m, t = T + 4, T + 5
        x(f"v_pk_add_f32 v[{T}:{T+1}], v[{Y}:{Y+1}], v[{Y+2}:{Y+3}]")
        x(f"v_pk_add_f32 v[{T+2}:{T+3}], v[{Y+4}:{Y+5}], v[{Y+6}:{Y+7}]")
        x(f"v_pk_add_f32 v[{T}:{T+1}], v[{T}:{T+1}], v[{T+2}:{T+3}]")
        x(f"v_add_f32 v{m}, v{T}, v{T+1}")
        wave_allreduce_add(x, m, t)
        x(f"v_mul_f32 v{m}, 0xbb000000, v{m}")
        x(f"v_mov_b32 v{t}, v{m}")
        for k in range(4):
            x(f"v_pk_add_f32 v[{Y+2*k}:{Y+2*k+1}], v[{Y+2*k}:{Y+2*k+1}], v[{m}:{t}]")
        x(f"v_pk_mul_f32 v[{T}:{T+1}], v[{Y}:{Y+1}], v[{Y}:{Y+1}]")
        for k in range(1, 4):
            x(f"v_pk_fma_f32 v[{T}:{T+1}], v[{Y+2*k}:{Y+2*k+1}], v[{Y+2*k}:{Y+2*k+1}], v[{T}:{T+1}]")
        s_, t2 = T + 6, T + 7
        x(f"v_add_f32 v{s_}, v{T}, v{T+1}")
        wave_allreduce_add(x, s_, t2)
        x(f"v_mov_b32 v{t2}, 0x3727c5ac")
        x(f"v_fmac_f32 v{t2}, 0x3b000000, v{s_}")
        x(f"v_rsq_f32 v{s_}, v{t2}")
        x("s_nop 0")
        x(f"v_mov_b32 v{t2}, v{s_}")
        for k in range(4):
            x(f"v_pk_mul_f32 v[{Y+2*k}:{Y+2*k+1}], v[{Y+2*k}:{Y+2*k+1}], v[{s_}:{t2}]")
        for k in range(4):
            x(f"v_cvt_pk_bf16_f32 v{T+k}, v{Y+2*k}, v{Y+2*k+1}")
    interleave2(a, lambda x: ln_only(x, 16, 24, 40), lambda x: ln_only(x, 20, 32, 52))
    a(f"s_add_u32 s16, s16, {HB}")
    a(f"buffer_store_dwordx4 v[40:43], v3, {WS}, s16 offen")
    a(f"buffer_store_dwordx4 v[52:55], v3, {WS}, s16 offen offset:1024")
    a("s_waitcnt vmcnt(0)")
    a.label("prep_exit")
    a("s_endpgm")

def census_wait(a, uid):
    lab = f"census_{uid}"
    srd_from_kernarg(a, S_T0, KA_DBG, 256)
    a("v_and_b32 v21, 7, v0")
    a("v_lshlrev_b32 v21, 4, v21")
    a.label(lab)
    a(f"buffer_load_dword v20, v21, s[{S_T0}:{S_T0+3}], 0 offen sc1")
    a("s_waitcnt vmcnt(0)")
    a("s_mov_b32 s16, 0")
    for k in range(8):
        a(f"v_readlane_b32 s17, v20, {k}")
        a("s_nop 0")
        a("s_add_u32 s16, s16, s17")
    a(f"s_cmp_ge_u32 s16, 256")
    a(f"s_cbranch_scc1 {lab}_ok")
    a(f"s_sub_u32 s{S_TMO}, s{S_TMO}, 1")
    a(f"s_cbranch_scc1 {lab}_ok")
    a(f"s_branch {lab}")
    a.label(lab + "_ok")

def mega_kernel(a):
    name = NAME + "_kernel"
    a(kernel_header(name))
    a("s_cmp_ge_u32 s2, 256")
    a("s_cbranch_scc1 L_exit")
    srd_from_kernarg(a, S_WS, KA_WS, WS_BYTES)
    srd_from_kernarg(a, S_T0, KA_DBG, 256)
    a(f"s_mov_b32 s{S_TMO}, {TMO}")
    a("s_getreg_b32 s20, hwreg(HW_REG_XCC_ID, 0, 4)")
    a("s_and_b32 s20, s20, 7")
    a("s_lshl_b32 s21, s20, 4")
    a("v_mov_b32 v1, s21")
    a("v_mov_b32 v2, 1")
    a("v_cmp_eq_u32 vcc, 0, v0")
    a("s_and_saveexec_b64 s[22:23], vcc")
    a("s_cbranch_execz L_noat")
    a(f"buffer_atomic_add v2, v1, s[{S_T0}:{S_T0+3}], 0 offen sc0")
    a("s_waitcnt vmcnt(0)")
    a("v_mov_b32 v1, 0")
    a("ds_write_b32 v1, v2")
    a("s_waitcnt lgkmcnt(0)")
    a.label("L_noat")
    a("s_mov_b64 exec, s[22:23]")
    a("s_barrier")
    a("v_mov_b32 v1, 0")
    a("ds_read_b32 v2, v1")
    a("s_waitcnt lgkmcnt(0)")
    a(f"v_readfirstlane_b32 s{S_H}, v2")
    a("v_lshrrev_b32 v1, 6, v0")
    a("s_nop 0")
    a(f"v_readfirstlane_b32 s{S_W}, v1")
    a("v_and_b32 v0, 63, v0")
    a(f"s_mov_b32 s{S_TEAM}, s20")
    a("s_barrier")
    a(f"s_cmp_lt_u32 s{S_H}, 32")
    a("s_cbranch_scc1 L_haveslot")
    census_wait(a, "ov")
    a(f"s_sub_u32 s18, s{S_H}, 32")
    for k in range(8):
        a(f"v_readlane_b32 s17, v20, {k}")
        a("s_nop 0")
        a("s_max_u32 s17, s17, 32")
        a("s_sub_u32 s17, s17, 32")
        a(f"s_cmp_lt_u32 {k}, s{S_TEAM}")
        a("s_cselect_b32 s17, s17, 0")
        a("s_add_u32 s18, s18, s17")
    a(f"s_mov_b32 s19, 0")
    for k in range(8):
        lab = f"L_vac{k}"
        a(f"v_readlane_b32 s17, v20, {k}")
        a("s_nop 0")
        a("s_min_u32 s17, s17, 32")
        a("s_sub_u32 s16, 32, s17")
        a("s_cmp_lg_u32 s19, 0")
        a(f"s_cbranch_scc1 {lab}")
        a("s_cmp_lt_u32 s18, s16")
        a(f"s_cbranch_scc0 {lab}_n")
        a(f"s_mov_b32 s{S_TEAM}, {k}")
        a(f"s_add_u32 s{S_H}, s17, s18")
        a("s_mov_b32 s19, 1")
        a(f"s_branch {lab}")
        a.label(lab + "_n")
        a("s_sub_u32 s18, s18, s16")
        a.label(lab)
    a("s_cmp_eq_u32 s19, 0")
    a("s_cbranch_scc1 L_exit")
    a.label("L_haveslot")
    for t, lab in enumerate(("R_entry", "R_entry", "T_entry", "T_entry", "Aq_entry", "O_entry", "O_entry", "X7_entry")):
        a(f"s_cmp_eq_u32 s{S_TEAM}, {t}")
        a(f"s_cbranch_scc1 J_{t}")
    a("s_branch L_exit")
    for t, lab in enumerate(("R_entry", "R_entry", "T_entry", "T_entry", "Aq_entry", "O_entry", "O_entry", "X7_entry")):
        a.label(f"J_{t}")
        layer = {0: 0, 1: 1, 2: 0, 3: 1, 4: 0, 5: 0, 6: 1, 7: 0}[t]
        a(f"s_mov_b32 s{S_L}, {layer}")
        far_jump(a, lab)
    a.label("L_exit")
    a("s_endpgm")
    def local_flag(uid):
        census_wait(a, uid)
        a(f"v_readlane_b32 s17, v20, s{S_TEAM}")
        a("s_nop 0")
        a("s_cmp_ge_u32 s17, 32")
        a(f"s_cselect_b32 s{S_LOCAL}, 1, 0")
    st = "st" in opts
    a.label("R_entry")
    role_R.role_R_prologue(a)
    a(f"s_mov_b32 s{S_TEAM}, s{S_L}")
    local_flag("R")
    a(f"s_mov_b32 s{role_R.S_S}, 0")
    a(f"s_cmp_eq_u32 s{S_LOCAL}, 0")
    a("s_cbranch_scc1 R_nonlocal")
    role_R.role_R_main(a, local=True, uid="Rl", stamps=st)
    finish(a, "Rl", st)
    a.label("R_nonlocal")
    role_R.role_R_main(a, local=False, uid="Rn")
    a("s_endpgm")
    a.label("T_entry")
    role_T.role_T_prologue(a)
    role_T.role_T_main(a, st=st)
    finish(a, "T", False)
    a.label("Aq_entry")
    role_Aq.role_Aq_prologue(a)
    role_Aq.role_Aq_main(a, st=st)
    finish(a, "Aq", False)
    a.label("O_entry")
    role_O.role_O_prologue(a)
    a(f"s_add_u32 s{S_TEAM}, s{S_L}, 5")
    local_flag("O")
    a(f"s_mov_b32 s{role_O.S_S}, 0")
    for layer in (0, 1):
        for loc in (1, 0):
            pass
    a(f"s_cmp_eq_u32 s{S_L}, 0")
    a("s_cbranch_scc0 O_l1")
    a(f"s_cmp_eq_u32 s{S_LOCAL}, 0")
    a("s_cbranch_scc1 O_l0n")
    role_O.role_O_main(a, 0, local=True, uid="O0l", st=st); finish(a, "O0l", False)
    a.label("O_l0n")
    role_O.role_O_main(a, 0, local=False, uid="O0n"); a("s_endpgm")
    a.label("O_l1")
    a(f"s_cmp_eq_u32 s{S_LOCAL}, 0")
    a("s_cbranch_scc1 O_l1n")
    role_O.role_O_main(a, 1, local=True, uid="O1l", st=st); finish(a, "O1l", False)
    a.label("O_l1n")
    role_O.role_O_main(a, 1, local=False, uid="O1n"); a("s_endpgm")
    a.label("X7_entry")
    a(f"s_cmp_lt_u32 s{S_H}, 16")
    a("s_cbranch_scc1 TA0_entry")
    a(f"s_cmp_lt_u32 s{S_H}, 24")
    a("s_cbranch_scc1 TA1_entry")
    a(f"s_sub_u32 s{S_H}, s{S_H}, 24")
    role_Ao.role_Ao_prologue(a)
    role_Ao.role_Ao_main(a, st=st)
    finish(a, "Ao", False)
    a.label("TA0_entry")
    a(f"s_mov_b32 s{S_L}, 0")
    role_TA.role_TA_prologue(a, True)
    role_TA.role_TA_main(a, 1, uid="TAa", st=st)
    finish(a, "TAa", False)
    a.label("TA1_entry")
    a(f"s_sub_u32 s{S_H}, s{S_H}, 16")
    a(f"s_mov_b32 s{S_L}, 1")
    role_TA.role_TA_prologue(a, False)
    role_TA.role_TA_main(a, 2, uid="TAb", st=st)
    finish(a, "TAb", False)

def far_jump(a, lab):
    a(f"s_branch {lab}")

def finish(a, uid, st):
    if "trace" in opts:
        a("s_memrealtime s[90:91]")
        a("s_waitcnt lgkmcnt(0)")
        a("s_lshl_b32 s92, s2, 4")
        a(f"s_lshl_b32 s93, s{S_W}, 2")
        a("s_add_u32 s92, s92, s93")
        a(f"s_add_u32 s92, s92, {STAMP + 8*MB}")
        a("v_mov_b32 v20, s90")
        a("v_mov_b32 v21, 0")
        a("s_mov_b64 exec, 1")
        a(f"buffer_store_dword v20, v21, s[{S_WS}:{S_WS+3}], s92 offen")
        a("s_waitcnt vmcnt(0)")
    a("s_endpgm")

a = Asm()
a.L.append(HEADER.rstrip("\n"))
a('.amdgcn_target "amdgcn-amd-amdhsa--gfx950"')
a(".text")
prep_kernel(a)
mega_kernel(a)
a('.section .rodata,"a"')
a(".p2align 6")
a(kernel_desc("prep_kernel", vgpr=64, accum=64, sgpr=40))
a(".p2align 6")
a(kernel_desc(NAME + "_kernel"))
open(out, "w").write(a.text())
print(out, len(a.L), "lines", len(a.text()), "bytes")
```

```python
from asmlib import *
from layout import *

S_KA   = 0
S_WS   = 4
S_T0   = 8
S_W    = 12
S_H    = 13
S_L    = 14
S_TMO  = 15

def srd_from_kernarg(a, sreg, ka_off, nbytes):
    a(f"s_load_dwordx2 s[{sreg}:{sreg+1}], s[0:1], {ka_off}")
    a("s_waitcnt lgkmcnt(0)")
    a(f"s_mov_b32 s{sreg+2}, {nbytes}")
    a(f"s_mov_b32 s{sreg+3}, 0x20000")

def load_slabs(a, dests, tmp, row_shift=13, nbytes=D * H * DH * 2, base_sgpr=None):
    vA, vB, vR0, vR1, t0, t1 = range(tmp, tmp + 6)
    a(f"v_lshrrev_b32 v{t0}, 4, v0")
    a(f"v_and_b32 v{t1}, 15, v0")
    a(f"v_lshrrev_b32 v{t1}, 1, v{t1}")
    a(f"v_xor_b32 v{vA}, v{t1}, v{t0}")
    a(f"v_xor_b32 v{vB}, 4, v{vA}")
    a(f"v_lshlrev_b32 v{vA}, 5, v{vA}")
    a(f"v_lshlrev_b32 v{vB}, 5, v{vB}")
    a(f"v_lshlrev_b32 v{t0}, {row_shift}, v{t0}")
    a(f"v_and_b32 v{t1}, 1, v0")
    a(f"v_lshlrev_b32 v{t1}, 4, v{t1}")
    a(f"v_add3_u32 v{vA}, v{vA}, v{t0}, v{t1}")
    a(f"v_add3_u32 v{vB}, v{vB}, v{t0}, v{t1}")
    a(f"v_lshrrev_b32 v{t0}, 4, v0")
    a(f"v_bfe_u32 v{t1}, v0, 2, 2")
    a(f"v_lshlrev_b32 v{vR0}, 3, v{t0}")
    a(f"v_add_u32 v{vR0}, v{vR0}, v{t1}")
    a(f"v_lshlrev_b32 v{vR0}, 8, v{vR0}")
    a(f"v_and_b32 v{t0}, 1, v{t0}")
    a(f"v_lshl_add_u32 v{t1}, v{t0}, 2, v{t1}")
    a(f"v_bfe_u32 v{t0}, v0, 1, 1")
    a(f"s_lshl_b32 s16, s{S_W}, 1")
    a(f"v_add_u32 v{t0}, s16, v{t0}")
    a(f"v_xor_b32 v{t0}, v{t0}, v{t1}")
    a(f"v_lshl_add_u32 v{vR0}, v{t0}, 5, v{vR0}")
    a(f"v_and_b32 v{t0}, 1, v0")
    a(f"v_lshl_add_u32 v{vR0}, v{t0}, 4, v{vR0}")
    a(f"v_add_u32 v{vR1}, 0x10000, v{vR0}")
    for (ka, rf, base) in dests:
        srd_from_kernarg(a, S_T0, ka, nbytes)
        a(f"s_lshl_b32 s16, s{S_W}, {row_shift + 7}")
        if base_sgpr is None:
            a(f"s_lshl_b32 s17, s{S_H}, 8")
            a(f"s_add_u32 s16, s16, s17")
        else:
            a(f"s_add_u32 s16, s16, s{base_sgpr}")
        a(f"s_lshl_b32 s17, s{S_W}, 15")
        for j in range(32):
            a(f"s_mov_b32 m0, s17")
            v = vA if ((j >> 1) & 1) == 0 else vB
            a(f"s_add_u32 s17, s17, 1024")
            a(f"buffer_load_dwordx4 v{v}, s[{S_T0}:{S_T0+3}], s16 offen lds")
            a(f"s_add_u32 s16, s16, {4 << row_shift}")
        a("s_waitcnt vmcnt(0)")
        a("s_barrier")
        for t in range(2):
            for ks in range(16):
                for p in range(2):
                    off = ks * 8192 + p * 1024 + 8 * t
                    vb = vR0
                    if off >= 65536:
                        off -= 65536; vb = vR1
                    r = base + t * 64 + ks * 4 + 2 * p
                    dst = f"a[{r}:{r+1}]" if rf == 'a' else f"v[{r}:{r+1}]"
                    a(f"ds_read_b64_tr_b16 {dst}, v{vb} offset:{off}")
        a("s_waitcnt lgkmcnt(0)")
        a("s_barrier")

def load_qkv_weights(a, dests, tmp):
    load_slabs(a, dests, tmp)

BACKOFF = 2
def backoff(a):
    import common
    if common.BACKOFF: a(f"s_sleep {common.BACKOFF}")

def flag_wait(a, vdst, vaddr, soff, uid, nz_all=True):
    lab = f"fw_{uid}"
    a.label(lab)
    a(f"buffer_load_dword v{vdst}, v{vaddr}, s[{S_WS}:{S_WS+3}], s{soff} offen sc1")
    a("s_waitcnt vmcnt(0)")
    a(f"v_cmp_eq_u32 vcc, 0, v{vdst}")
    a(f"s_cbranch_vccz {lab}_ok")
    a(f"s_sub_u32 s{S_TMO}, s{S_TMO}, 1")
    a(f"s_cbranch_scc1 {lab}_ok")
    backoff(a)
    a(f"s_branch {lab}")
    a.label(lab + "_ok")

S_STAMP = 50
S_ACC = 68
def stamp(a, i, on=True):
    if on: a(f"s_memtime s[{S_STAMP+2*i}:{S_STAMP+2*i+1}]")
def stamps_init(a):
    for i in range(8): a(f"s_mov_b32 s{S_ACC+i}, 0")
def stamps_accumulate(a, n=8):
    a("s_waitcnt lgkmcnt(0)")
    for i in range(n):
        a(f"s_sub_u32 s98, s{S_STAMP+2*i+2}, s{S_STAMP+2*i}")
        a(f"s_add_u32 s{S_ACC+i}, s{S_ACC+i}, s98")
def stamps_store(a):
    a(f"s_lshl_b32 s44, s{S_H}, 2")
    a(f"s_add_u32 s44, s44, s{S_W}")
    a(f"s_lshl_b32 s44, s44, 5")
    a(f"s_add_u32 s44, s44, {STAMP}")
    for i in range(8):
        a(f"v_mov_b32 v20, s{S_ACC+i}")
        a(f"v_mov_b32 v21, {4*i}")
        a(f"buffer_store_dword v20, v21, s[{S_WS}:{S_WS+3}], s44 offen")
    a("s_waitcnt vmcnt(0)")

def wave_allreduce_add(a, v, t):
    a("s_nop 1")
    a(f"v_add_f32_dpp v{v}, v{v}, v{v} quad_perm:[1,0,3,2] row_mask:0xf bank_mask:0xf")
    a("s_nop 1")
    a(f"v_add_f32_dpp v{v}, v{v}, v{v} quad_perm:[2,3,0,1] row_mask:0xf bank_mask:0xf")
    a("s_nop 1")
    a(f"v_add_f32_dpp v{v}, v{v}, v{v} row_ror:4 row_mask:0xf bank_mask:0xf")
    a("s_nop 1")
    a(f"v_add_f32_dpp v{v}, v{v}, v{v} row_ror:8 row_mask:0xf bank_mask:0xf")
    a(f"v_mov_b32 v{t}, v{v}")
    a("s_nop 1")
    a(f"v_permlane16_swap_b32 v{v}, v{t}")
    a(f"v_add_f32 v{v}, v{v}, v{t}")
    a(f"v_mov_b32 v{t}, v{v}")
    a("s_nop 1")
    a(f"v_permlane32_swap_b32 v{v}, v{t}")
    a(f"v_add_f32 v{v}, v{v}, v{t}")

def row_finish(a, Y, XR, T, with_ln):
    for k in range(4):
        a(f"v_cvt_pk_bf16_f32 v{T+k}, v{Y+2*k}, v{Y+2*k+1}")
    for k in range(4):
        a(f"v_lshlrev_b32 v{Y+2*k}, 16, v{T+k}")
        a(f"v_and_b32 v{Y+2*k+1}, 0xffff0000, v{T+k}")
    for k in range(4):
        a(f"v_lshlrev_b32 v{T+4+2*k}, 16, v{XR+k}")
        a(f"v_and_b32 v{T+5+2*k}, 0xffff0000, v{XR+k}")
    for k in range(4):
        a(f"v_pk_add_f32 v[{Y+2*k}:{Y+2*k+1}], v[{Y+2*k}:{Y+2*k+1}], v[{T+4+2*k}:{T+5+2*k}]")
    for k in range(4):
        a(f"v_cvt_pk_bf16_f32 v{XR+k}, v{Y+2*k}, v{Y+2*k+1}")
    if not with_ln:
        return
    for k in range(4):
        a(f"v_lshlrev_b32 v{Y+2*k}, 16, v{XR+k}")
        a(f"v_and_b32 v{Y+2*k+1}, 0xffff0000, v{XR+k}")
    m, t = T + 4, T + 5
    a(f"v_pk_add_f32 v[{T}:{T+1}], v[{Y}:{Y+1}], v[{Y+2}:{Y+3}]")
    a(f"v_pk_add_f32 v[{T+2}:{T+3}], v[{Y+4}:{Y+5}], v[{Y+6}:{Y+7}]")
    a(f"v_pk_add_f32 v[{T}:{T+1}], v[{T}:{T+1}], v[{T+2}:{T+3}]")
    a(f"v_add_f32 v{m}, v{T}, v{T+1}")
    wave_allreduce_add(a, m, t)
    a(f"v_mul_f32 v{m}, 0xbb000000, v{m}")
    a(f"v_mov_b32 v{t}, v{m}")
    for k in range(4):
        a(f"v_pk_add_f32 v[{Y+2*k}:{Y+2*k+1}], v[{Y+2*k}:{Y+2*k+1}], v[{m}:{t}]")
    a(f"v_pk_mul_f32 v[{T}:{T+1}], v[{Y}:{Y+1}], v[{Y}:{Y+1}]")
    for k in range(1, 4):
        a(f"v_pk_fma_f32 v[{T}:{T+1}], v[{Y+2*k}:{Y+2*k+1}], v[{Y+2*k}:{Y+2*k+1}], v[{T}:{T+1}]")
    s, t2 = T + 6, T + 7
    a(f"v_add_f32 v{s}, v{T}, v{T+1}")
    wave_allreduce_add(a, s, t2)
    a(f"v_mov_b32 v{t2}, 0x3727c5ac")
    a(f"v_fmac_f32 v{t2}, 0x3b000000, v{s}")
    a(f"v_rsq_f32 v{s}, v{t2}")
    a("s_nop 0")
    a(f"v_mov_b32 v{t2}, v{s}")
    for k in range(4):
        a(f"v_pk_mul_f32 v[{Y+2*k}:{Y+2*k+1}], v[{Y+2*k}:{Y+2*k+1}], v[{s}:{t2}]")
    for k in range(4):
        a(f"v_cvt_pk_bf16_f32 v{T+k}, v{Y+2*k}, v{Y+2*k+1}")

def build_sel(a, dst, n, tmp):
    for r in range(4):
        a(f"v_mov_b32 v{dst+r}, 0")
        a(f"v_cmp_eq_u32 vcc, {2*r}, v{n}")
        a(f"v_mov_b32 v{tmp}, 0x3f80")
        a(f"s_nop 0")
        a(f"v_cndmask_b32 v{dst+r}, v{dst+r}, v{tmp}, vcc")
        a(f"v_cmp_eq_u32 vcc, {2*r+1}, v{n}")
        a(f"v_mov_b32 v{tmp}, 0x3f800000")
        a(f"s_nop 0")
        a(f"v_cndmask_b32 v{dst+r}, v{dst+r}, v{tmp}, vcc")

def interleave2(a, fa, fb):
    A, B = Asm(), Asm()
    fa(A); fb(B)
    assert len(A.L) == len(B.L)
    for x, y in zip(A.L, B.L):
        xs = x.strip()
        if xs.startswith("s_nop"):
            k = int(xs.split()[1])
            if k > 0: a(f"s_nop {k-1}")
        else:
            a(x); a(y)

def load_rowmajor_chunks(a, ka, nbytes, row0_sgpr, lds_base, nrows_per_wave, tmp):
    a(f"v_lshlrev_b32 v{tmp}, 4, v0")
    a(f"s_mul_i32 s17, s{S_W}, {nrows_per_wave * 1024}")
    a(f"s_lshl_b32 s16, s{row0_sgpr}, 10")
    a(f"s_add_u32 s16, s16, s17")
    a(f"s_add_u32 s17, s17, {lds_base}")
    for j in range(nrows_per_wave):
        key = (j & 3) + 4 * ((j >> 3) & 1)
        a(f"v_xor_b32 v{tmp+1}, {key << 5}, v{tmp}")
        a(f"s_mov_b32 m0, s17")
        a(f"s_add_u32 s17, s17, 1024")
        a(f"buffer_load_dwordx4 v{tmp+1}, s[{S_T0}:{S_T0+3}], s16 offen lds")
        a(f"s_add_u32 s16, s16, 1024")

TRACE_ON = False
TRACE_BASE = STAMP + 5 * MB
def trace(a, vreg, sitem):
    import common
    if not common.TRACE_ON: return
    a("s_memrealtime s[90:91]")
    a("s_waitcnt lgkmcnt(0)")
    a("s_mov_b32 s91, m0")
    a(f"s_mov_b32 m0, s{sitem}")
    a(f"v_writelane_b32 v{vreg}, s90, m0")
    a("s_mov_b32 m0, s91")
def trace_dump(a, vregs, role_expr_sgpr):
    import common
    if not common.TRACE_ON: return
    lab = a.newlabel("trd")
    a(f"s_add_u32 s90, s{S_H}, s{S_W}")
    a("s_cmp_lg_u32 s90, 0")
    a(f"s_cbranch_scc1 {lab}")
    a(f"s_lshl_b32 s91, s{role_expr_sgpr}, 12")
    a(f"s_add_u32 s91, s91, {TRACE_BASE}")
    a("v_mbcnt_lo_u32_b32 v20, -1, 0")
    a("v_mbcnt_hi_u32_b32 v20, -1, v20")
    a("v_lshlrev_b32 v20, 2, v20")
    for k, v in enumerate(vregs):
        a(f"buffer_store_dword v{v}, v20, s[{S_WS}:{S_WS+3}], s91 offen offset:{256*k}")
    a("s_waitcnt vmcnt(0)")
    a.label(lab)
```

```python
from common import *
L_WO = 0
L_A  = 131072
L_Y  = L_A + 8192
YS   = 2048 + 64
assert L_Y + 8 * YS <= 163840
V_L16, V_LA, V_WO0, V_WO1, V_IDX, V_MP, V_YW, V_YR, V_AF, V_Z = 1, 2, 3, 4, 5, 6, 7, 8, 9, 10
AR = 16
ACC = 32
SL = [64, 72, 80, 88, 96, 104, 112, 120]
S_S, S_A, S_AOO, S_AFO, S_PRE, S_PEND, S_ROW, S_XOUT, S_HOUT, S_HFO = 18, 19, 20, 21, 22, 23, 24, 25, 26, 27
S_RES = 36
S_TMP = 44

def wfrag(tt, ks):
    i = tt * 6 + ks
    return ('a', 8 * i) if i < 32 else ('v', 128 + 8 * (i - 32))

def role_Ao_prologue(a):
    a.c("===== Ao prologue =====")
    srd_from_kernarg(a, S_T0, KA_AWO, D * D * 2)
    a("v_lshrrev_b32 v26, 4, v0")
    a("v_bfe_u32 v27, v0, 2, 2")
    a("v_lshl_add_u32 v28, v26, 3, v27")
    a("v_lshlrev_b32 v28, 10, v28")
    a("v_and_b32 v26, 1, v26")
    a("v_lshl_add_u32 v27, v26, 2, v27")
    a("v_lshl_add_u32 v28, v27, 5, v28")
    a("v_and_b32 v26, 3, v0")
    a("v_lshl_add_u32 v28, v26, 3, v28")
    a(f"s_lshl_b32 s16, s{S_W}, 8")
    a("v_add_u32 v28, s16, v28")
    for rho in range(3):
        a(f"s_mov_b32 s18, {128 * rho}")
        load_rowmajor_chunks(a, KA_AWO, D*D*2, 18, 0, 32, 24)
        a("s_waitcnt vmcnt(0)")
        a("s_barrier")
        for c in range(4):
            ks, half = 2 * rho + (c >> 1), c & 1
            for tt in range(8):
                a(f"v_xor_b32 v30, {tt << 5}, v28")
                if c >= 2: a("v_add_u32 v30, 0x10000, v30")
                rf, r = wfrag(tt, ks)
                for p in range(2):
                    rr = r + 4 * half + 2 * p
                    a(f"ds_read_b64_tr_b16 {rf}[{rr}:{rr+1}], v30 offset:{(c & 1) * 32768 + p * 4096}")
        a("s_waitcnt lgkmcnt(0)")
        a("s_barrier")
    a(f"s_mov_b32 s18, 384")
    load_rowmajor_chunks(a, KA_AWO, D*D*2, 18, 32768, 32, 24)
    a("v_add_u32 v28, 0x8000, v28")
    a(f"s_lshl_b32 s16, s{S_W}, 13")
    a("v_lshlrev_b32 v29, 4, v0")
    a("v_add_u32 v29, s16, v29")
    a("s_waitcnt vmcnt(0)")
    a("s_barrier")
    for c in range(4):
        for tt in range(8):
            a(f"v_xor_b32 v30, {tt << 5}, v28")
            for p in range(2):
                r = 32 + tt * 4 + 2 * p
                a(f"ds_read_b64_tr_b16 v[{r}:{r+1}], v30 offset:{p * 4096}")
        a("s_waitcnt lgkmcnt(0)")
        for tt in range(8):
            r = 32 + tt * 4
            a(f"ds_write_b128 v29, v[{r}:{r+3}] offset:{tt * 1024}")
        a("v_add_u32 v28, 0x8000, v28")
        a("v_add_u32 v29, 0x8000, v29")
        a("s_waitcnt lgkmcnt(0)")
        a("s_barrier")
    n, g, t = 24, 25, 26
    a(f"v_and_b32 v{n}, 15, v0")
    a(f"v_lshrrev_b32 v{g}, 4, v0")
    a(f"v_lshlrev_b32 v{V_L16}, 4, v0")
    a(f"v_add_u32 v{V_LA}, {L_A}, v{V_L16}")
    a(f"s_lshl_b32 s16, s{S_W}, 13")
    a(f"v_add_u32 v{V_WO0}, s16, v{V_L16}")
    a(f"v_add_u32 v{V_WO1}, 0x10000, v{V_WO0}")
    a(f"s_lshl_b32 s16, s{S_W}, 11")
    a(f"v_add_u32 v{V_MP}, s16, v{V_L16}")
    a(f"v_bfe_u32 v{t}, v{n}, 1, 1")
    a(f"v_mul_u32_u24 v{t}, 0xAAAA, v{t}")
    a(f"v_add_u32 v{V_IDX}, 0x4444, v{t}")
    a(f"v_mul_u32_u24 v{V_YW}, {YS}, v{g}")
    a(f"v_lshl_add_u32 v{V_YW}, v{n}, 2, v{V_YW}")
    a(f"s_lshl_b32 s16, s{S_W}, 9")
    a(f"s_add_u32 s16, s16, {L_Y}")
    a(f"v_add_u32 v{V_YW}, s16, v{V_YW}")
    a(f"s_mul_i32 s16, s{S_W}, {2*YS}")
    a(f"s_add_u32 s16, s16, {L_Y}")
    a(f"v_lshlrev_b32 v{V_YR}, 5, v0")
    a(f"v_add_u32 v{V_YR}, s16, v{V_YR}")
    a(f"v_lshlrev_b32 v{V_AF}, 2, v0")
    a(f"v_mov_b32 v{V_Z}, 0")
    a(f"s_lshr_b32 s{S_A}, s{S_H}, 3")
    a(f"s_and_b32 s17, s{S_H}, 3")
    a(f"s_mul_i32 s{S_AOO}, s{S_A}, {AO_L}")
    a(f"s_lshl_b32 s16, s17, 13")
    a(f"s_add_u32 s{S_AOO}, s{S_AOO}, s16")
    a(f"s_add_u32 s{S_AOO}, s{S_AOO}, {AO}")
    a(f"s_mul_i32 s{S_AFO}, s{S_A}, {AOF_L}")
    a(f"s_add_u32 s{S_AFO}, s{S_AFO}, {AOF}")
    a(f"s_lshl_b32 s16, s17, 3")
    a(f"s_lshl_b32 s17, s{S_W}, 1")
    a(f"s_add_u32 s16, s16, s17")
    a(f"s_lshl_b32 s{S_ROW}, s16, 10")
    a(f"s_lshl_b32 s17, s{S_A}, 1")
    a(f"s_add_u32 s17, s17, 1")
    a(f"s_mul_i32 s{S_XOUT}, s17, {ROWS_J}")
    a(f"s_add_u32 s{S_HOUT}, s{S_XOUT}, {HB}")
    a(f"s_add_u32 s{S_XOUT}, s{S_XOUT}, {XB}")
    a(f"s_mul_i32 s{S_HFO}, s17, {HF_J}")
    a(f"s_lshl_b32 s16, s16, 2")
    a(f"s_add_u32 s{S_HFO}, s{S_HFO}, s16")
    a(f"s_add_u32 s{S_HFO}, s{S_HFO}, {HF}")
    a(f"s_cmp_eq_u32 s{S_A}, 0")
    a(f"s_cbranch_scc0 Ao_res1")
    srd_from_kernarg(a, S_RES, KA_AX, S * D * 2)
    a(f"s_branch Ao_res2")
    a.label("Ao_res1")
    a(f"s_load_dwordx2 s[{S_RES}:{S_RES+1}], s[0:1], {KA_WS}")
    a("s_waitcnt lgkmcnt(0)")
    a(f"s_add_u32 s{S_RES}, s{S_RES}, {XB + 2*ROWS_J}")
    a(f"s_addc_u32 s{S_RES+1}, s{S_RES+1}, 0")
    a(f"s_mov_b32 s{S_RES+2}, {S*D*2}")
    a(f"s_mov_b32 s{S_RES+3}, 0x20000")
    a.label("Ao_res2")
    a(f"s_bfe_u32 s{S_S}, s{S_H}, 0x10002")
    a(f"s_lshl_b32 s16, s{S_S}, 15")
    a(f"s_add_u32 s{S_AOO}, s{S_AOO}, s16")
    a(f"s_lshl_b32 s16, s{S_S}, 8")
    a(f"s_add_u32 s{S_AFO}, s{S_AFO}, s16")
    a(f"s_lshl_b32 s16, s{S_S}, 7")
    a(f"s_add_u32 s{S_HFO}, s{S_HFO}, s16")
    a(f"s_mov_b32 s{S_PEND}, 0")

def dma_a(a):
    a(f"s_lshl_b32 s{S_TMP}, s{S_W}, 11")
    a(f"s_add_u32 m0, s{S_TMP}, {L_A}")
    a("s_nop 0")
    a(f"buffer_load_dwordx4 v{V_MP}, s[{S_WS}:{S_WS+3}], s{S_AOO} offen sc1 lds")
    a(f"buffer_load_dwordx4 v{V_MP}, s[{S_WS}:{S_WS+3}], s{S_AOO} offen offset:1024 sc1 lds")

def role_Ao_main(a, uid="Ao", st=False):
    WS = f"s[{S_WS}:{S_WS+3}]"
    if st: stamps_init(a)
    flag_wait(a, 11, V_AF, S_AFO, uid + "0")
    dma_a(a)
    a("s_waitcnt vmcnt(0)")
    a("s_barrier")
    a.label(f"{uid}_item")
    a.lg = []
    trace(a, 12, S_S)
    stamp(a, 0, st)
    def aread(ks):
        r = AR + 4 * (ks % 4)
        a.ds(f"ds_read_b128 v[{r}:{r+3}], v{V_LA} offset:{ks*1024}", f"A{ks}")
    def fread(tt, ks, slot):
        vb = V_WO0 if ks == 6 else V_WO1
        for half in range(2):
            r = SL[slot] + 4 * half
            a.ds(f"ds_read_b128 v[{r}:{r+3}], v{vb} offset:{half*32768 + tt*1024}", f"F{tt}_{ks}")
    for ks in range(4): aread(ks)
    for r in range(ACC, ACC + 32, 2):
        a(f"v_mov_b64 v[{r}:{r+1}], 0")
    a(f"s_add_u32 s{S_AFO}, s{S_AFO}, 512")
    a(f"buffer_load_dword v11, v{V_AF}, {WS}, s{S_AFO} offen sc1")
    RES0, RES1 = 12, 16
    def smf(acc, A, rf, r):
        a(f"v_smfmac_f32_16x16x64_bf16 v[{acc}:{acc+3}], v[{A}:{A+3}], {rf}[{r}:{r+7}], v{V_IDX}")
    for ks in range(8):
        a.ds_wait(f"A{ks}")
        A = AR + 4 * (ks % 4)
        for tt in range(8):
            if ks < 6:
                rf, r = wfrag(tt, ks)
                smf(ACC + 4*tt, A, rf, r)
                if ks in (1, 2) and tt % 2 == 0:
                    fread((ks - 1) * 4 + tt // 2, 6, (ks - 1) * 4 + tt // 2)
            else:
                a.ds_wait(f"F{tt}_{ks}")
                smf(ACC + 4*tt, A, 'v', SL[tt])
                if ks == 6: fread(tt, 7, tt)
        if ks + 4 < 8: aread(ks + 4)
        if ks == 5:
            a(f"s_lshl_b32 s{S_TMP}, s{S_S}, 15")
            a(f"s_add_u32 s{S_TMP}, s{S_TMP}, s{S_ROW}")
            a(f"buffer_load_dwordx4 v[16:19], v{V_L16}, s[{S_RES}:{S_RES+3}], s{S_TMP} offen sc1")
            a(f"buffer_load_dwordx4 v[20:23], v{V_L16}, s[{S_RES}:{S_RES+3}], s{S_TMP} offen offset:1024 sc1")
    stamp(a, 1, st)
    lab = f"{uid}_pf"
    a(f"s_cmp_eq_u32 s{S_PEND}, 0")
    a(f"s_cbranch_scc1 {lab}")
    a("s_waitcnt vmcnt(3)")
    a(f"v_mov_b32 v24, 1")
    a(f"v_lshlrev_b32 v25, 2, v0")
    a(f"s_sub_u32 s{S_TMP+1}, s{S_HFO}, 256")
    a("s_mov_b64 exec, 3")
    a(f"buffer_store_dword v24, v25, {WS}, s{S_TMP+1} offen sc1")
    a("s_mov_b64 exec, -1")
    a(f"s_mov_b32 s{S_PEND}, 0")
    a.label(lab)
    a.nops(2)
    for tt in range(8):
        d = ACC + 4 * tt
        a(f"v_pk_add_f32 v[{d}:{d+1}], v[{d}:{d+1}], v[{d+2}:{d+3}]")
        a(f"ds_write_b32 v{V_YW}, v{d} offset:{64*tt}")
        a(f"ds_write_b32 v{V_YW}, v{d+1} offset:{64*tt + 4*YS}")
    a("s_waitcnt lgkmcnt(0)")
    a("s_barrier")
    stamp(a, 2, st)
    lab = f"{uid}_pre"
    a(f"s_add_u32 s{S_AOO}, s{S_AOO}, 65536")
    a(f"s_mov_b32 s{S_PRE}, 0")
    Y0, Y1, T0_, T1_ = 64, 72, 80, 96
    a(f"ds_read_b128 v[{Y0}:{Y0+3}], v{V_YR}")
    a(f"ds_read_b128 v[{Y0+4}:{Y0+7}], v{V_YR} offset:16")
    a(f"ds_read_b128 v[{Y1}:{Y1+3}], v{V_YR} offset:{YS}")
    a(f"ds_read_b128 v[{Y1+4}:{Y1+7}], v{V_YR} offset:{YS+16}")
    a("s_waitcnt vmcnt(0)")
    a(f"s_cmp_ge_u32 s{S_S}, 62")
    a(f"s_cbranch_scc1 {lab}")
    a("v_cmp_eq_u32 vcc, 0, v11")
    a(f"s_cbranch_vccnz {lab}")
    dma_a(a)
    a(f"s_mov_b32 s{S_PRE}, 1")
    a.label(lab)
    a("s_waitcnt lgkmcnt(0)")
    interleave2(a, lambda x: row_finish(x, Y0, 16, T0_, True), lambda x: row_finish(x, Y1, 20, T1_, True))
    a(f"s_lshl_b32 s{S_TMP}, s{S_S}, 15")
    a(f"s_add_u32 s{S_TMP}, s{S_TMP}, s{S_ROW}")
    a(f"s_add_u32 s{S_TMP+1}, s{S_TMP}, s{S_XOUT}")
    a(f"s_add_u32 s{S_TMP+2}, s{S_TMP}, s{S_HOUT}")
    a(f"buffer_store_dwordx4 v[{T0_}:{T0_+3}], v{V_L16}, {WS}, s{S_TMP+2} offen sc1")
    a(f"buffer_store_dwordx4 v[{T1_}:{T1_+3}], v{V_L16}, {WS}, s{S_TMP+2} offen offset:1024 sc1")
    a(f"buffer_store_dwordx4 v[16:19], v{V_L16}, {WS}, s{S_TMP+1} offen sc1")
    a(f"buffer_store_dwordx4 v[20:23], v{V_L16}, {WS}, s{S_TMP+1} offen offset:1024 sc1")
    trace(a, 13, S_S)
    stamp(a, 3, st)
    a(f"s_cmp_lg_u32 s{S_PRE}, 0")
    a(f"s_cbranch_scc1 {uid}_defer")
    a(f"buffer_load_dword v11, v{V_AF}, {WS}, s{S_AFO} offen sc1")
    a("s_waitcnt vmcnt(0)")
    a(f"v_mov_b32 v24, 1")
    a(f"v_lshlrev_b32 v25, 2, v0")
    a("s_mov_b64 exec, 3")
    a(f"buffer_store_dword v24, v25, {WS}, s{S_HFO} offen sc1")
    a("s_mov_b64 exec, -1")
    a(f"s_cmp_ge_u32 s{S_S}, 62")
    a(f"s_cbranch_scc1 {uid}_end")
    a("v_cmp_eq_u32 vcc, 0, v11")
    a(f"s_cbranch_vccz {uid}_cp")
    flag_wait(a, 11, V_AF, S_AFO, uid + "1")
    a.label(f"{uid}_cp")
    dma_a(a)
    a("s_waitcnt vmcnt(0)")
    a(f"s_branch {uid}_go")
    a.label(f"{uid}_defer")
    a(f"s_mov_b32 s{S_PEND}, 1")
    a("s_waitcnt vmcnt(4)")
    a.label(f"{uid}_go")
    a(f"s_add_u32 s{S_S}, s{S_S}, 2")
    a(f"s_add_u32 s{S_HFO}, s{S_HFO}, 256")
    a("s_barrier")
    if st:
        stamp(a, 4); stamp(a, 5); stamp(a, 6); stamp(a, 7); stamp(a, 8); stamps_accumulate(a)
    a(f"s_branch {uid}_item")
    a.label(f"{uid}_end")
    a("s_waitcnt vmcnt(0)")
    if st: stamps_store(a)
```

```python
from common import *
L_K   = 0
L_V   = 18432
L_O   = 36864
L_X   = 40960
XBUF  = 32768
V_L16, V_HF, V_OW, V_OR, V_AOA, V_Z, V_FL = 1, 2, 3, 4, 5, 6, 7
T0 = 8
XF = 16
AK_, AQ_, AV_ = 32, 36, 40
QB = 44
ADR, AW = 48, 57
XA, VD = 58, 62
KA, VA, SC = 72, 108, 144
PB, OA, LS = 216, 220, 224
WQ, WK, WV = 0, 64, 128
S_S, S_A, S_HIN, S_HFO, S_AOO, S_AFO, S_BUF, S_C, S_PRE, S_PEND, S_SRC, S_TT8 = 18, 19, 20, 21, 22, 23, 24, 25, 26, 27, 28, 29
S_EARLY = 76
S_MSK = 30
S_TMP = 46

def role_Aq_prologue(a):
    a.c("===== Aq prologue =====")
    a(f"s_lshr_b32 s{S_A}, s{S_H}, 4")
    a(f"s_and_b32 s18, s{S_H}, 15")
    srd_from_kernarg(a, S_T0, KA_AWQKV, D * 3 * D * 2)
    a("v_lshrrev_b32 v16, 2, v0")
    a("v_mul_u32_u24 v16, 3072, v16")
    a("v_and_b32 v17, 3, v0")
    a("v_lshl_add_u32 v16, v17, 4, v16")
    a(f"s_lshl_b32 s16, s18, 6")
    a(f"s_mul_i32 s17, s{S_W}, {128 * 3072}")
    a(f"s_add_u32 s16, s16, s17")
    a(f"s_lshl_b32 s17, s{S_W}, 13")
    for m in range(3):
        for j in range(8):
            a(f"s_add_u32 s20, s17, {m * 32768 + j * 1024}")
            a(f"s_mov_b32 m0, s20")
            a(f"s_add_u32 s21, s16, {m * 1024 + j * 16 * 3072}")
            a(f"buffer_load_dwordx4 v16, s[{S_T0}:{S_T0+3}], s21 offen lds")
    a("v_lshrrev_b32 v17, 4, v0")
    a("v_bfe_u32 v18, v0, 2, 2")
    a("v_lshl_add_u32 v17, v17, 3, v18")
    a("v_lshlrev_b32 v17, 6, v17")
    a("v_and_b32 v18, 3, v0")
    a("v_lshl_add_u32 v17, v18, 3, v17")
    a(f"s_lshr_b32 s16, s{S_W}, 1")
    a(f"s_lshl_b32 s16, s16, 5")
    a("v_add_u32 v17, s16, v17")
    a("v_add_u32 v18, 0x10000, v17")
    a("s_waitcnt vmcnt(0)")
    a("s_barrier")
    for m, base in enumerate((WQ, WK, WV)):
        for ks in range(16):
            for p in range(2):
                r = base + 4 * ks + 2 * p
                off = m * 32768 + ks * 2048 + p * 256
                vb = 17
                if off >= 65536: off -= 65536; vb = 18
                a(f"ds_read_b64_tr_b16 a[{r}:{r+1}], v{vb} offset:{off}")
    a("s_waitcnt lgkmcnt(0)")
    a("s_barrier")
    n, g, t = 16, 17, 18
    a(f"v_and_b32 v{n}, 15, v0")
    a(f"v_lshrrev_b32 v{g}, 4, v0")
    a(f"v_lshlrev_b32 v{V_L16}, 4, v0")
    a(f"s_and_b32 s19, s{S_W}, 1")
    a(f"s_lshl_b32 s{S_TT8}, s19, 3")
    a(f"s_lshl_b32 s16, s19, 14")
    a(f"s_add_u32 s16, s16, {L_X}")
    for q in range(4):
        a(f"v_add_u32 v{t}, {4*q}, v{g}")
        a(f"v_xor_b32 v{t}, v{t}, v{n}")
        a(f"v_lshlrev_b32 v{XA+q}, 4, v{t}")
        a(f"v_lshl_add_u32 v{XA+q}, v{n}, 10, v{XA+q}")
        a(f"v_add_u32 v{XA+q}, s16, v{XA+q}")
    a(f"s_lshl_b32 s16, s19, 3")
    for j in range(8):
        a(f"s_add_u32 s17, s16, {j}")
        a(f"v_xor_b32 v{t}, s17, v0")
        a(f"v_lshlrev_b32 v{VD+j}, 4, v{t}")
    a(f"v_lshlrev_b32 v{V_HF}, 2, v0")
    a(f"v_mov_b32 v{V_Z}, 0")
    a(f"v_lshrrev_b32 v{t}, 3, v{n}")
    a(f"v_lshlrev_b32 v{V_AOA}, 13, v{t}")
    a(f"v_and_b32 v{t}, 3, v{n}")
    a(f"v_lshl_add_u32 v{V_AOA}, v{t}, 6, v{V_AOA}")
    a(f"v_bfe_u32 v{t}, v{n}, 2, 1")
    a(f"v_lshl_add_u32 v{V_AOA}, v{t}, 4, v{V_AOA}")
    a(f"v_lshl_add_u32 v{V_AOA}, v{g}, 2, v{V_AOA}")
    a(f"s_lshl_b32 s16, s19, 14")
    a(f"s_lshl_b32 s17, s18, 1")
    a(f"s_lshr_b32 s20, s{S_W}, 1")
    a(f"s_add_u32 s17, s17, s20")
    a(f"s_lshl_b32 s20, s17, 8")
    a(f"s_add_u32 s16, s16, s20")
    a(f"v_add_u32 v{V_AOA}, s16, v{V_AOA}")
    a(f"s_lshl_b32 s17, s17, 1")
    a(f"s_add_u32 s17, s17, s19")
    a(f"s_lshl_b32 s17, s17, 2")
    a(f"v_mov_b32 v{V_FL}, s17")
    a(f"v_lshlrev_b32 v{t}, 2, v{g}")
    a(f"v_sub_u32 v{t}, v{n}, v{t}")
    a(f"s_lshl_b32 s16, s19, 4")
    a(f"v_add_u32 v{t}, s16, v{t}")
    for kt in range(2):
        for r in range(4):
            m = S_MSK + 2 * (4*kt + r)
            a(f"v_cmp_gt_i32 s[{m}:{m+1}], {16*kt + r}, v{t}")
    a(f"s_lshr_b32 s16, s{S_W}, 1")
    a(f"s_mul_i32 s16, s16, 9216")
    for i in range(9):
        a(f"s_add_u32 s17, s16, {i * 1024}")
        a(f"v_add_u32 v{ADR+i}, s17, v{V_L16}")
    for r in range(20, 24): a(f"v_mov_b32 v{r}, 0")
    a(f"s_lshl_b32 s16, s{S_W}, 10")
    a(f"v_add_u32 v{t}, s16, v{V_L16}")
    for j in range(9):
        a(f"ds_write_b128 v{t}, v[20:23] offset:{j * 4096}")
    a(f"s_mov_b32 s{S_C}, 0x3eb8aa3b")
    a(f"s_lshr_b32 s{S_A}, s{S_H}, 4")
    a(f"s_mul_i32 s{S_HIN}, s{S_A}, {2*ROWS_J}")
    a(f"s_add_u32 s{S_HIN}, s{S_HIN}, {HB}")
    a(f"s_mov_b32 s{S_HFO}, {HF + 2*HF_J}")
    a(f"s_mul_i32 s{S_AOO}, s{S_A}, {AO_L}")
    a(f"s_add_u32 s{S_AOO}, s{S_AOO}, {AO}")
    a(f"s_mul_i32 s{S_AFO}, s{S_A}, {AOF_L}")
    a(f"s_add_u32 s{S_AFO}, s{S_AFO}, {AOF}")
    a(f"s_mov_b32 s{S_S}, 0")
    a(f"s_mov_b32 s{S_BUF}, {L_X}")
    a(f"s_mov_b32 s{S_PEND}, 0")
    a("s_waitcnt lgkmcnt(0)")
    a("s_barrier")

def dma_x_units(srow, sbuf):
    u = []
    u.append(f"s_lshl_b32 s{S_TMP}, s{S_W}, 13\n  s_add_u32 s{S_TMP+1}, s{S_TMP}, s{sbuf}\n  s_add_u32 s{S_TMP}, s{S_TMP}, s{srow}\n  s_mov_b32 m0, s{S_TMP+1}\n  s_nop 0")
    for half in range(2):
        if half == 1:
            u.append(f"s_add_u32 m0, s{S_TMP+1}, 4096\n  s_add_u32 s{S_TMP}, s{S_TMP}, 4096")
        for j in range(4):
            u.append(f"buffer_load_dwordx4 v{VD+4*half+j}, s[{S_WS}:{S_WS+3}], s{S_TMP} offen offset:{1024*j} sc1 lds")
    return u
def dma_x(a, srow, sbuf):
    for x in dma_x_units(srow, sbuf): a(x)

def out_flag(a):
    a(f"v_mov_b32 v{T0}, 1")
    a(f"s_sub_u32 s{S_TMP+2}, s{S_AFO}, 256")
    a("s_mov_b64 exec, 1")
    a(f"buffer_store_dword v{T0}, v{V_FL}, s[{S_WS}:{S_WS+3}], s{S_TMP+2} offen sc1")
    a("s_mov_b64 exec, -1")
    a(f"s_mov_b32 s{S_PEND}, 0")

def role_Aq_item(a, uid, early, st):
    WS = f"s[{S_WS}:{S_WS+3}]"
    a.lg = []
    trace(a, 240, S_S)
    stamp(a, 0, st)
    def xread(ks):
        r = XF + 4 * (ks % 4)
        a.ds(f"ds_read_b128 v[{r}:{r+3}], v{XA + (ks & 3)} offset:{256*(ks >> 2)}", f"x{ks}")
    for ks in range(3): xread(ks)
    F = []
    F.append(f"s_add_u32 s{S_HFO}, s{S_HFO}, 128")
    F.append(f"s_mov_b32 s{S_SRC}, s{S_HIN}")
    F.append(f"s_add_u32 s{S_HIN}, s{S_HIN}, 32768")
    F.append(f"v_mov_b32 v{AW}, v{ADR}")
    for i in range(8): F.append(f"v_mov_b32 v{ADR+i}, v{ADR+i+1}")
    F.append(f"v_mov_b32 v{ADR+8}, v{AW}")
    F.append(f"v_add_u32 v{AW}, s{S_TT8}, v{AW}")
    for i in range(8):
        F.append(("ds", f"ds_read_b128 v[{KA+4*i}:{KA+4*i+3}], v{ADR+i} offset:{L_K}", f"k{i}"))
    for i in range(8):
        F.append(("ds", f"ds_read_b128 v[{VA+4*i}:{VA+4*i+3}], v{ADR+i} offset:{L_V}", f"v{i}"))
    DM = []
    if early:
        du = dma_x_units(S_HIN, S_TMP + 3)
        F.insert(3, f"s_sub_u32 s{S_TMP+3}, {2*L_X + XBUF}, s{S_BUF}")
        F.insert(4, du.pop(0))
        DM = du
    a.ds_wait("x0")
    for ks in range(16):
        r = XF + 4 * (ks % 4)
        for i, (acc, A, B) in enumerate(((AK_, f"a[{WK+4*ks}:{WK+4*ks+3}]", f"v[{r}:{r+3}]"), (AV_, f"v[{r}:{r+3}]", f"a[{WV+4*ks}:{WV+4*ks+3}]"), (AQ_, f"a[{WQ+4*ks}:{WQ+4*ks+3}]", f"v[{r}:{r+3}]"))):
            c = "0" if ks == 0 else f"v[{acc}:{acc+3}]"
            a(f"v_mfma_f32_16x16x32_bf16 v[{acc}:{acc+3}], {A}, {B}, {c}")
            if i == 0 and ks + 3 < 16: xread(ks + 3)
            if i == 1 and ks + 1 < 16: a.ds_wait(f"x{ks+1}")
            if F and i != 0:
                f = F.pop(0)
                if isinstance(f, tuple): a.ds(f[1], f[2])
                else: a(f)
            if early and i == 2 and ks in (9, 14): a(DM.pop(0))
    assert not F
    a.nops(5)
    a(f"v_cvt_pk_bf16_f32 v{T0+2}, v{AK_}, v{AK_+1}")
    a(f"v_cvt_pk_bf16_f32 v{T0+3}, v{AK_+2}, v{AK_+3}")
    a(f"ds_write_b64 v{AW}, v[{T0+2}:{T0+3}] offset:{L_K}")
    a(f"v_cvt_pk_bf16_f32 v{T0+4}, v{AV_}, v{AV_+1}")
    a(f"v_cvt_pk_bf16_f32 v{T0+5}, v{AV_+2}, v{AV_+3}")
    a(f"ds_write_b64 v{AW}, v[{T0+4}:{T0+5}] offset:{L_V}")
    a(f"v_cvt_pk_bf16_f32 v{QB}, v{AQ_}, v{AQ_+1}")
    a(f"v_cvt_pk_bf16_f32 v{QB+1}, v{AQ_+2}, v{AQ_+3}")
    a.lg += ["w", "w"]
    lab = f"{uid}_mid"
    a(f"s_cmp_eq_u32 s{S_PEND}, 0")
    a(f"s_cbranch_scc1 {lab}")
    a(f"s_waitcnt vmcnt({2 if early else 0})")
    out_flag(a)
    a.label(lab)
    mx, t1 = T0 + 3, T0 + 4
    a(f"v_mov_b32 v{T0+1}, 0xff800000")
    def score(i):
        for kt in range(2):
            d = SC + 8*i + 4*kt
            a(f"v_mfma_f32_16x16x16_bf16 v[{d}:{d+3}], v[{KA+4*i+2*kt}:{KA+4*i+2*kt+1}], v[{QB}:{QB+1}], 0")
    MX = []
    for i in range(1, 8):
        b = SC + 8 * i
        if i == 1:
            MX += [f"v_max3_f32 v{mx}, v{b}, v{b+1}, v{b+2}", f"v_max3_f32 v{t1}, v{b+3}, v{b+4}, v{b+5}", f"v_max3_f32 v{mx}, v{mx}, v{b+6}, v{b+7}"]
        else:
            MX += [f"v_max3_f32 v{mx}, v{mx}, v{b}, v{b+1}", f"v_max3_f32 v{t1}, v{t1}, v{b+2}, v{b+3}", f"v_max3_f32 v{mx}, v{mx}, v{b+4}, v{b+5}", f"v_max3_f32 v{t1}, v{t1}, v{b+6}, v{b+7}"]
    early_start = f"{uid}_es"
    a.ds_wait("k7")
    a(f"s_cmp_lt_u32 s{S_S}, 8")
    a(f"s_cbranch_scc1 {uid}_start")
    mxq = list(MX)
    for i in range(8):
        for kt in range(2):
            d = SC + 8*i + 4*kt
            a(f"v_mfma_f32_16x16x16_bf16 v[{d}:{d+3}], v[{KA+4*i+2*kt}:{KA+4*i+2*kt+1}], v[{QB}:{QB+1}], 0")
            if i >= 4:
                for _ in range(2):
                    if mxq and int(mxq[0].split("v")[-1].strip().rstrip(",")) < SC + 8 * (i - 2): a(mxq.pop(0))
    a.nops(4)
    for kt in range(2):
        for r in range(4):
            m = S_MSK + 2 * (4*kt + r)
            a(f"v_cndmask_b32 v{SC+4*kt+r}, v{T0+1}, v{SC+4*kt+r}, s[{m}:{m+1}]")
    for x in mxq: a(x)
    a(f"s_branch {uid}_mxdone")
    a.label(f"{uid}_start")
    for i in range(8): score(i)
    a.nops(8)
    for i in range(8):
        lab = f"{uid}_nv{i}"
        a(f"s_add_u32 s{S_TMP+2}, s{S_S}, {i}")
        a(f"s_cmp_ge_u32 s{S_TMP+2}, 8")
        a(f"s_cbranch_scc1 {lab}")
        for r in range(8):
            a(f"v_mov_b32 v{SC+8*i+r}, v{T0+1}")
        a.label(lab)
    for kt in range(2):
        for r in range(4):
            m = S_MSK + 2 * (4*kt + r)
            a(f"v_cndmask_b32 v{SC+4*kt+r}, v{T0+1}, v{SC+4*kt+r}, s[{m}:{m+1}]")
    for x in MX: a(x)
    a.label(f"{uid}_mxdone")
    for k in range(0, 8, 4):
        a(f"v_max3_f32 v{mx}, v{mx}, v{SC+k}, v{SC+k+1}")
        a(f"v_max3_f32 v{t1}, v{t1}, v{SC+k+2}, v{SC+k+3}")
    if early: a(DM.pop(0))
    a("s_waitcnt lgkmcnt(0)")
    a("s_barrier")
    stamp(a, 1, st)
    a.lg = []
    a.ds(f"ds_read_b128 v[{KA+32}:{KA+35}], v{ADR+8} offset:{L_K}", "k8")
    a.ds(f"ds_read_b128 v[{VA+32}:{VA+35}], v{ADR+8} offset:{L_V}", "v8")
    a.ds_wait("k8")
    score(8)
    a.nops(8)
    for kt in range(2):
        for r in range(4):
            m = S_MSK + 2 * (4*kt + r)
            a(f"v_cndmask_b32 v{SC+64+4*kt+r}, v{SC+64+4*kt+r}, v{T0+1}, s[{m}:{m+1}]")
    for k in range(64, 72, 4):
        a(f"v_max3_f32 v{mx}, v{mx}, v{SC+k}, v{SC+k+1}")
        a(f"v_max3_f32 v{t1}, v{t1}, v{SC+k+2}, v{SC+k+3}")
    a(f"v_max_f32 v{mx}, v{mx}, v{t1}")
    a(f"v_mov_b32 v{t1}, v{mx}")
    a("s_nop 1")
    a(f"v_permlane16_swap_b32 v{mx}, v{t1}")
    a(f"v_max_f32 v{mx}, v{mx}, v{t1}")
    a(f"v_mov_b32 v{t1}, v{mx}")
    a("s_nop 1")
    a(f"v_permlane32_swap_b32 v{mx}, v{t1}")
    a(f"v_max_f32 v{mx}, v{mx}, v{t1}")
    a(f"v_mul_f32 v{t1}, s{S_C}, v{mx}")
    a(f"v_mov_b32 v{t1+1}, v{t1}")
    a(f"v_mov_b32 v{T0+6}, s{S_C}")
    a(f"v_mov_b32 v{T0+7}, s{S_C}")
    stamp(a, 2, st)
    a.ds_wait("v8")
    FV = LS + 2
    a(f"buffer_load_dword v{FV}, v{V_HF}, {WS}, s{S_HFO} offen sc1")
    CHK = 3
    younger = 0
    for i in range(9):
        b = SC + 8 * i
        for r in range(0, 8, 2):
            a(f"v_pk_fma_f32 v[{b+r}:{b+r+1}], v[{b+r}:{b+r+1}], v[{T0+6}:{T0+7}], v[{t1}:{t1+1}] neg_lo:[0,0,1] neg_hi:[0,0,1]")
        for r in range(8):
            a(f"v_exp_f32 v{b+r}, v{b+r}")
            if DM and ((early and r == 5) or (not early and r in (2, 6))):
                u = DM.pop(0); a(u)
                if u.startswith("buffer"): younger += 1
        if i == CHK:
            a(f"s_waitcnt vmcnt({younger})")
            a(f"v_cmp_eq_u32 vcc, 0, v{FV}")
            a("s_nop 0")
            a(f"s_cmp_eq_u32 vcc_hi, 0")
            a(f"s_cselect_b32 s{S_EARLY}, 1, 0")
            a(f"s_cmp_eq_u32 s{S_A}, 0")
            a(f"s_cselect_b32 s{S_EARLY}, 1, s{S_EARLY}")
            a(f"s_cmp_ge_u32 s{S_S}, 62")
            a(f"s_cselect_b32 s{S_EARLY}, 0, s{S_EARLY}")
            if early:
                a(f"s_mov_b32 s{S_PRE}, 1")
            else:
                a(f"s_sub_u32 s{S_TMP+3}, {2*L_X + XBUF}, s{S_BUF}")
                a(f"s_cmp_eq_u32 vcc_lo, 0")
                a(f"s_cselect_b32 s{S_PRE}, 1, 0")
                a(f"s_cmp_eq_u32 s{S_A}, 0")
                a(f"s_cselect_b32 s{S_PRE}, 1, s{S_PRE}")
                a(f"s_cmp_eq_u32 s{S_S}, 63")
                a(f"s_cselect_b32 s{S_PRE}, 0, s{S_PRE}")
                a(f"s_cmp_lg_u32 s{S_PRE}, 0")
                a(f"s_cselect_b32 s{S_SRC}, s{S_HIN}, s{S_SRC}")
                DM = dma_x_units(S_SRC, S_TMP + 3)
                a(DM.pop(0))
        else:
            a("s_nop 0")
        if i == 0:
            a(f"v_pk_add_f32 v[{LS}:{LS+1}], v[{b}:{b+1}], v[{b+2}:{b+3}]")
        else:
            a(f"v_pk_add_f32 v[{LS}:{LS+1}], v[{LS}:{LS+1}], v[{b}:{b+1}]")
            a(f"v_pk_add_f32 v[{LS}:{LS+1}], v[{LS}:{LS+1}], v[{b+2}:{b+3}]")
        for k in range(4):
            a(f"v_cvt_pk_bf16_f32 v{PB+k}, v{b+2*k}, v{b+2*k+1}")
        c = "0" if i == 0 else f"v[{OA}:{OA+3}]"
        a(f"v_pk_add_f32 v[{LS}:{LS+1}], v[{LS}:{LS+1}], v[{b+4}:{b+5}]")
        a(f"v_pk_add_f32 v[{LS}:{LS+1}], v[{LS}:{LS+1}], v[{b+6}:{b+7}]")
        a(f"v_mfma_f32_16x16x32_bf16 v[{OA}:{OA+3}], v[{VA+4*i}:{VA+4*i+3}], v[{PB}:{PB+3}], {c}")
    for x in DM: a(x)
    a(f"v_add_f32 v{LS}, v{LS}, v{LS+1}")
    a(f"v_mov_b32 v{T0+6}, v{LS}")
    a("s_nop 1")
    a(f"v_permlane16_swap_b32 v{LS}, v{T0+6}")
    a(f"v_add_f32 v{LS}, v{LS}, v{T0+6}")
    a(f"v_mov_b32 v{T0+6}, v{LS}")
    a("s_nop 1")
    a(f"v_permlane32_swap_b32 v{LS}, v{T0+6}")
    a(f"v_add_f32 v{LS}, v{LS}, v{T0+6}")
    a(f"v_rcp_f32 v{LS}, v{LS}")
    a("s_nop 0")
    for r in range(4):
        a(f"v_mul_f32 v{OA+r}, v{OA+r}, v{LS}")
    a(f"v_cvt_pk_bf16_f32 v{OA}, v{OA}, v{OA+1}")
    a(f"v_cvt_pk_bf16_f32 v{OA+1}, v{OA+2}, v{OA+3}")
    a(f"s_lshl_b32 s{S_TMP+2}, s{S_S}, 15")
    a(f"s_add_u32 s{S_TMP+2}, s{S_TMP+2}, s{S_AOO}")
    a(f"s_add_u32 s{S_AFO}, s{S_AFO}, 256")
    a(f"buffer_store_dword v{OA}, v{V_AOA}, {WS}, s{S_TMP+2} offen sc1")
    a(f"buffer_store_dword v{OA+1}, v{V_AOA}, {WS}, s{S_TMP+2} offen offset:32 sc1")
    a(f"s_mov_b32 s{S_PEND}, 1")
    trace(a, 241, S_S)
    stamp(a, 3, st)
    a(f"s_cmp_eq_u32 s{S_S}, 63")
    a(f"s_cbranch_scc1 Aq_end")
    if not early:
        a(f"s_cmp_lg_u32 s{S_PRE}, 0")
        a(f"s_cbranch_scc1 {uid}_have")
        a(f"buffer_load_dword v{T0+7}, v{V_HF}, {WS}, s{S_HFO} offen sc1")
        a("s_waitcnt vmcnt(0)")
        out_flag(a)
        lab = f"{uid}_w"
        a.label(lab)
        a(f"v_cmp_eq_u32 vcc, 0, v{T0+7}")
        a("s_nop 0")
        a(f"s_cmp_eq_u32 vcc_lo, 0")
        a(f"s_cbranch_scc1 {lab}_ok")
        a(f"s_sub_u32 s{S_TMO}, s{S_TMO}, 1")
        a(f"s_cbranch_scc1 {lab}_ok")
        backoff(a)
        a(f"buffer_load_dword v{T0+7}, v{V_HF}, {WS}, s{S_HFO} offen sc1")
        a("s_waitcnt vmcnt(0)")
        a(f"s_branch {lab}")
        a.label(lab + "_ok")
        a(f"s_sub_u32 s{S_TMP+3}, {2*L_X + XBUF}, s{S_BUF}")
        dma_x(a, S_HIN, S_TMP + 3)
        a("s_waitcnt vmcnt(0)")
        a(f"s_branch Aq_go")
        a.label(f"{uid}_have")
        a("s_waitcnt vmcnt(2)")
    else:
        a("s_waitcnt vmcnt(2)")
    a(f"s_branch Aq_go")

def role_Aq_main(a, uid="Aq", st=False):
    WS = f"s[{S_WS}:{S_WS+3}]"
    if st: stamps_init(a)
    a(f"s_mov_b32 s{S_EARLY}, 0")
    a(f"s_cmp_eq_u32 s{S_A}, 0")
    a(f"s_cbranch_scc1 {uid}_f0")
    lab = f"{uid}_w0"
    a.label(lab)
    a(f"buffer_load_dword v{T0+7}, v{V_HF}, {WS}, s{S_HFO} offen sc1")
    a("s_waitcnt vmcnt(0)")
    a(f"v_cmp_eq_u32 vcc, 0, v{T0+7}")
    a("s_nop 0")
    a(f"s_cmp_eq_u32 vcc_lo, 0")
    a(f"s_cbranch_scc1 {uid}_f0")
    backoff(a)
    a(f"s_sub_u32 s{S_TMO}, s{S_TMO}, 1")
    a(f"s_cbranch_scc0 {lab}")
    a.label(f"{uid}_f0")
    dma_x(a, S_HIN, S_BUF)
    a("s_waitcnt vmcnt(0)")
    a("s_barrier")
    a.label(f"Aq_item")
    a(f"s_cmp_lg_u32 s{S_EARLY}, 0")
    a(f"s_cbranch_scc1 Aq_early")
    role_Aq_item(a, "Aql", False, st)
    a.label("Aq_early")
    role_Aq_item(a, "Aqe", True, st)
    a.label(f"Aq_go")
    a(f"s_sub_u32 s{S_TMP+3}, {2*L_X + XBUF}, s{S_BUF}")
    a(f"s_sub_u32 s{S_TMP+2}, s{S_TMP+3}, s{S_BUF}")
    for q in range(4):
        a(f"v_add_u32 v{XA+q}, s{S_TMP+2}, v{XA+q}")
    a(f"s_mov_b32 s{S_BUF}, s{S_TMP+3}")
    a(f"s_add_u32 s{S_S}, s{S_S}, 1")
    a("s_barrier")
    if st:
        stamp(a, 4); stamp(a, 5); stamp(a, 6); stamp(a, 7); stamp(a, 8); stamps_accumulate(a)
    a(f"s_branch Aq_item")
    a.label(f"Aq_end")
    a("s_waitcnt vmcnt(0)")
    out_flag(a)
    a("s_waitcnt vmcnt(0)")
    if st: stamps_store(a)
```

```python
from common import *
L_Y = 65536
V_L16, V_XRD, V_OF, V_PST, V_INR, V_YW, V_YR, V_Z = 1, 2, 3, 4, 5, 6, 7, 8
SEL = 12
XF = 24
ACC = 56
MSG = 72
INA, INB, RD = 80, 84, 88
Y_, RES, TT = 96, 104, 108
W_ = 0
S_S, S_OBO, S_OFO, S_BUF, S_PRE, S_INS, S_TAG, S_XIN, S_XOUT, S_HOUT, S_HFO, S_PEND, S_OINB = 18, 19, 20, 21, 22, 23, 24, 25, 26, 27, 28, 29, 30
S_LO8 = 32
S_M0, S_M1 = 40, 42
S_EARLY = 31
S_OUT = 36
S_TMP = 44

def role_O_prologue(a):
    a.c("===== O prologue =====")
    a(f"s_lshr_b32 s18, s{S_H}, 2")
    a(f"s_lshl_b32 s18, s18, 19")
    a(f"s_and_b32 s19, s{S_H}, 3")
    a(f"s_lshl_b32 s19, s19, 8")
    a(f"s_add_u32 s18, s18, s19")
    load_slabs(a, [(KA_WO, 'a', W_)], tmp=24, row_shift=10, nbytes=H * DH * D * 2, base_sgpr=18)
    n, g, t = 24, 25, 26
    a(f"v_and_b32 v{n}, 15, v0")
    a(f"v_lshrrev_b32 v{g}, 4, v0")
    a(f"v_lshlrev_b32 v{V_L16}, 4, v0")
    a(f"v_mov_b32 v{V_XRD}, v{V_L16}")
    a(f"v_mov_b32 v{V_Z}, 0")
    a(f"v_and_b32 v{t}, 7, v0")
    a(f"v_lshlrev_b32 v{V_OF}, 2, v{t}")
    a(f"v_bfe_u32 v{t}, v0, 3, 1")
    a(f"v_lshl_add_u32 v{V_OF}, v{t}, 8, v{V_OF}")
    a(f"s_lshr_b32 s16, s{S_H}, 2")
    a(f"s_lshl_b32 s16, s16, 5")
    a(f"v_add_u32 v{V_OF}, s16, v{V_OF}")
    a(f"v_lshlrev_b32 v{V_PST}, 13, v{n}")
    a(f"v_lshl_add_u32 v{V_PST}, v{g}, 4, v{V_PST}")
    a(f"s_lshr_b32 s16, s{S_H}, 2")
    a(f"s_lshl_b32 s16, s16, 10")
    a(f"s_and_b32 s17, s{S_H}, 3")
    a(f"s_lshl_b32 s17, s17, 8")
    a(f"s_add_u32 s16, s16, s17")
    a(f"s_lshl_b32 s17, s{S_W}, 6")
    a(f"s_add_u32 s16, s16, s17")
    a(f"v_add_u32 v{V_PST}, s16, v{V_PST}")
    a(f"v_lshlrev_b32 v{V_INR}, 10, v{g}")
    a(f"v_lshl_add_u32 v{V_INR}, v{n}, 4, v{V_INR}")
    a(f"s_lshl_b32 s16, s{S_H}, 13")
    a(f"s_lshl_b32 s17, s{S_W}, 8")
    a(f"s_add_u32 s16, s16, s17")
    a(f"v_add_u32 v{V_INR}, s16, v{V_INR}")
    a(f"v_lshl_add_u32 v{t}, v{g}, 5, v{n}")
    a(f"s_lshl_b32 s16, s{S_W}, 7")
    a(f"v_add_u32 v{t}, s16, v{t}")
    a(f"v_lshlrev_b32 v{V_YW}, 2, v{t}")
    a(f"v_add_u32 v{V_YW}, {L_Y}, v{V_YW}")
    a(f"v_lshlrev_b32 v{V_YR}, 5, v0")
    a(f"v_add_u32 v{V_YR}, {L_Y}, v{V_YR}")
    build_sel(a, SEL, n, t)
    a(f"s_mov_b32 s{S_LO8}, 0x00FF00FF")
    a(f"s_mov_b32 s{S_LO8+1}, 0x00FF00FF")
    a(f"s_mov_b32 s{S_M0}, 0x00FF00FF")
    a(f"s_mov_b32 s{S_M0+1}, 0x00FF00FF")
    a(f"s_mov_b32 s{S_M1}, 0xFF00FF00")
    a(f"s_mov_b32 s{S_M1+1}, 0xFF00FF00")
    a(f"s_mov_b32 s{S_EARLY}, 0")
    a(f"s_mul_i32 s{S_OBO}, s{S_L}, {OB_L}")
    a(f"s_lshr_b32 s16, s{S_H}, 2")
    a(f"s_lshl_b32 s16, s16, 15")
    a(f"s_add_u32 s{S_OBO}, s{S_OBO}, s16")
    a(f"s_add_u32 s{S_OBO}, s{S_OBO}, {OB}")
    a(f"s_mul_i32 s{S_OFO}, s{S_L}, {OF_L}")
    a(f"s_add_u32 s{S_OFO}, s{S_OFO}, {OF}")
    a(f"s_mul_i32 s{S_OINB}, s{S_L}, {OIN_L}")
    a(f"s_add_u32 s{S_OINB}, s{S_OINB}, {OIN}")
    a(f"s_lshl_b32 s16, s{S_L}, 1")
    a(f"s_add_u32 s16, s16, 1")
    a(f"s_mul_i32 s{S_XIN}, s16, {ROWS_J}")
    a(f"s_lshl_b32 s17, s{S_H}, 10")
    a(f"s_add_u32 s{S_XIN}, s{S_XIN}, s17")
    a(f"s_add_u32 s{S_XIN}, s{S_XIN}, {XB}")
    a(f"s_add_u32 s{S_XOUT}, s17, {XB + 2*ROWS_J}")
    a(f"s_add_u32 s{S_HOUT}, s17, {HB + 2*ROWS_J}")
    a(f"s_lshl_b32 s{S_HFO}, s{S_H}, 2")
    a(f"s_add_u32 s{S_HFO}, s{S_HFO}, {HF + 2*HF_J}")
    srd_from_kernarg(a, S_OUT, KA_OUT, S * D * 2)
    a(f"s_mov_b32 s{S_S}, 0")
    a(f"s_mov_b32 s{S_BUF}, 0")
    a(f"s_mov_b32 s{S_PEND}, 0")

def dma_o(a, sbuf):
    a(f"s_sub_u32 s{S_TMP}, s{S_W}, 1")
    a(f"s_lshl_b32 s{S_TMP}, s{S_TMP}, 10")
    a(f"s_add_u32 s{S_TMP+1}, s{S_TMP}, s{sbuf}")
    a(f"s_add_u32 s{S_TMP}, s{S_TMP}, s{S_OBO}")
    for j in range(11):
        if j == 10:
            a(f"s_cmp_eq_u32 s{S_W}, 3")
            a(f"s_cselect_b32 s{S_TMP+3}, 1024, 0")
            a(f"s_sub_u32 s{S_TMP}, s{S_TMP}, s{S_TMP+3}")
            a(f"s_sub_u32 s{S_TMP+1}, s{S_TMP+1}, s{S_TMP+3}")
        a(f"s_mov_b32 m0, s{S_TMP+1}")
        a(f"s_add_u32 s{S_TMP+1}, s{S_TMP+1}, 3072")
        a(f"buffer_load_dwordx4 v{V_L16}, s[{S_WS}:{S_WS+3}], s{S_TMP} offen sc1 lds")
        a(f"s_add_u32 s{S_TMP}, s{S_TMP}, 3072")

def dma_o_units3(sbuf):
    A = Asm(); dma_o(A, sbuf)
    L = [x.strip() for x in A.L]
    units = ["\n  ".join(L[:4])]
    L = L[4:]
    cur = []
    for x in L:
        cur.append(x)
        if x.startswith("s_add_u32") and "3072" in x and len(cur) >= 4 and cur[-2].startswith("buffer_load"):
            units.append("\n  ".join(cur)); cur = []
    assert not cur and len(units) == 12
    return units

def oflag_wait(a, uid):
    WS = f"s[{S_WS}:{S_WS+3}]"
    lab = f"ofw_{uid}"
    a.label(lab)
    a(f"buffer_load_dword v20, v{V_OF}, {WS}, s{S_OFO} offen sc1")
    a("s_waitcnt vmcnt(0)")
    a(f"v_cmp_eq_u32 vcc, 0, v20")
    a(f"s_and_b64 vcc, vcc, s[{S_M0}:{S_M0+1}]")
    a(f"s_cbranch_scc0 {lab}_ok")
    a(f"s_sub_u32 s{S_TMO}, s{S_TMO}, 1")
    a(f"s_cbranch_scc1 {lab}_ok")
    backoff(a)
    a(f"s_branch {lab}")
    a.label(lab + "_ok")

def dma_o_units(ssrc, sbuf):
    u = [f"s_lshl_b32 s{S_TMP}, s{S_W}, 13\n  s_add_u32 s{S_TMP+1}, s{S_TMP}, s{sbuf}\n  s_add_u32 s{S_TMP}, s{S_TMP}, s{ssrc}\n  s_mov_b32 m0, s{S_TMP+1}\n  s_nop 0"]
    for half in range(2):
        if half: u.append(f"s_add_u32 m0, s{S_TMP+1}, 4096\n  s_add_u32 s{S_TMP}, s{S_TMP}, 4096")
        for j in range(4):
            u.append(f"buffer_load_dwordx4 v{V_L16}, s[{S_WS}:{S_WS+3}], s{S_TMP} offen offset:{1024*j} sc1 lds")
    return u

def role_O_main(a, layer, local=True, uid="O", st=False):
    WS = f"s[{S_WS}:{S_WS+3}]"
    stf = "" if local else "sc1"
    ldf = "nt" if local else "sc1"
    if st: stamps_init(a)
    a(f"s_cmp_eq_u32 s{S_W}, 0")
    a(f"s_cbranch_scc1 {uid}_first")
    oflag_wait(a, uid + "0")
    dma_o(a, S_BUF)
    a("s_waitcnt vmcnt(0)")
    a.label(f"{uid}_first")
    a("s_barrier")
    a.label(f"{uid}_item")
    a.lg = []
    trace(a, 9, S_S)
    stamp(a, 0, st)
    a(f"s_add_u32 s{S_OFO}, s{S_OFO}, {64*4}")
    a(f"s_add_u32 s{S_OBO}, s{S_OBO}, {32*8192}")
    a(f"buffer_load_dwordx4 v[{RES}:{RES+3}], v{V_L16}, {WS}, s{S_XIN} offen sc1")
    a(f"buffer_load_dword v22, v{V_OF}, {WS}, s{S_OFO} offen sc1")
    a(f"s_and_b32 s{S_TMP}, s{S_S}, 1")
    a(f"s_mul_i32 s{S_TMP}, s{S_TMP}, {OIN_SLOT}")
    a(f"s_add_u32 s{S_INS}, s{S_TMP}, s{S_OINB}")
    a(f"s_bfe_u32 s{S_TAG}, s{S_S}, 0x10001")
    def xread(ks, slot):
        r = XF + 8 * slot
        hh, k4 = ks // 4, ks % 4
        a.ds(f"ds_read_b128 v[{r}:{r+3}], v{V_XRD} offset:{hh*8192 + k4*1024}", f"x{ks}")
        a.ds(f"ds_read_b128 v[{r+4}:{r+7}], v{V_XRD} offset:{hh*8192 + 4096 + k4*1024}", f"x{ks}")
    for ks in range(3): xread(ks, ks)
    def xread1(ks, slot, tt):
        r = XF + 8 * slot + 4 * tt
        hh, k4 = ks // 4, ks % 4
        a.ds(f"ds_read_b128 v[{r}:{r+3}], v{V_XRD} offset:{hh*8192 + 4096*tt + k4*1024}", f"x{ks}")
    def mfma_loop(DM):
        a.ds_wait("x0")
        for ks in range(16):
            r = XF + 8 * (ks % 4)
            i = 0
            for t in range(2):
                for tt in range(2):
                    d = ACC + 8*t + 4*tt; wr = W_ + t * 64 + ks * 4
                    c = "0" if ks == 0 else f"v[{d}:{d+3}]"
                    a(f"v_mfma_f32_16x16x32_bf16 v[{d}:{d+3}], a[{wr}:{wr+3}], v[{r+4*tt}:{r+4*tt+3}], {c}")
                    if i in (0, 1) and ks + 3 < 16: xread1(ks + 3, (ks + 3) % 4, i)
                    if i == 2 and ks + 1 < 16: a.ds_wait(f"x{ks+1}")
                    if i == 3 and DM: a(DM.pop(0))
                    i += 1
        assert not DM
    a(f"s_mov_b32 s{S_PRE}, s{S_EARLY}")
    a(f"s_cmp_lg_u32 s{S_EARLY}, 0")
    a(f"s_cbranch_scc1 {uid}_mearly")
    sv = list(a.lg)
    mfma_loop([])
    a(f"s_branch {uid}_mdone")
    a.label(f"{uid}_mearly")
    a.lg = sv
    a(f"s_sub_u32 s{S_TMP+2}, 32768, s{S_BUF}")
    mfma_loop(dma_o_units3(S_TMP + 2))
    a.label(f"{uid}_mdone")
    stamp(a, 1, st)
    a.nops(6)
    for tt in range(2):
        mq = MSG + 4 * tt
        A0, A1 = ACC + 4*tt, ACC + 8 + 4*tt
        a(f"v_cvt_pk_bf16_f32 v{mq}, v{A0}, v{A0+1}")
        a(f"v_cvt_pk_bf16_f32 v{mq+1}, v{A0+2}, v{A0+3}")
        a(f"v_cvt_pk_bf16_f32 v{mq+2}, v{A1}, v{A1+1}")
        a(f"v_cvt_pk_bf16_f32 v{mq+3}, v{A1+2}, v{A1+3}")
        a(f"v_bfi_b32 v{mq}, 1, s{S_TAG}, v{mq}")
        a(f"s_add_u32 s{S_TMP}, s{S_INS}, {tt * 16 * 8192}")
        a(f"buffer_store_dwordx4 v[{mq}:{mq+3}], v{V_PST}, {WS}, s{S_TMP} offen {stf}")
    a("s_waitcnt vmcnt(0)")
    stamp(a, 2, st)
    def both():
        a(f"buffer_load_dwordx4 v[{INA}:{INA+3}], v{V_INR}, {WS}, s{S_INS} offen {ldf}")
        a(f"s_add_u32 s{S_TMP}, s{S_INS}, 4096")
        a(f"buffer_load_dwordx4 v[{INB}:{INB+3}], v{V_INR}, {WS}, s{S_TMP} offen {ldf}")
    lab = f"{uid}_in"
    both()
    a("s_waitcnt vmcnt(0)")
    a.label(lab)
    a(f"v_bitop3_b32 v21, v{INA}, v{INB}, s{S_TAG} bitop3:0x7E")
    a(f"v_and_b32 v21, 1, v21")
    a("v_cmp_ne_u32 vcc, 0, v21")
    a(f"s_cbranch_vccz {lab}_ok")
    a(f"s_sub_u32 s{S_TMO}, s{S_TMO}, 1")
    a(f"s_cbranch_scc1 {lab}_ok")
    a("s_mov_b64 exec, vcc")
    both()
    a("s_waitcnt vmcnt(0)")
    a(f"s_branch {lab}")
    a.label(lab + "_ok")
    a("s_mov_b64 exec, -1")
    a(f"buffer_load_dword v20, v{V_OF}, {WS}, s{S_OFO} offen sc1")
    a.nops(3)
    a(f"v_mfma_f32_16x16x32_bf16 v[{RD}:{RD+3}], v[{INA}:{INA+3}], v[{SEL}:{SEL+3}], 0")
    a(f"v_mfma_f32_16x16x32_bf16 v[{RD}:{RD+3}], v[{INB}:{INB+3}], v[{SEL}:{SEL+3}], v[{RD}:{RD+3}]")
    a.nops(8)
    a(f"s_mov_b64 exec, s[{S_LO8}:{S_LO8+1}]")
    for r in range(4):
        a(f"ds_write_b32 v{V_YW}, v{RD+r} offset:{32*r}")
    a("s_mov_b64 exec, -1")
    a("s_waitcnt lgkmcnt(0)")
    a("s_barrier")
    stamp(a, 3, st)
    fin = f"{uid}_fin"
    nst = 2 if layer == 0 else 1
    a(f"s_cmp_lg_u32 s{S_W}, 0")
    a(f"s_cbranch_scc1 {fin}")
    a(f"ds_read_b128 v[{Y_}:{Y_+3}], v{V_YR}")
    a(f"ds_read_b128 v[{Y_+4}:{Y_+7}], v{V_YR} offset:16")
    a("s_waitcnt lgkmcnt(0)")
    row_finish(a, Y_, RES, TT, with_ln=(layer == 0))
    if layer == 0:
        a(f"buffer_store_dwordx4 v[{TT}:{TT+3}], v{V_L16}, {WS}, s{S_HOUT} offen sc1")
        a(f"buffer_store_dwordx4 v[{RES}:{RES+3}], v{V_L16}, {WS}, s{S_XOUT} offen sc1")
    else:
        a(f"s_lshl_b32 s{S_TMP}, s{S_S}, 15")
        a(f"s_lshl_b32 s{S_TMP+1}, s{S_H}, 10")
        a(f"s_add_u32 s{S_TMP}, s{S_TMP}, s{S_TMP+1}")
        a(f"buffer_store_dwordx4 v[{RES}:{RES+3}], v{V_L16}, s[{S_OUT}:{S_OUT+3}], s{S_TMP} offen")
    trace(a, 10, S_S)
    stamp(a, 4, st)
    def hflag():
        if layer == 0:
            a(f"v_mov_b32 v21, 1")
            a("s_mov_b64 exec, 1")
            a(f"buffer_store_dword v21, v{V_Z}, {WS}, s{S_HFO} offen sc1")
            a("s_mov_b64 exec, -1")
    a("s_waitcnt vmcnt(0)")
    hflag()
    a(f"s_cmp_eq_u32 s{S_S}, 63")
    a(f"s_cbranch_scc1 {uid}_end")
    a(f"s_branch {uid}_go")
    a.label(fin)
    stamp(a, 4, st)
    a(f"s_cmp_eq_u32 s{S_S}, 63")
    a(f"s_cbranch_scc1 {uid}_end")
    def look():
        a("v_cmp_eq_u32 vcc, 0, v20")
        a(f"s_and_b64 s[{S_TMP}:{S_TMP+1}], vcc, s[{S_M1}:{S_M1+1}]")
        a(f"s_cselect_b32 s{S_EARLY}, 0, 1")
        a(f"s_cmp_ge_u32 s{S_S}, 62")
        a(f"s_cselect_b32 s{S_EARLY}, 0, s{S_EARLY}")
        a(f"s_and_b64 vcc, vcc, s[{S_M0}:{S_M0+1}]")
    a(f"s_cmp_eq_u32 s{S_PRE}, 0")
    a(f"s_cbranch_scc1 {uid}_late")
    a("v_cmp_eq_u32 vcc, 0, v22")
    a(f"s_and_b64 s[{S_TMP}:{S_TMP+1}], vcc, s[{S_M1}:{S_M1+1}]")
    a(f"s_cselect_b32 s{S_EARLY}, 0, 1")
    a(f"s_cmp_ge_u32 s{S_S}, 62")
    a(f"s_cselect_b32 s{S_EARLY}, 0, s{S_EARLY}")
    a(f"s_branch {uid}_go")
    a.label(f"{uid}_late")
    a("s_waitcnt vmcnt(0)")
    look()
    a(f"s_cbranch_scc0 {uid}_chk")
    oflag_wait(a, uid + "1")
    look()
    a(f"s_branch {uid}_copy")
    a.label(f"{uid}_chk")
    a(f"s_cmp_lg_u32 s{S_PRE}, 0")
    a(f"s_cbranch_scc1 {uid}_go")
    a.label(f"{uid}_copy")
    a(f"s_sub_u32 s{S_TMP+2}, 32768, s{S_BUF}")
    dma_o(a, S_TMP + 2)
    a("s_waitcnt vmcnt(0)")
    a.label(f"{uid}_go")
    stamp(a, 5, st)
    a(f"s_sub_u32 s{S_TMP+2}, 32768, s{S_BUF}")
    a(f"s_sub_u32 s{S_TMP}, s{S_TMP+2}, s{S_BUF}")
    a(f"v_add_u32 v{V_XRD}, s{S_TMP}, v{V_XRD}")
    a(f"s_mov_b32 s{S_BUF}, s{S_TMP+2}")
    a(f"s_add_u32 s{S_S}, s{S_S}, 1")
    for sreg in (S_XIN, S_XOUT, S_HOUT):
        a(f"s_add_u32 s{sreg}, s{sreg}, 32768")
    a(f"s_add_u32 s{S_HFO}, s{S_HFO}, 128")
    a("s_barrier")
    if st:
        stamp(a, 6); stamp(a, 7); stamp(a, 8); stamps_accumulate(a)
    a(f"s_branch {uid}_item")
    a.label(f"{uid}_end")
    a("s_waitcnt vmcnt(0)")
    if layer == 0:
        pass
    if st: stamps_store(a)
```

```python
from common import *
L_Y = 131072
V_L16, V_XRD, V_OF, V_PST, V_INR, V_YW, V_YR, V_XR1 = 1, 2, 3, 4, 5, 6, 7, 8
SEL = 12
XF = 24
ACC = 56
MSG = 72
INA, INB, RD0, RD1 = 80, 84, 88, 92
Y_, RES, TT = 96, 104, 108
BUF = 65536
S_S, S_OBO, S_OFO, S_BUF, S_PRE, S_INS, S_TAG, S_XIN, S_OINB, S_EARLY = 18, 19, 20, 21, 22, 23, 24, 25, 30, 31
S_LO8 = 32
S_OUT = 36
S_M0, S_M1 = 40, 42
S_TMP = 44

def role_O16_prologue(a):
    a.c("===== O16 prologue =====")
    for half in range(2):
        a(f"s_lshr_b32 s18, s{S_H}, 2")
        a(f"s_lshl_b32 s18, s18, 20")
        a(f"s_and_b32 s19, s{S_H}, 3")
        a(f"s_lshl_b32 s19, s19, 8")
        a(f"s_add_u32 s18, s18, s19")
        a(f"s_add_u32 s18, s18, {half * 512 * 1024}")
        load_slabs(a, [(KA_WO, 'a', 128 * half)], tmp=24, row_shift=10, nbytes=H * DH * D * 2, base_sgpr=18)
    n, g, t = 24, 25, 26
    a(f"v_and_b32 v{n}, 15, v0")
    a(f"v_lshrrev_b32 v{g}, 4, v0")
    a(f"v_lshlrev_b32 v{V_L16}, 4, v0")
    a(f"v_mov_b32 v{V_XRD}, v{V_L16}")
    a(f"v_add_u32 v{V_XR1}, 32768, v{V_L16}")
    a(f"v_lshlrev_b32 v{V_OF}, 2, v{n}")
    a(f"v_bfe_u32 v{t}, v0, 4, 1")
    a(f"v_lshl_add_u32 v{V_OF}, v{t}, 8, v{V_OF}")
    a(f"s_lshr_b32 s16, s{S_H}, 2")
    a(f"s_lshl_b32 s16, s16, 6")
    a(f"v_add_u32 v{V_OF}, s16, v{V_OF}")
    a(f"v_lshlrev_b32 v{V_PST}, 12, v{n}")
    a(f"v_lshl_add_u32 v{V_PST}, v{g}, 4, v{V_PST}")
    a(f"s_lshr_b32 s16, s{S_H}, 2")
    a(f"s_lshl_b32 s16, s16, 10")
    a(f"s_and_b32 s17, s{S_H}, 3")
    a(f"s_lshl_b32 s17, s17, 8")
    a(f"s_add_u32 s16, s16, s17")
    a(f"s_lshl_b32 s17, s{S_W}, 6")
    a(f"s_add_u32 s16, s16, s17")
    a(f"v_add_u32 v{V_PST}, s16, v{V_PST}")
    a(f"v_lshlrev_b32 v{V_INR}, 10, v{g}")
    a(f"v_lshl_add_u32 v{V_INR}, v{n}, 4, v{V_INR}")
    a(f"s_lshl_b32 s16, s{S_H}, 13")
    a(f"s_lshl_b32 s17, s{S_W}, 8")
    a(f"s_add_u32 s16, s16, s17")
    a(f"v_add_u32 v{V_INR}, s16, v{V_INR}")
    a(f"v_lshl_add_u32 v{t}, v{g}, 5, v{n}")
    a(f"s_lshl_b32 s16, s{S_W}, 7")
    a(f"v_add_u32 v{t}, s16, v{t}")
    a(f"v_lshlrev_b32 v{V_YW}, 2, v{t}")
    a(f"v_add_u32 v{V_YW}, {L_Y}, v{V_YW}")
    a(f"s_and_b32 s16, s{S_W}, 1")
    a(f"s_lshl_b32 s16, s16, 11")
    a(f"s_add_u32 s16, s16, {L_Y}")
    a(f"v_lshlrev_b32 v{V_YR}, 5, v0")
    a(f"v_add_u32 v{V_YR}, s16, v{V_YR}")
    build_sel(a, SEL, n, t)
    a(f"s_mov_b32 s{S_LO8}, 0x00FF00FF")
    a(f"s_mov_b32 s{S_LO8+1}, 0x00FF00FF")
    a(f"s_mov_b32 s{S_M0}, 0x0000FFFF")
    a(f"s_mov_b32 s{S_M0+1}, 0x0000FFFF")
    a(f"s_mov_b32 s{S_M1}, 0xFFFF0000")
    a(f"s_mov_b32 s{S_M1+1}, 0xFFFF0000")
    a(f"s_mov_b32 s{S_EARLY}, 0")
    a(f"s_lshr_b32 s16, s{S_H}, 2")
    a(f"s_lshl_b32 s16, s16, 16")
    a(f"s_add_u32 s{S_OBO}, s16, {OB + OB_L}")
    a(f"s_mov_b32 s{S_OFO}, {OF + OF_L}")
    a(f"s_mov_b32 s{S_OINB}, {OIN + OIN_L}")
    a(f"s_lshl_b32 s16, s{S_H}, 1")
    a(f"s_and_b32 s17, s{S_W}, 1")
    a(f"s_add_u32 s16, s16, s17")
    a(f"s_lshl_b32 s{S_XIN}, s16, 10")
    srd_from_kernarg(a, S_OUT, KA_OUT, S * D * 2)
    a(f"s_mov_b32 s{S_S}, 0")
    a(f"s_mov_b32 s{S_BUF}, 0")

def dma_units(ssrc, sbuf):
    u = [f"s_lshl_b32 s{S_TMP}, s{S_W}, 14\n  s_add_u32 s{S_TMP+1}, s{S_TMP}, s{sbuf}\n  s_add_u32 s{S_TMP}, s{S_TMP}, s{ssrc}\n  s_mov_b32 m0, s{S_TMP+1}\n  s_nop 0"]
    for q in range(4):
        if q: u.append(f"s_add_u32 s{S_TMP+1}, s{S_TMP+1}, 4096\n  s_mov_b32 m0, s{S_TMP+1}\n  s_add_u32 s{S_TMP}, s{S_TMP}, 4096")
        for j in range(4):
            u.append(f"buffer_load_dwordx4 v{V_L16}, s[{S_WS}:{S_WS+3}], s{S_TMP} offen offset:{1024*j} sc1 lds")
    return u
def dma(a, ssrc, sbuf):
    for x in dma_units(ssrc, sbuf): a(x)

def oflag_wait(a, uid):
    WS = f"s[{S_WS}:{S_WS+3}]"
    lab = f"ofw_{uid}"
    a.label(lab)
    a(f"buffer_load_dword v20, v{V_OF}, {WS}, s{S_OFO} offen sc1")
    a("s_waitcnt vmcnt(0)")
    a(f"v_cmp_eq_u32 vcc, 0, v20")
    a(f"s_and_b64 vcc, vcc, s[{S_M0}:{S_M0+1}]")
    a(f"s_cbranch_scc0 {lab}_ok")
    a(f"s_sub_u32 s{S_TMO}, s{S_TMO}, 1")
    a(f"s_cbranch_scc1 {lab}_ok")
    backoff(a)
    a(f"s_branch {lab}")
    a.label(lab + "_ok")

def role_O16_main(a, local=True, uid="O16", st=False):
    if st: stamps_init(a)
    WS = f"s[{S_WS}:{S_WS+3}]"
    stf = "" if local else "sc1"
    ldf = "nt" if local else "sc1"
    oflag_wait(a, uid + "0")
    dma(a, S_OBO, S_BUF)
    a("s_waitcnt vmcnt(0)")
    a("s_barrier")
    a.label(f"{uid}_item")
    a.lg = []
    trace(a, 9, S_S)
    stamp(a, 0, st)
    a(f"s_add_u32 s{S_OFO}, s{S_OFO}, {64*4}")
    a(f"s_add_u32 s{S_OBO}, s{S_OBO}, {32*8192}")
    a(f"s_lshl_b32 s{S_TMP}, s{S_S}, 15")
    a(f"s_add_u32 s{S_TMP}, s{S_TMP}, s{S_XIN}")
    a(f"s_add_u32 s{S_TMP}, s{S_TMP}, {XB + 3*ROWS_J}")
    a(f"buffer_load_dwordx4 v[{RES}:{RES+3}], v{V_L16}, {WS}, s{S_TMP} offen sc1")
    a(f"buffer_load_dword v22, v{V_OF}, {WS}, s{S_OFO} offen sc1")
    a(f"s_and_b32 s{S_TMP}, s{S_S}, 1")
    a(f"s_mul_i32 s{S_TMP}, s{S_TMP}, {32*4096}")
    a(f"s_add_u32 s{S_INS}, s{S_TMP}, s{S_OINB}")
    a(f"s_bfe_u32 s{S_TAG}, s{S_S}, 0x10001")
    def xread(ks, slot):
        r = XF + 8 * slot
        hh, k4 = ks // 4, ks % 4
        vb = V_XRD if hh < 4 else V_XR1
        o = (hh % 4) * 8192 + k4 * 1024
        a.ds(f"ds_read_b128 v[{r}:{r+3}], v{vb} offset:{o}", f"x{ks}")
        a.ds(f"ds_read_b128 v[{r+4}:{r+7}], v{vb} offset:{o + 4096}", f"x{ks}")
    for ks in range(3): xread(ks, ks)
    a(f"s_sub_u32 s{S_TMP+3}, s{S_OBO}, {32*8192}")
    a(f"s_cmp_lg_u32 s{S_EARLY}, 0")
    a(f"s_cselect_b32 s{S_TMP+3}, s{S_OBO}, s{S_TMP+3}")
    a(f"s_sub_u32 s{S_TMP+2}, {BUF}, s{S_BUF}")
    a(f"s_mov_b32 s{S_PRE}, s{S_EARLY}")
    DM = dma_units(S_TMP + 3, S_TMP + 2)
    def xread1(ks, slot, tt):
        r = XF + 8 * slot + 4 * tt
        hh, k4 = ks // 4, ks % 4
        vb = V_XRD if hh < 4 else V_XR1
        a.ds(f"ds_read_b128 v[{r}:{r+3}], v{vb} offset:{(hh % 4) * 8192 + k4 * 1024 + 4096 * tt}", f"x{ks}")
    a.ds_wait("x0")
    for ks in range(32):
        r = XF + 8 * (ks % 4)
        i = 0
        for t in range(2):
            for tt in range(2):
                d = ACC + 8*t + 4*tt; wr = (ks // 16) * 128 + t * 64 + (ks % 16) * 4
                c = "0" if ks == 0 else f"v[{d}:{d+3}]"
                a(f"v_mfma_f32_16x16x32_bf16 v[{d}:{d+3}], a[{wr}:{wr+3}], v[{r+4*tt}:{r+4*tt+3}], {c}")
                if i in (0, 1) and ks + 3 < 32: xread1(ks + 3, (ks + 3) % 4, i)
                if i == 2 and ks + 1 < 32: a.ds_wait(f"x{ks+1}")
                if i == 3 and DM: a(DM.pop(0))
                i += 1
    assert not DM
    stamp(a, 1, st)
    a.nops(6)
    for tt in range(2):
        mq = MSG + 4 * tt
        A0, A1 = ACC + 4*tt, ACC + 8 + 4*tt
        a(f"v_cvt_pk_bf16_f32 v{mq}, v{A0}, v{A0+1}")
        a(f"v_cvt_pk_bf16_f32 v{mq+1}, v{A0+2}, v{A0+3}")
        a(f"v_cvt_pk_bf16_f32 v{mq+2}, v{A1}, v{A1+1}")
        a(f"v_cvt_pk_bf16_f32 v{mq+3}, v{A1+2}, v{A1+3}")
        a(f"v_bfi_b32 v{mq}, 1, s{S_TAG}, v{mq}")
        a(f"s_add_u32 s{S_TMP}, s{S_INS}, {tt * 16 * 4096}")
        a(f"buffer_store_dwordx4 v[{mq}:{mq+3}], v{V_PST}, {WS}, s{S_TMP} offen {stf}")
    a("s_waitcnt vmcnt(0)")
    stamp(a, 2, st)
    def both():
        a(f"buffer_load_dwordx4 v[{INA}:{INA+3}], v{V_INR}, {WS}, s{S_INS} offen {ldf}")
        a(f"s_add_u32 s{S_TMP}, s{S_INS}, 4096")
        a(f"buffer_load_dwordx4 v[{INB}:{INB+3}], v{V_INR}, {WS}, s{S_TMP} offen {ldf}")
    lab = f"{uid}_in"
    both()
    a("s_waitcnt vmcnt(0)")
    a.label(lab)
    a(f"v_bitop3_b32 v21, v{INA}, v{INB}, s{S_TAG} bitop3:0x7E")
    a(f"v_and_b32 v21, 1, v21")
    a("v_cmp_ne_u32 vcc, 0, v21")
    a(f"s_cbranch_vccz {lab}_ok")
    a(f"s_sub_u32 s{S_TMO}, s{S_TMO}, 1")
    a(f"s_cbranch_scc1 {lab}_ok")
    a("s_mov_b64 exec, vcc")
    both()
    a("s_waitcnt vmcnt(0)")
    a(f"s_branch {lab}")
    a.label(lab + "_ok")
    a("s_mov_b64 exec, -1")
    stamp(a, 3, st)
    a(f"buffer_load_dword v20, v{V_OF}, {WS}, s{S_OFO} offen sc1")
    a.nops(3)
    a(f"v_mfma_f32_16x16x32_bf16 v[{RD0}:{RD0+3}], v[{INA}:{INA+3}], v[{SEL}:{SEL+3}], 0")
    a(f"v_mfma_f32_16x16x32_bf16 v[{RD1}:{RD1+3}], v[{INB}:{INB+3}], v[{SEL}:{SEL+3}], 0")
    a.nops(8)
    a(f"s_mov_b64 exec, s[{S_LO8}:{S_LO8+1}]")
    for r in range(4):
        a(f"ds_write_b32 v{V_YW}, v{RD0+r} offset:{32*r}")
        a(f"ds_write_b32 v{V_YW}, v{RD1+r} offset:{32*r + 2048}")
    a("s_mov_b64 exec, -1")
    a("s_waitcnt lgkmcnt(0)")
    a("s_barrier")
    stamp(a, 4, st)
    fin = f"{uid}_fin"
    a(f"s_cmp_ge_u32 s{S_W}, 2")
    a(f"s_cbranch_scc1 {fin}")
    a(f"ds_read_b128 v[{Y_}:{Y_+3}], v{V_YR}")
    a(f"ds_read_b128 v[{Y_+4}:{Y_+7}], v{V_YR} offset:16")
    a("s_waitcnt lgkmcnt(0)")
    row_finish(a, Y_, RES, TT, with_ln=False)
    a(f"s_lshl_b32 s{S_TMP}, s{S_S}, 15")
    a(f"s_add_u32 s{S_TMP}, s{S_TMP}, s{S_XIN}")
    a(f"buffer_store_dwordx4 v[{RES}:{RES+3}], v{V_L16}, s[{S_OUT}:{S_OUT+3}], s{S_TMP} offen")
    trace(a, 10, S_S)
    a.label(fin)
    stamp(a, 5, st)
    a(f"s_cmp_eq_u32 s{S_S}, {O2_SPLIT - 1}")
    a(f"s_cbranch_scc1 {uid}_end")
    a(f"s_cmp_eq_u32 s{S_PRE}, 0")
    a(f"s_cbranch_scc1 {uid}_late")
    a("v_cmp_eq_u32 vcc, 0, v22")
    a(f"s_and_b64 s[{S_TMP}:{S_TMP+1}], vcc, s[{S_M1}:{S_M1+1}]")
    a(f"s_cselect_b32 s{S_EARLY}, 0, 1")
    a(f"s_cmp_ge_u32 s{S_S}, {O2_SPLIT - 2}")
    a(f"s_cselect_b32 s{S_EARLY}, 0, s{S_EARLY}")
    a(f"s_branch {uid}_go")
    a.label(f"{uid}_late")
    a(f"s_cmp_ge_u32 s{S_W}, 2")
    a(f"s_cbranch_scc1 {uid}_w23")
    a("s_waitcnt vmcnt(1)")
    a(f"s_branch {uid}_lk")
    a.label(f"{uid}_w23")
    a("s_waitcnt vmcnt(0)")
    a.label(f"{uid}_lk")
    def look():
        a("v_cmp_eq_u32 vcc, 0, v20")
        a(f"s_and_b64 s[{S_TMP}:{S_TMP+1}], vcc, s[{S_M1}:{S_M1+1}]")
        a(f"s_cselect_b32 s{S_EARLY}, 0, 1")
        a(f"s_cmp_ge_u32 s{S_S}, {O2_SPLIT - 2}")
        a(f"s_cselect_b32 s{S_EARLY}, 0, s{S_EARLY}")
        a(f"s_and_b64 vcc, vcc, s[{S_M0}:{S_M0+1}]")
    look()
    a(f"s_cbranch_scc0 {uid}_chk")
    oflag_wait(a, uid + "1")
    look()
    a(f"s_branch {uid}_copy")
    a.label(f"{uid}_chk")
    a(f"s_cmp_lg_u32 s{S_PRE}, 0")
    a(f"s_cbranch_scc1 {uid}_go")
    a.label(f"{uid}_copy")
    a(f"s_sub_u32 s{S_TMP+2}, {BUF}, s{S_BUF}")
    dma(a, S_OBO, S_TMP + 2)
    a("s_waitcnt vmcnt(0)")
    a.label(f"{uid}_go")
    stamp(a, 6, st)
    a(f"s_sub_u32 s{S_TMP+2}, {BUF}, s{S_BUF}")
    a(f"s_sub_u32 s{S_TMP}, s{S_TMP+2}, s{S_BUF}")
    a(f"v_add_u32 v{V_XRD}, s{S_TMP}, v{V_XRD}")
    a(f"v_add_u32 v{V_XR1}, s{S_TMP}, v{V_XR1}")
    a(f"s_mov_b32 s{S_BUF}, s{S_TMP+2}")
    a(f"s_add_u32 s{S_S}, s{S_S}, 1")
    a("s_barrier")
    if st:
        stamp(a, 7); stamp(a, 8); stamps_accumulate(a)
    a(f"s_branch {uid}_item")
    a.label(f"{uid}_end")
    a("s_waitcnt vmcnt(0)")
    if st: stamps_store(a)
```

```python
from common import *
from common import trace as ptrace

L_WO   = 0
L_SM   = 131072
L_MEM  = L_SM
L_KX   = L_SM + 8192
L_VX   = L_SM + 16384
L_Q    = L_SM + 24576
L_K    = L_Q + 2304
L_O    = L_K + 2304
L_SEL  = L_O + 2048
assert L_SEL + 1024 <= 163840
QS = 288

V_L16, V_WO0, V_WO1, V_QW, V_QR, V_KR, V_OW, V_VXR = 1, 2, 3, 4, 5, 6, 7, 8
V_IDX, V_MP, V_MW, V_PST, V_INR, V_PUB, V_SH = 9, 10, 11, 12, 13, 14, 15
MSGQ = 16
V_T = 20
A_MEM = 24
ACC_Q0, ACC_Q1, ACC_K0, ACC_K1, ACC_V0, ACC_V1 = 56, 60, 64, 68, 72, 76
Q_OP = 80
KX_OP = 96
WQ, WK = 0, 128
WV = 128
S_S, S_MEMS, S_TAG = 16, 17, 18
S_IN0 = 20
S_PS0 = 24
S_HI8, S_LO8, S_PUBM = 28, 30, 32
S_KXO, S_VXO, S_KMO, S_TFO = 34, 35, 36, 38
S_C = 40
S_PUBS, S_RSTS = 41, 42
S_TMP = 44
S_PB0 = 76
S_INB = 80
S_TFOK = 82
S_W64 = 83
S_NDUP = 96
S_RINGB = 81
S_STAMP = 50
S_ACC = 68

def smf(a, acc, aop, wfile, wreg):
    w = f"a[{wreg}:{wreg+7}]" if wfile == 'a' else f"v[{wreg}:{wreg+7}]"
    a(f"v_smfmac_f32_16x16x64_bf16 v[{acc}:{acc+3}], v[{aop}:{aop+3}], {w}, v{V_IDX}")

def timeout_check(a, lab_fail_to):
    a(f"s_sub_u32 s{S_TMO}, s{S_TMO}, 1")
    a(f"s_cbranch_scc1 {lab_fail_to}")

def role_R_prologue(a):
    a.c("===== R prologue =====")
    load_qkv_weights(a, [(KA_WQ, 'a', WQ), (KA_WK, 'a', WK), (KA_WV, 'v', WV)], tmp=24)
    srd_from_kernarg(a, S_T0, KA_WO, H * DH * D * 2)
    a(f"v_lshlrev_b32 v24, 4, v0")
    a(f"s_lshl_b32 s16, s{S_H}, 17")
    a(f"s_lshl_b32 s17, s{S_W}, 15")
    a(f"s_add_u32 s16, s16, s17")
    a(f"s_add_u32 s17, s17, 32768")
    for j in range(32):
        key = (j & 3) + 4 * ((j >> 3) & 1)
        a(f"v_xor_b32 v25, {key << 5}, v24")
        a(f"s_mov_b32 m0, s17")
        a(f"s_add_u32 s17, s17, 1024")
        a(f"buffer_load_dwordx4 v25, s[{S_T0}:{S_T0+3}], s16 offen lds")
        a(f"s_add_u32 s16, s16, 1024")
    a("v_lshrrev_b32 v26, 4, v0")
    a("v_bfe_u32 v27, v0, 2, 2")
    a("v_lshl_add_u32 v28, v26, 3, v27")
    a("v_lshlrev_b32 v28, 10, v28")
    a("v_and_b32 v26, 1, v26")
    a("v_lshl_add_u32 v27, v26, 2, v27")
    a("v_lshl_add_u32 v28, v27, 5, v28")
    a("v_and_b32 v26, 3, v0")
    a("v_lshl_add_u32 v28, v26, 3, v28")
    a(f"s_lshl_b32 s16, s{S_W}, 8")
    a("v_add_u32 v28, s16, v28")
    a("v_add_u32 v28, 0x8000, v28")
    a(f"s_lshl_b32 s16, s{S_W}, 13")
    a("v_lshlrev_b32 v29, 4, v0")
    a("v_add_u32 v29, s16, v29")
    for tp in range(8):
        a(f"s_add_u32 s16, s{S_H}, {tp >> 2}")
        a(f"s_and_b32 s16, s16, 1")
        a(f"s_lshl_b32 s16, s16, 2")
        a(f"s_or_b32 s16, s16, {tp & 3}")
        a(f"s_lshl_b32 s{24 + tp}, s16, 5")
    a("s_waitcnt vmcnt(0)")
    a("s_barrier")
    for c in range(4):
        for tt in range(8):
            a(f"v_xor_b32 v30, s{24 + tt}, v28")
            for p in range(2):
                r = 32 + tt * 4 + 2 * p
                a(f"ds_read_b64_tr_b16 v[{r}:{r+1}], v30 offset:{p * 4096}")
        a("s_waitcnt lgkmcnt(0)")
        for tt in range(8):
            r = 32 + tt * 4
            a(f"ds_write_b128 v29, v[{r}:{r+3}] offset:{tt * 1024}")
        a("v_add_u32 v28, 0x8000, v28")
        a("v_add_u32 v29, 0x8000, v29")
        a("s_waitcnt lgkmcnt(0)")
        a("s_barrier")
    a.c("lane constants")
    n, g, t, u = 24, 25, 26, 27
    a(f"v_and_b32 v{n}, 15, v0")
    a(f"v_lshrrev_b32 v{g}, 4, v0")
    a(f"v_lshlrev_b32 v{V_L16}, 4, v0")
    a(f"s_lshl_b32 s16, s{S_W}, 13")
    a(f"v_add_u32 v{V_WO0}, s16, v{V_L16}")
    a(f"v_add_u32 v{V_WO1}, 0x10000, v{V_WO0}")
    a(f"s_lshl_b32 s16, s{S_W}, 11")
    a(f"v_add_u32 v{V_MP}, s16, v{V_L16}")
    a(f"v_add_u32 v{V_MW}, {L_MEM}, v{V_MP}")
    a(f"v_add_u32 v{V_VXR}, {L_VX}, v{V_MP}")
    a(f"v_add_u32 v{V_L16}, {L_SM}, v{V_L16}")
    a(f"v_mul_u32_u24 v{V_QW}, {QS}, v{g}")
    a(f"v_lshrrev_b32 v{t}, 2, v{n}")
    a(f"v_lshl_add_u32 v{V_QW}, v{t}, 4, v{V_QW}")
    a(f"v_and_b32 v{t}, 3, v{n}")
    a(f"v_lshl_add_u32 v{V_QW}, v{t}, 1, v{V_QW}")
    a(f"s_lshl_b32 s16, s{S_W}, 6")
    a(f"s_add_u32 s16, s16, {L_Q}")
    a(f"v_add_u32 v{V_QW}, s16, v{V_QW}")
    a(f"v_and_b32 v{t}, 7, v{n}")
    a(f"v_mul_u32_u24 v{V_QR}, {QS}, v{t}")
    a(f"v_lshl_add_u32 v{V_QR}, v{g}, 4, v{V_QR}")
    a(f"v_add_u32 v{V_QR}, {L_Q}, v{V_QR}")
    a(f"v_lshrrev_b32 v{t}, 2, v{n}")
    a(f"v_and_b32 v{u}, 1, v{n}")
    a(f"v_lshl_add_u32 v{t}, v{u}, 2, v{t}")
    a(f"v_mul_u32_u24 v{V_KR}, {QS}, v{t}")
    a(f"v_lshl_add_u32 v{V_KR}, v{g}, 4, v{V_KR}")
    a(f"v_add_u32 v{V_KR}, {L_K}, v{V_KR}")
    a(f"s_lshl_b32 s{S_W64}, s{S_W}, 6")
    a(f"v_lshrrev_b32 v{t}, 1, v{g}")
    a(f"s_and_b32 s16, s{S_W}, 1")
    a(f"s_lshl_b32 s16, s16, 1")
    a(f"v_add_u32 v{t}, s16, v{t}")
    a(f"v_lshlrev_b32 v{t}, 4, v{t}")
    a(f"v_and_b32 v{u}, 3, v{n}")
    a(f"v_lshl_add_u32 v{t}, v{u}, 2, v{t}")
    a(f"v_lshrrev_b32 v{u}, 2, v{n}")
    a(f"v_add_u32 v{t}, v{t}, v{u}")
    a(f"v_lshlrev_b32 v{V_OW}, 4, v{t}")
    a(f"v_and_b32 v{u}, 1, v{g}")
    a(f"v_lshl_add_u32 v{V_OW}, v{u}, 3, v{V_OW}")
    a(f"s_lshr_b32 s16, s{S_W}, 1")
    a(f"s_lshl_b32 s16, s16, 10")
    a(f"s_add_u32 s16, s16, {L_O}")
    a(f"v_add_u32 v{V_OW}, s16, v{V_OW}")
    a(f"v_bfe_u32 v{t}, v{n}, 1, 1")
    a(f"v_mul_u32_u24 v{t}, 0xAAAA, v{t}")
    a(f"v_add_u32 v{V_IDX}, 0x4444, v{t}")
    a(f"v_lshrrev_b32 v{t}, 3, v{n}")
    a(f"v_lshlrev_b32 v{V_SH}, 4, v{t}")
    a(f"s_lshl_b32 s16, s{S_W}, 3")
    a(f"v_add_u32 v{t}, s16, v{g}")
    a(f"v_lshlrev_b32 v{V_PST}, 13, v{t}")
    a(f"v_lshl_add_u32 v{V_PST}, v{n}, 4, v{V_PST}")
    a(f"s_lshr_b32 s16, s{S_H}, 1")
    a(f"s_lshl_b32 s16, s16, 8")
    a(f"v_add_u32 v{V_PST}, s16, v{V_PST}")
    for k in range(2):
        a(f"s_add_u32 s16, s{S_H}, {k}")
        a(f"s_and_b32 s16, s16, 1")
        a(f"s_lshl_b32 s16, s16, 15")
        a(f"s_add_u32 s{S_PB0+k}, s16, {k*4096}")
    a(f"v_lshrrev_b32 v{t}, 2, v{n}")
    a(f"v_lshl_add_u32 v{t}, v{g}, 2, v{t}")
    a(f"v_lshlrev_b32 v{V_INR}, 8, v{t}")
    a(f"v_and_b32 v{t}, 3, v{n}")
    a(f"v_lshl_add_u32 v{V_INR}, v{t}, 4, v{V_INR}")
    a(f"s_lshl_b32 s16, s{S_H}, 13")
    a(f"s_lshl_b32 s17, s{S_W}, 6")
    a(f"s_add_u32 s16, s16, s17")
    a(f"v_add_u32 v{V_INR}, s16, v{V_INR}")
    a(f"s_lshr_b32 s16, s{S_H}, 2")
    a(f"s_lshl_b32 s16, s16, 6")
    a(f"s_lshl_b32 s17, s{S_W}, 2")
    a(f"s_add_u32 s16, s16, s17")
    a(f"v_lshrrev_b32 v{t}, 1, v{n}")
    a(f"v_lshl_add_u32 v{t}, v{t}, 4, v{g}")
    a(f"v_add_u32 v{t}, s16, v{t}")
    a(f"s_and_b32 s16, s{S_H}, 3")
    a(f"s_lshl_b32 s16, s16, 2")
    a(f"v_and_b32 v{u}, 1, v{n}")
    a(f"v_add_u32 v{u}, s16, v{u}")
    a(f"v_bfe_u32 v20, v{t}, 1, 1")
    a(f"v_lshl_add_u32 v{u}, v20, 1, v{u}")
    a(f"v_bfe_u32 v20, v{t}, 4, 2")
    a(f"v_lshl_add_u32 v{u}, v20, 4, v{u}")
    a(f"v_lshlrev_b32 v{V_PUB}, 4, v{u}")
    a(f"v_bfe_u32 v20, v{t}, 2, 2")
    a(f"v_lshl_add_u32 v{V_PUB}, v20, 2, v{V_PUB}")
    a(f"v_lshrrev_b32 v20, 6, v{t}")
    a(f"v_and_b32 v20, 7, v20")
    a(f"v_lshl_add_u32 v{V_PUB}, v20, 10, v{V_PUB}")
    for r in range(4):
        a(f"v_mov_b32 v{32+r}, 0")
        a(f"v_cmp_eq_u32 vcc, {2*r}, v{n}")
        a(f"v_mov_b32 v20, 0x3f80")
        a(f"s_nop 0")
        a(f"v_cndmask_b32 v{32+r}, v{32+r}, v20, vcc")
        a(f"v_cmp_eq_u32 vcc, {2*r+1}, v{n}")
        a(f"v_mov_b32 v20, 0x3f800000")
        a(f"s_nop 0")
        a(f"v_cndmask_b32 v{32+r}, v{32+r}, v20, vcc")
    a(f"ds_write_b128 v{V_L16}, v[32:35] offset:{L_SEL - L_SM}")

    a(f"s_mov_b32 s{S_HI8}, 0xFF00FF00")
    a(f"s_mov_b32 s{S_HI8+1}, 0xFF00FF00")
    a(f"s_mov_b32 s{S_LO8}, 0x00FF00FF")
    a(f"s_mov_b32 s{S_LO8+1}, 0x00FF00FF")
    a(f"s_mov_b32 s{S_PUBM}, 0x000000FF")
    a(f"s_mov_b32 s{S_PUBM+1}, 0x000000FF")
    a(f"s_mov_b32 s{S_NDUP}, 0x33333333")
    a(f"s_mov_b32 s{S_NDUP+1}, 0x33333333")
    a(f"s_mov_b32 s{S_C}, 0x3e0293ee")
    srd_from_kernarg(a, S_T0, KA_MEM0, M * D * 2)
    a(f"v_lshrrev_b32 v{t}, 2, v{n}")
    a(f"v_and_b32 v{u}, 1, v{n}")
    a(f"v_lshl_add_u32 v{t}, v{u}, 2, v{t}")
    a(f"v_lshlrev_b32 v{t}, 10, v{t}")
    a(f"v_lshl_add_u32 v{t}, v{g}, 5, v{t}")
    a(f"v_bfe_u32 v{u}, v{n}, 1, 1")
    a(f"v_lshl_add_u32 v{t}, v{u}, 2, v{t}")
    a(f"s_lshl_b32 s16, s{S_W}, 8")
    a(f"v_add_u32 v{t}, s16, v{t}")
    for k in range(2):
        for p in range(4):
            a(f"buffer_load_dword v{32 + 4*k + p}, v{t}, s[{S_T0}:{S_T0+3}], 0 offen offset:{128*k + 8*p}")
    a("s_waitcnt vmcnt(0)")
    a(f"ds_write_b128 v{V_MW}, v[32:35]")
    a(f"ds_write_b128 v{V_MW}, v[36:39] offset:1024")
    a(f"s_mul_i32 s{S_KXO}, s{S_L}, {KX_L}")
    a(f"s_lshl_b32 s16, s{S_H}, 13")
    a(f"s_add_u32 s{S_KXO}, s{S_KXO}, s16")
    a(f"s_add_u32 s{S_VXO}, s{S_KXO}, {VX}")
    a(f"s_add_u32 s{S_KXO}, s{S_KXO}, {KX}")
    a(f"s_mul_i32 s{S_KMO}, s{S_L}, {KM_L}")
    a(f"s_lshl_b32 s16, s{S_H}, 12")
    a(f"s_add_u32 s{S_KMO}, s{S_KMO}, s16")
    a(f"s_add_u32 s{S_KMO}, s{S_KMO}, {KM - 131072}")
    a(f"s_lshl_b32 s16, s{S_W}, 10")
    a(f"s_add_u32 s{S_KMO}, s{S_KMO}, s16")
    a(f"s_mul_i32 s{S_TFO}, s{S_L}, {TF_L}")
    a(f"s_add_u32 s{S_TFO}, s{S_TFO}, {TF}")
    a(f"s_lshl_b32 s16, s{S_H}, 4")
    a(f"s_add_u32 s{S_TFO}, s{S_TFO}, s16")
    a(f"s_mul_i32 s{S_INB}, s{S_L}, {INBOX_L}")
    a(f"s_add_u32 s{S_INB}, s{S_INB}, {INBOX}")
    a(f"s_mul_i32 s{S_RINGB}, s{S_L}, {MEMRING_L}")
    a(f"s_add_u32 s{S_RINGB}, s{S_RINGB}, {MEMRING}")
    a(f"s_mov_b32 s{S_S}, 0")

def wait_flag_T(a, uid):
    lab = f"R_tf_{uid}"
    a(f"v_bfe_u32 v21, v{V_L16}, 4, 2")
    a(f"v_lshlrev_b32 v21, 2, v21")
    a.label(lab)
    a(f"buffer_load_dword v20, v21, s[{S_WS}:{S_WS+3}], s{S_TFO} offen sc1")
    a("s_waitcnt vmcnt(0)")
    a("v_cmp_eq_u32 vcc, 0, v20")
    a(f"s_cbranch_vccz {lab}_ok")
    timeout_check(a, lab + "_ok")
    a(f"s_branch {lab}")
    a.label(lab + "_ok")

def dma_kx(a):
    a(f"s_lshl_b32 s{S_TMP}, s{S_W}, 11")
    a(f"s_add_u32 m0, s{S_TMP}, {L_KX}")
    a("s_nop 0")
    a(f"buffer_load_dwordx4 v{V_MP}, s[{S_WS}:{S_WS+3}], s{S_KXO} offen sc1 lds")
    a(f"buffer_load_dwordx4 v{V_MP}, s[{S_WS}:{S_WS+3}], s{S_KXO} offen offset:1024 sc1 lds")
def dma_vx(a):
    a(f"s_lshl_b32 s{S_TMP}, s{S_W}, 11")
    a(f"s_add_u32 m0, s{S_TMP}, {L_VX}")
    a("s_nop 0")
    a(f"buffer_load_dwordx4 v{V_MP}, s[{S_WS}:{S_WS+3}], s{S_VXO} offen sc1 lds")
    a(f"buffer_load_dwordx4 v{V_MP}, s[{S_WS}:{S_WS+3}], s{S_VXO} offen offset:1024 sc1 lds")

REALTIME = False
NOSTREAM = False
L2PF = False
BAR = set()
SKIP = set()
HOTKV = False
HOP1_DEPTH = 1
HOP2_DEPTH = 1
HOP2_GATE = True
def stamp(a, i, on):
    if on:
        a(f"{'s_memrealtime' if REALTIME else 's_memtime'} s[{S_STAMP+2*i}:{S_STAMP+2*i+1}]")


def step_scalars(a):
    a(f"s_and_b32 s{S_TMP}, s{S_S}, 1")
    a(f"s_mul_i32 s{S_TMP}, s{S_TMP}, {INBOX_SLOT}")
    a(f"s_add_u32 s{S_TMP}, s{S_TMP}, s{S_INB}")
    for k in range(2):
        a(f"s_add_u32 s{S_PS0+k}, s{S_TMP}, s{S_PB0+k}")
        a(f"s_add_u32 s{S_IN0+k}, s{S_TMP}, {k*4096}")
    a(f"s_bfe_u32 s{S_TAG}, s{S_S}, 0x10001")
def ring_scalars(a):
    a(f"s_add_u32 s{S_TMP}, s{S_S}, 1")
    a(f"s_and_b32 s{S_TMP}, s{S_TMP}, 3")
    a(f"s_lshl_b32 s{S_TMP}, s{S_TMP}, 13")
    a(f"s_add_u32 s{S_PUBS}, s{S_TMP}, s{S_RINGB}")
    a(f"s_add_u32 s{S_TMP}, s{S_S}, 3")
    a(f"s_and_b32 s{S_TMP}, s{S_TMP}, 3")
    a(f"s_lshl_b32 s{S_TMP}, s{S_TMP}, 13")
    a(f"s_add_u32 s{S_RSTS}, s{S_TMP}, s{S_RINGB}")

def role_R_main(a, local=True, stamps=False, uid="R", nodma=False, nopub=False, probe=False, trace=False, ldf=None):
    LD = ldf if ldf is not None else ('nt' if local else 'sc1')
    st = "" if local else "sc1"
    WS = f"s[{S_WS}:{S_WS+3}]"
    if stamps:
        for i in range(8):
            a(f"s_mov_b32 s{S_ACC+i}, 0")
        for i in range(84, 89):
            a(f"s_mov_b32 s{i}, 0")
    wait_flag_T(a, uid + "first")
    dma_kx(a)
    dma_vx(a)
    a(f"s_add_u32 s{S_KXO}, s{S_KXO}, {32*8192}")
    a(f"s_add_u32 s{S_VXO}, s{S_VXO}, {32*8192}")
    a(f"s_add_u32 s{S_TFO}, s{S_TFO}, {32*16}")
    a(f"v_bfe_u32 v23, v{V_L16}, 4, 2")
    a(f"v_lshlrev_b32 v23, 2, v23")
    a(f"buffer_load_dword v22, v23, s[{S_WS}:{S_WS+3}], s{S_TFO} offen sc1")
    for r in range(ACC_Q0, ACC_V1 + 4, 2):
        a(f"v_mov_b64 v[{r}:{r+1}], 0")
    step_scalars(a)
    a("s_waitcnt vmcnt(0) lgkmcnt(0)")
    a("s_barrier")
    a.label(f"{uid}_step")
    a.lg = []; a.vm = []
    ptrace(a, 0, S_S)
    stamp(a, 0, stamps and not probe)
    a.c("---- P1: q,k projection")
    for ks in range(8):
        a.ds(f"ds_read_b128 v[{A_MEM+4*ks}:{A_MEM+4*ks+3}], v{V_L16} offset:{L_MEM-L_SM + ks*1024}", f"A{ks}")
    if L2PF:
        a(f"v_bfe_u32 v23, v{V_MP}, 4, 4")
        a(f"v_lshlrev_b32 v23, 7, v23")
        a(f"v_and_b32 v21, 0x1800, v{V_MP}")
        a(f"v_or_b32 v23, v23, v21")
        a(f"v_bfe_u32 v21, v{V_MP}, 8, 1")
        a(f"v_mul_u32_u24 v21, {(VX - KX) >> 4}, v21")
        a(f"v_lshl_add_u32 v23, v21, 4, v23")
        a(f"s_cmp_eq_u32 s{S_L}, 0")
        a(f"s_cselect_b32 s{S_TMP}, {32*8192}, 0")
        a(f"s_add_u32 s{S_TMP}, s{S_TMP}, s{S_KXO}")
        a(f"buffer_load_dword v23, v23, {WS}, s{S_TMP} offen")
    for ks in range(8):
        a.ds_wait(f"A{ks}")
        A = A_MEM + 4 * ks
        smf(a, ACC_Q0, A, 'a', WQ + 0 * 64 + ks * 8)
        smf(a, ACC_K0, A, 'a', WK + 0 * 64 + ks * 8)
        a.ds(f"ds_read_b128 v[{KX_OP+4*ks}:{KX_OP+4*ks+3}], v{V_L16} offset:{L_KX-L_SM + ks*1024}", f"KX{ks}")
        smf(a, ACC_Q1, A, 'a', WQ + 1 * 64 + ks * 8)
        smf(a, ACC_K1, A, 'a', WK + 1 * 64 + ks * 8)
    stamp(a, 1, stamps and not probe)
    a.c("---- P2: q,k epilogue")
    def vstep(ks):
        A = A_MEM + 4 * ks
        smf(a, ACC_V0, A, 'v', WV + 0 * 64 + ks * 8)
        smf(a, ACC_V1, A, 'v', WV + 1 * 64 + ks * 8)
    for acc, base, t in ((ACC_Q0, 0, 0), (ACC_K0, L_K - L_Q, 0), (ACC_Q1, 0, 1), (ACC_K1, L_K - L_Q, 1)):
        a(f"v_pk_add_f32 v[{acc}:{acc+1}], v[{acc}:{acc+1}], v[{acc+2}:{acc+3}]")
        a(f"v_cvt_pk_bf16_f32 v{acc}, v{acc}, v{acc+1}")
        a.ds(f"ds_write_b16 v{V_QW}, v{acc} offset:{base + 8*t}", "qkw")
        a.ds(f"ds_write_b16_d16_hi v{V_QW}, v{acc} offset:{base + 8*t + 4*QS}", "qkw")
    vstep(0); vstep(1)
    a.ds_wait("qkw")
    a("s_barrier")
    stamp(a, 2, stamps and not probe)
    a.c("---- P3: scores")
    a(f"s_waitcnt vmcnt({5 if L2PF else 4})")
    for ks in range(4):
        a.ds(f"ds_read_b128 v[{Q_OP+4*ks}:{Q_OP+4*ks+3}], v{V_QR} offset:{64*ks}", f"q{ks}")
    for ks in range(2):
        a.ds(f"ds_read_b128 v[{A_MEM+4*ks}:{A_MEM+4*ks+3}], v{V_KR} offset:{64*ks}", f"km{ks}")
    a(f"v_add_u32 v21, s{S_W64}, v{V_KR}")
    a.ds(f"ds_read_b128 v[{ACC_K1}:{ACC_K1+3}], v21", "kmo")
    vstep(2); vstep(3)
    for ks in range(2, 4):
        a.ds(f"ds_read_b128 v[{A_MEM+4*ks}:{A_MEM+4*ks+3}], v{V_KR} offset:{64*ks}", f"km{ks}")
    lab = f"{uid}_tf"
    a(f"s_cmp_eq_u32 s{S_S}, 63")
    a(f"s_cbranch_scc1 {lab}_skip")
    a("v_cmp_eq_u32 vcc, 0, v22")
    a(f"s_cbranch_vccz {lab}_ok")
    wait_flag_T(a, uid + "slow")
    a.label(lab + "_ok")
    if not nodma: dma_kx(a)
    a.label(lab + "_skip")
    a.vm = []
    X0, X1, MM = ACC_Q0, ACC_Q1, ACC_K0
    for ks in range(4):
        a.ds_wait(f"q{ks}")
        c0 = "0" if ks == 0 else f"v[{X0}:{X0+3}]"
        c1 = "0" if ks == 0 else f"v[{X1}:{X1+3}]"
        a(f"v_mfma_f32_16x16x32_bf16 v[{X0}:{X0+3}], v[{KX_OP+4*ks}:{KX_OP+4*ks+3}], v[{Q_OP+4*ks}:{Q_OP+4*ks+3}], {c0}")
        a(f"v_mfma_f32_16x16x32_bf16 v[{X1}:{X1+3}], v[{KX_OP+16+4*ks}:{KX_OP+16+4*ks+3}], v[{Q_OP+4*ks}:{Q_OP+4*ks+3}], {c1}")
    for ks in range(4):
        a.ds_wait(f"km{ks}")
        c = "0" if ks == 0 else f"v[{MM}:{MM+3}]"
        a(f"v_mfma_f32_16x16x32_bf16 v[{MM}:{MM+3}], v[{A_MEM+4*ks}:{A_MEM+4*ks+3}], v[{Q_OP+4*ks}:{Q_OP+4*ks+3}], {c}")
    a(f"s_waitcnt vmcnt({5 if L2PF else 4})")
    for t in range(2):
        for hh in range(2):
            r = KX_OP + 8 * t + 4 * hh
            a.ds(f"ds_read_b64 v[{r}:{r+1}], v{V_VXR} offset:{1024*t + 8*hh}", "vx")
    vstep(4)
    SL = [112, 120, 80, 88, 96, 104, 40, 48]
    def wo_read(i, slot, halves=(0, 1)):
        tt, ks = i // 2, i % 2
        vb = V_WO0 if ks == 0 else V_WO1
        for half in halves:
            r = SL[slot] + 4 * half
            a.ds(f"ds_read_b128 v[{r}:{r+3}], v{vb} offset:{half*32768 + tt*1024}", f"F{i}")
    stamp(a, 3, stamps and not probe)
    a.c("---- softmax")
    for r in range(4):
        a(f"v_cndmask_b32 v{X0+r}, v{X0+r}, v{X1+r}, s[{S_HI8}:{S_HI8+1}]")
    def vhalf(ks, t):
        A = A_MEM + 4 * ks
        smf(a, ACC_V0 if t == 0 else ACC_V1, A, 'v', WV + t * 64 + ks * 8)
    a(f"v_cndmask_b32 v{MM}, v{MM}, v{MM+1}, s[{S_HI8}:{S_HI8+1}]")
    a(f"v_max3_f32 v20, v{X0}, v{X0+1}, v{X0+2}")
    a(f"v_max3_f32 v20, v20, v{X0+3}, v{MM}")
    vhalf(5, 0); a("s_nop 0")
    a("v_max_f32_dpp v20, v20, v20 row_ror:8 row_mask:0xf bank_mask:0xf")
    a("v_mov_b32 v21, v20")
    vhalf(5, 1); a("s_nop 0")
    a("v_permlane16_swap_b32 v20, v21")
    a("v_max_f32 v20, v20, v21")
    a("v_mov_b32 v21, v20")
    vhalf(6, 0); a("s_nop 0")
    a("v_permlane32_swap_b32 v20, v21")
    a("v_max_f32 v20, v20, v21")
    a(f"v_mul_f32 v20, s{S_C}, v20")
    vhalf(6, 1)
    for i, r in enumerate((X0, X0+1, X0+2, X0+3, MM)):
        a(f"v_fma_f32 v{r}, v{r}, s{S_C}, -v20")
        if i == 1: vhalf(7, 0)
        if i == 3: vhalf(7, 1)
    ex = (X0, X0+1, X0+2, X0+3, MM)
    for i, r in enumerate(ex):
        a(f"v_exp_f32 v{r}, v{r}")
        if i < 4: wo_read(i, i, halves=(0,))
    for i in range(4): wo_read(i, i, halves=(1,))
    for t, acc in ((0, ACC_V0), (1, ACC_V1)):
        a(f"v_pk_add_f32 v[{acc}:{acc+1}], v[{acc}:{acc+1}], v[{acc+2}:{acc+3}]")
    P = X1
    a(f"v_cvt_pk_bf16_f32 v{P+2}, v{MM}, 0")
    a(f"v_cvt_pk_bf16_f32 v{P}, v{X0}, v{X0+1}")
    a(f"v_cvt_pk_bf16_f32 v{P+1}, v{X0+2}, v{X0+3}")
    a(f"v_mov_b32 v{P+3}, 0")
    a(f"v_lshlrev_b32 v{P+2}, v{V_SH}, v{P+2}")
    a.ds_wait("vx")
    for t, acc in ((0, ACC_V0), (1, ACC_V1)):
        r = KX_OP + 8 * t
        a(f"v_cvt_pk_bf16_f32 v{r+2}, v{acc}, v{acc+1}")
        a(f"v_cvt_pk_bf16_f32 v{r+6}, v{acc}, v{acc+1}")
    stamp(a, 4, stamps and not probe)
    a.c("---- PV")
    Dq = A_MEM
    a("s_nop 0")
    for t in range(2):
        for hh in range(2):
            r = KX_OP + 8 * t + 4 * hh
            d = Dq + 8 * t + 4 * hh
            a(f"v_mfma_f32_16x16x32_bf16 v[{d}:{d+3}], v[{r}:{r+3}], v[{P}:{P+3}], 0")
    a.ds_wait("kmo")
    a(f"s_mov_b64 vcc, s[{S_NDUP}:{S_NDUP+1}]")
    KQ = ACC_K1
    a(f"v_cndmask_b32_dpp v{MSGQ}, v{KX_OP+2}, v{KQ}, vcc row_shr:2 row_mask:0xf bank_mask:0xf bound_ctrl:0")
    a(f"v_cndmask_b32_dpp v{MSGQ+1}, v{KX_OP+10}, v{KQ+1}, vcc row_shr:2 row_mask:0xf bank_mask:0xf bound_ctrl:0")
    a(f"v_cndmask_b32 v{MSGQ+2}, v{KX_OP+2}, v{KQ+2}, vcc")
    a(f"v_cndmask_b32 v{MSGQ+3}, v{KX_OP+10}, v{KQ+3}, vcc")
    a(f"s_cmp_eq_u32 s{S_S}, 63")
    a(f"s_cbranch_scc1 {uid}_last")
    a(f"v_add_f32 v20, v{X0}, v{X0+1}")
    a(f"v_add_f32 v21, v{X0+2}, v{X0+3}")
    a(f"v_add_f32 v20, v20, v{MM}")
    a(f"v_add_f32 v20, v20, v21")
    wo_read(6, 6)
    a("v_add_f32_dpp v20, v20, v20 row_ror:8 row_mask:0xf bank_mask:0xf")
    a("v_mov_b32 v21, v20")
    wo_read(7, 7)
    a("v_permlane16_swap_b32 v20, v21")
    a("v_add_f32 v20, v20, v21")
    a("v_mov_b32 v21, v20")
    wo_read(4, 4)
    a("v_permlane32_swap_b32 v20, v21")
    a("v_add_f32 v20, v20, v21")
    a("v_rcp_f32 v20, v20")
    wo_read(5, 5)
    for t in range(2):
        for r in range(4):
            d1 = Dq + 8 * t + r; d2 = d1 + 4
            a(f"v_add_f32_dpp v{d1}, v{d2}, v{d1} row_ror:8 row_mask:0xf bank_mask:0xf")
    a("v_mov_b32 v21, v20")
    for t in range(2):
        for r in (0, 2):
            d1 = Dq + 8 * t + r
            a(f"v_pk_mul_f32 v[{d1}:{d1+1}], v[{d1}:{d1+1}], v[20:21]")
    a(f"s_mov_b64 exec, s[{S_LO8}:{S_LO8+1}]")
    for t in range(2):
        for rp in range(2):
            d1 = Dq + 8 * t + 2 * rp
            a(f"v_cvt_pk_bf16_f32 v{d1}, v{d1}, v{d1+1}")
            a.ds(f"ds_write_b32 v{V_OW}, v{d1} offset:{4*t + 32*rp}", "ow")
    a("s_mov_b64 exec, -1")
    WACC = [56, 60, 64, 68, 72, 76, 24, 28]
    for r in range(56, 80, 2):
        a(f"v_mov_b64 v[{r}:{r+1}], 0")
    a.ds_wait("ow")
    a("s_barrier")
    stamp(a, 5, stamps and not probe)
    a.c("---- P5: output projection")
    OOP = 32
    for ks in range(2):
        a.ds(f"ds_read_b128 v[{OOP+4*ks}:{OOP+4*ks+3}], v{V_L16} offset:{L_O-L_SM + ks*1024}", f"o{ks}")
    for r in range(24, 32, 2):
        a(f"v_mov_b64 v[{r}:{r+1}], 0")
    a.ds_wait("o1")
    def wo_epi(stg):
        base = WACC[4*stg]
        for r in range(4):
            A_ = WACC[4*stg + r]
            a(f"v_pk_add_f32 v[{A_}:{A_+1}], v[{A_}:{A_+1}], v[{A_+2}:{A_+3}]")
        mq = MSG[stg]
        for r in range(4):
            A_ = WACC[4*stg + r]
            a(f"v_cvt_pk_bf16_f32 v{mq+r}, v{A_}, v{A_+1}")
        a(f"v_bfi_b32 v{mq}, 1, s{S_TAG}, v{mq}")
        a.vmem(f"buffer_store_dwordx4 v[{mq}:{mq+3}], v{V_PST}, {WS}, s{S_PS0+stg} offen {st}", "pst")
    MSG = [56, 72]
    for i in range(16):
        tt, ks = i // 2, i % 2
        slot = i % 8
        a.ds_wait(f"F{i}")
        smf(a, WACC[tt], OOP + 4 * ks, 'v', SL[slot])
        if i + 8 < 16 and not NOSTREAM:
            wo_read(i + 8, slot)
        if i == 9: wo_epi(0)
    SEL, RD = 80, 84
    mq = MSG[1]
    for r in range(3):
        A_ = WACC[4 + r]
        a(f"v_pk_add_f32 v[{A_}:{A_+1}], v[{A_}:{A_+1}], v[{A_+2}:{A_+3}]")
    for r in range(3):
        A_ = WACC[4 + r]
        a(f"v_cvt_pk_bf16_f32 v{mq+r}, v{A_}, v{A_+1}")
    a(f"v_bfi_b32 v{mq}, 1, s{S_TAG}, v{mq}")
    a.ds(f"ds_read_b128 v[{SEL}:{SEL+3}], v{V_L16} offset:{L_SEL - L_SM}", "sel")
    A_ = WACC[7]
    a(f"v_pk_add_f32 v[{A_}:{A_+1}], v[{A_}:{A_+1}], v[{A_+2}:{A_+3}]")
    a(f"v_cvt_pk_bf16_f32 v{mq+3}, v{A_}, v{A_+1}")
    a.vmem(f"buffer_store_dwordx4 v[{mq}:{mq+3}], v{V_PST}, {WS}, s{S_PS0+1} offen {st}", "pst")
    stamp(a, 0 if probe else 6, stamps)
    a.c("---- P6: reduce")
    INA, INB0, INB1 = 40, 44, 48
    def in_load(u, r):
        a(f"buffer_load_dwordx4 v[{r}:{r+3}], v{V_INR}, {WS}, s{S_IN0+u} offen {LD}")
    def tagtest(r):
        a(f"v_xor_b32 v20, s{S_TAG}, v{r}")
        a(f"v_and_b32 v20, 1, v20")
        a("v_cmp_ne_u32 vcc, 0, v20")
    ring_scalars(a)
    for r in range(ACC_Q0, ACC_V1 + 4, 2):
        a(f"v_mov_b64 v[{r}:{r+1}], 0")
    a("s_waitcnt vmcnt(0)")
    if "b1" in BAR: a("s_barrier")
    if probe: stamp(a, 1, True)
    lab = f"{uid}_in"
    def both(rA, rB):
        in_load(0, rA); in_load(1, rB)
    def test2(rA, rB):
        a(f"v_bitop3_b32 v20, v{rA}, v{rB}, s{S_TAG} bitop3:0x7E")
        a(f"v_and_b32 v20, 1, v20")
        a("v_cmp_ne_u32 vcc, 0, v20")
    def red(rA, rB):
        a(f"v_mfma_f32_16x16x32_bf16 v[{RD}:{RD+3}], v[{rA}:{rA+3}], v[{SEL}:{SEL+3}], 0")
        a(f"v_mfma_f32_16x16x32_bf16 v[{RD}:{RD+3}], v[{rB}:{rB+3}], v[{SEL}:{SEL+3}], v[{RD}:{RD+3}]")
    A0, B0, A1, B1 = 40, 44, 48, 52
    both(A0, B0)
    a.ds_wait("sel")
    if HOP1_DEPTH == 1:
        a("s_waitcnt vmcnt(0)")
        a.label(lab)
        test2(A0, B0)
        a(f"s_cbranch_vccz {lab}_ok0")
        timeout_check(a, lab + "_ok0")
        if probe: a(f"s_add_u32 s85, s85, 1")
        a("s_mov_b64 exec, vcc")
        both(A0, B0)
        a("s_waitcnt vmcnt(0)")
        a(f"s_branch {lab}")
        a.label(lab + "_ok0")
        a("s_mov_b64 exec, -1")
        a.nops(4)
        red(A0, B0)
    else:
        a.label(lab)
        both(A1, B1)
        a("s_waitcnt vmcnt(2)")
        test2(A0, B0)
        a(f"s_cbranch_vccz {lab}_ok0")
        timeout_check(a, lab + "_ok0")
        if probe: a(f"s_add_u32 s85, s85, 1")
        both(A0, B0)
        a("s_waitcnt vmcnt(2)")
        test2(A1, B1)
        a(f"s_cbranch_vccz {lab}_ok1")
        if probe: a(f"s_add_u32 s85, s85, 1")
        a(f"s_branch {lab}")
        a.label(lab + "_ok1")
        red(A1, B1)
        a(f"s_branch {lab}_done")
        a.label(lab + "_ok0")
        red(A0, B0)
        a.label(lab + "_done")
    if probe:
        stamp(a, 2, True); stamp(a, 3, True); stamp(a, 4, True); stamp(a, 5, True)
    a.vm = []
    a.nops(8)
    a(f"v_permlane32_swap_b32 v{RD}, v{RD+2}")
    a(f"v_permlane32_swap_b32 v{RD+1}, v{RD+3}")
    a(f"v_add_f32 v{RD}, v{RD}, v{RD+2}")
    a(f"v_add_f32 v{RD+1}, v{RD+1}, v{RD+3}")
    a("s_nop 1")
    a(f"v_permlane16_swap_b32 v{RD}, v{RD+1}")
    a(f"v_add_f32 v{RD}, v{RD}, v{RD+1}")
    a(f"v_mov_b32 v{RD+1}, v{RD}")
    a("s_nop 1")
    a(f"v_permlane16_swap_b32 v{RD}, v{RD+1}")
    a(f"v_cvt_pk_bf16_f32 v{RD}, v{RD}, v{RD+1}")
    a(f"s_mov_b64 exec, s[{S_PUBM}:{S_PUBM+1}]")
    a(f"buffer_store_dword v{RD}, v{V_PUB}, {WS}, s{S_PUBS} offen {st}")
    a("s_mov_b64 exec, -1")
    stamp(a, 6 if probe else 7, stamps)
    a.c("---- P0: receive mem(s+1)")
    MP0, MP1 = 80, 88
    lab = f"{uid}_mp"
    def mp_load(r):
        a(f"buffer_load_dwordx4 v[{r}:{r+3}], v{V_MP}, {WS}, s{S_PUBS} offen {LD}")
        a(f"buffer_load_dwordx4 v[{r+4}:{r+7}], v{V_MP}, {WS}, s{S_PUBS} offen offset:1024 {LD}")
    def mp_test(r):
        a(f"v_max3_u32 v20, v{r}, v{r+1}, v{r+2}")
        a(f"v_max3_u32 v21, v{r+3}, v{r+4}, v{r+5}")
        a(f"v_max3_u32 v20, v{r+6}, v{r+7}, v20")
        a(f"v_max_u32 v20, v20, v21")
        a("v_cmp_eq_u32 vcc, -1, v20")
    def mp_write(r):
        a(f"ds_write_b128 v{V_MW}, v[{r}:{r+3}]")
        a(f"ds_write_b128 v{V_MW}, v[{r+4}:{r+7}] offset:1024")
    a(f"s_add_u32 s{S_S}, s{S_S}, 1")
    a(f"s_add_u32 s{S_TFO}, s{S_TFO}, {32*16}")
    if not HOTKV: a(f"s_add_u32 s{S_KXO}, s{S_KXO}, {32*8192}")
    step_scalars(a)
    if HOP2_GATE: a("s_waitcnt vmcnt(0)")
    if "b2" in BAR: a("s_barrier")
    mp_load(MP0)
    if HOP2_DEPTH == 1:
        a("s_waitcnt vmcnt(0)")
        a.label(lab)
        mp_test(MP0)
        a(f"s_cbranch_vccz {lab}_ok0")
        timeout_check(a, lab + "_ok0")
        if probe: a(f"s_add_u32 s88, s88, 1")
        a("s_mov_b64 exec, vcc")
        mp_load(MP0)
        a("s_waitcnt vmcnt(0)")
        a(f"s_branch {lab}")
        a.label(lab + "_ok0")
        a("s_mov_b64 exec, -1")
        if probe: stamp(a, 7, True)
        mp_write(MP0)
    else:
        a.label(lab)
        mp_load(MP1)
        a("s_waitcnt vmcnt(2)")
        mp_test(MP0)
        a(f"s_cbranch_vccz {lab}_ok0")
        timeout_check(a, lab + "_ok0")
        if probe: a(f"s_add_u32 s88, s88, 1")
        mp_load(MP0)
        a("s_waitcnt vmcnt(2)")
        mp_test(MP1)
        a(f"s_cbranch_vccz {lab}_ok1")
        if probe: a(f"s_add_u32 s88, s88, 1")
        a(f"s_branch {lab}")
        a.label(lab + "_ok1")
        if probe: stamp(a, 7, True)
        mp_write(MP1)
        a(f"s_branch {lab}_done")
        a.label(lab + "_ok0")
        if probe: stamp(a, 7, True)
        mp_write(MP0)
        a.label(lab + "_done")
    a(f"v_bfe_u32 v23, v{V_L16}, 4, 2")
    a(f"v_lshlrev_b32 v23, 2, v23")
    a(f"buffer_load_dword v22, v23, {WS}, s{S_TFO} offen sc1")
    if not nodma: dma_vx(a)
    if not HOTKV: a(f"s_add_u32 s{S_VXO}, s{S_VXO}, {32*8192}")
    a(f"v_mov_b32 v21, -1")
    a(f"s_mov_b64 exec, s[{S_PUBM}:{S_PUBM+1}]")
    a(f"buffer_store_dword v21, v{V_PUB}, {WS}, s{S_RSTS} offen {st}")
    a(f"s_mov_b64 exec, -1")
    if not nopub: a(f"buffer_store_dwordx4 v[{MSGQ}:{MSGQ+3}], v{V_L16}, {WS}, s{S_KMO} offen sc1")
    a(f"s_add_u32 s{S_KMO}, s{S_KMO}, {32*4096}")
    a("s_waitcnt lgkmcnt(0)")
    a("s_barrier")
    if trace:
        a(f"s_memrealtime s[{S_STAMP+16}:{S_STAMP+17}]")
        a("s_memrealtime s[46:47]")
        a("s_waitcnt lgkmcnt(0)")
        skip = a.newlabel("trskip")
        a(f"s_cmp_lt_u32 s{S_S}, 20")
        a(f"s_cbranch_scc1 {skip}")
        a(f"s_cmp_ge_u32 s{S_S}, 28")
        a(f"s_cbranch_scc1 {skip}")
        a(f"s_lshl_b32 s{S_TMP}, s{S_H}, 2")
        a(f"s_add_u32 s{S_TMP}, s{S_TMP}, s{S_W}")
        a(f"s_lshl_b32 s{S_TMP}, s{S_TMP}, 3")
        a(f"s_add_u32 s{S_TMP}, s{S_TMP}, s{S_S}")
        a(f"s_sub_u32 s{S_TMP}, s{S_TMP}, 20")
        a(f"s_lshl_b32 s{S_TMP}, s{S_TMP}, 6")
        a(f"s_add_u32 s{S_TMP}, s{S_TMP}, {STAMP + 2*MB}")
        for i in range(9):
            a(f"v_mov_b32 v20, s{S_STAMP+2*i}")
            a(f"v_mov_b32 v21, {4*i}")
            a(f"buffer_store_dword v20, v21, {WS}, s{S_TMP} offen")
        a(f"v_mov_b32 v20, s46")
        a(f"v_mov_b32 v21, 36")
        a(f"buffer_store_dword v20, v21, {WS}, s{S_TMP} offen")
        a.label(skip)
    elif stamps:
        a(f"s_memtime s[{S_STAMP+16}:{S_STAMP+17}]")
        a("s_waitcnt lgkmcnt(0)")
        for i in range(8):
            a(f"s_sub_u32 s{S_TMP}, s{S_STAMP+2*i+2}, s{S_STAMP+2*i}")
            a(f"s_add_u32 s{S_ACC+i}, s{S_ACC+i}, s{S_TMP}")
    a(f"s_branch {uid}_step")
    a.label(f"{uid}_last")
    a(f"buffer_store_dwordx4 v[{MSGQ}:{MSGQ+3}], v{V_L16}, {WS}, s{S_KMO} offen sc1")
    a("s_waitcnt vmcnt(0)")
    a(f"s_add_u32 s{S_KMO}, s{S_KMO}, {32*4096}")
    a(f"v_mov_b32 v20, 0")
    a(f"s_mov_b64 exec, 1")
    a(f"buffer_store_dword v20, v{V_L16}, {WS}, s{S_KMO} offen sc1")
    a(f"s_mov_b64 exec, -1")
    a("s_waitcnt vmcnt(0)")
```

```python
from common import *

XS = 1056
XBUF = 32 * XS
V_XR, V_L16, V_KO0, V_KO1, V_VO, V_HF, V_FL, V_FLD = 1, 2, 3, 4, 5, 6, 7, 8
XR = 24
AK, AV, AQ = 56, 72, 88
TO = 104
WQ, WK, WV = 0, 128, 128
S_S, S_HIN, S_HFO, S_KXO, S_VXO, S_QXO, S_TFO, S_QFO, S_PRE, S_BUF, S_QPEND, S_EARLY = 18, 19, 20, 21, 22, 23, 24, 25, 26, 27, 28, 29
S_M0, S_M1 = 30, 32
S_TMP = 44

def role_T_prologue(a):
    a.c("===== T prologue =====")
    load_qkv_weights(a, [(KA_WQ, 'a', WQ), (KA_WK, 'a', WK), (KA_WV, 'v', WV)], tmp=24)
    n, g, t = 24, 25, 26
    a(f"v_and_b32 v{n}, 15, v0")
    a(f"v_lshrrev_b32 v{g}, 4, v0")
    a(f"v_mul_u32_u24 v{V_XR}, {XS}, v{n}")
    a(f"v_lshl_add_u32 v{V_XR}, v{g}, 4, v{V_XR}")
    a(f"v_lshlrev_b32 v{V_L16}, 4, v0")
    a(f"s_lshl_b32 s16, s{S_W}, 10")
    a(f"v_add_u32 v{V_KO0}, s16, v{V_L16}")
    a(f"v_add_u32 v{V_KO1}, 4096, v{V_KO0}")
    a(f"s_lshl_b32 s16, s{S_W}, 11")
    a(f"v_add_u32 v{V_VO}, s16, v{V_L16}")
    a(f"v_lshlrev_b32 v{V_HF}, 2, v0")
    a(f"s_mov_b32 s{S_M0}, -1")
    a(f"s_mov_b32 s{S_M0+1}, 0")
    a(f"s_mov_b32 s{S_M1}, 0")
    a(f"s_mov_b32 s{S_M1+1}, -1")
    a(f"s_mov_b32 s{S_EARLY}, 0")
    a(f"s_lshl_b32 s16, s{S_H}, 4")
    a(f"s_lshl_b32 s17, s{S_W}, 2")
    a(f"s_add_u32 s16, s16, s17")
    a(f"v_mov_b32 v{V_FL}, s16")
    a(f"s_lshl_b32 s16, s{S_L}, 1")
    a(f"s_add_u32 s16, s16, 1")
    a(f"s_mul_i32 s{S_HIN}, s16, {ROWS_J}")
    a(f"s_add_u32 s{S_HIN}, s{S_HIN}, {HB}")
    a(f"s_mul_i32 s{S_HFO}, s16, {HF_J}")
    a(f"s_add_u32 s{S_HFO}, s{S_HFO}, {HF}")
    a(f"s_mul_i32 s{S_KXO}, s{S_L}, {KX_L}")
    a(f"s_lshl_b32 s16, s{S_H}, 13")
    a(f"s_add_u32 s{S_KXO}, s{S_KXO}, s16")
    a(f"s_add_u32 s{S_VXO}, s{S_KXO}, {VX}")
    a(f"s_add_u32 s{S_QXO}, s{S_KXO}, {QX}")
    a(f"s_add_u32 s{S_KXO}, s{S_KXO}, {KX}")
    a(f"s_mul_i32 s{S_TFO}, s{S_L}, {TF_L}")
    a(f"s_add_u32 s{S_QFO}, s{S_TFO}, {QF}")
    a(f"s_add_u32 s{S_TFO}, s{S_TFO}, {TF}")
    a(f"s_mov_b32 s{S_S}, 0")
    a(f"s_mov_b32 s{S_BUF}, 0")
    a(f"s_mov_b32 s{S_QPEND}, 0")

def dma_rows(a, srow, sbuf, shift_rows=None):
    a(f"s_lshl_b32 s{S_TMP}, s{S_W}, 13")
    a(f"s_add_u32 s{S_TMP}, s{S_TMP}, s{srow}")
    a(f"s_mul_i32 s{S_TMP+1}, s{S_W}, {8*XS}")
    a(f"s_add_u32 s{S_TMP+1}, s{S_TMP+1}, s{sbuf}")
    for r in range(8):
        a(f"s_mov_b32 m0, s{S_TMP+1}")
        a(f"s_add_u32 s{S_TMP+1}, s{S_TMP+1}, {XS}")
        a(f"buffer_load_dwordx4 v{V_L16}, s[{S_WS}:{S_WS+3}], s{S_TMP} offen sc1 lds")
        a(f"s_add_u32 s{S_TMP}, s{S_TMP}, 1024")

def dma_row_units(srow, sbuf):
    u = [f"s_lshl_b32 s{S_TMP}, s{S_W}, 13\n  s_add_u32 s{S_TMP}, s{S_TMP}, s{srow}\n  s_mul_i32 s{S_TMP+1}, s{S_W}, {8*XS}\n  s_add_u32 s{S_TMP+1}, s{S_TMP+1}, s{sbuf}"]
    for r in range(8):
        u.append(f"s_mov_b32 m0, s{S_TMP+1}\n  s_add_u32 s{S_TMP+1}, s{S_TMP+1}, {XS}\n  buffer_load_dwordx4 v{V_L16}, s[{S_WS}:{S_WS+3}], s{S_TMP} offen sc1 lds\n  s_add_u32 s{S_TMP}, s{S_TMP}, 1024")
    return u

def flag_store(a, soff):
    a(f"v_mov_b32 v{V_FLD}, 1")
    a("s_mov_b64 exec, 1")
    a(f"buffer_store_dword v{V_FLD}, v{V_FL}, s[{S_WS}:{S_WS+3}], s{soff} offen sc1")
    a("s_mov_b64 exec, -1")


def hflag_wait(a, uid):
    WS = f"s[{S_WS}:{S_WS+3}]"
    lab = f"hfw_{uid}"
    a.label(lab)
    a(f"buffer_load_dword v20, v{V_HF}, {WS}, s{S_HFO} offen sc1")
    a("s_waitcnt vmcnt(0)")
    a(f"v_cmp_eq_u32 vcc, 0, v20")
    a(f"s_cmp_eq_u32 vcc_lo, 0")
    a(f"s_cbranch_scc1 {lab}_ok")
    a(f"s_sub_u32 s{S_TMO}, s{S_TMO}, 1")
    a(f"s_cbranch_scc1 {lab}_ok")
    backoff(a)
    a(f"s_branch {lab}")
    a.label(lab + "_ok")

def look(a):
    a("v_cmp_eq_u32 vcc, 0, v20")
    a("s_nop 0")
    a(f"s_cmp_eq_u32 vcc_hi, 0")
    a(f"s_cselect_b32 s{S_EARLY}, 1, 0")
    a(f"s_cmp_ge_u32 s{S_S}, 62")
    a(f"s_cselect_b32 s{S_EARLY}, 0, s{S_EARLY}")
    a(f"s_cmp_eq_u32 vcc_lo, 0")
    a(f"s_cselect_b32 s{S_TMP}, 1, 0")

def role_T_item(a, uid, early, st):
    WS = f"s[{S_WS}:{S_WS+3}]"
    a.lg = []; a.vm = []
    def xread(ks, slot):
        r = XR + 8 * slot
        a.ds(f"ds_read_b128 v[{r}:{r+3}], v{V_XR} offset:{64*ks}", f"x{ks}")
        a.ds(f"ds_read_b128 v[{r+4}:{r+7}], v{V_XR} offset:{16*XS + 64*ks}", f"x{ks}")
    def W(rf, base, t, ks):
        r = base + t * 64 + ks * 4
        return f"{rf}[{r}:{r+3}]"
    def mm(d, A, B, first):
        c = "0" if first else f"v[{d}:{d+3}]"
        a(f"v_mfma_f32_16x16x32_bf16 v[{d}:{d+3}], {A}, {B}, {c}")
    for ks in range(3): xread(ks, ks)
    DM = []
    if early:
        a(f"s_sub_u32 s{S_TMP+2}, {XBUF}, s{S_BUF}")
        DM = dma_row_units(S_HIN, S_TMP + 2)
    def xread1(ks, slot, tt):
        r = XR + 8 * slot + 4 * tt
        a.ds(f"ds_read_b128 v[{r}:{r+3}], v{V_XR} offset:{16*XS*tt + 64*ks}", f"x{ks}")
    a.ds_wait("x0")
    for ks in range(16):
        r = XR + 8 * (ks % 4)
        ms = []
        for t in range(2):
            for tt in range(2):
                ms.append((AK + 8*t + 4*tt, W('a', WK, t, ks), f"v[{r+4*tt}:{r+4*tt+3}]"))
        for t in range(2):
            for tt in range(2):
                ms.append((AV + 8*t + 4*tt, f"v[{r+4*tt}:{r+4*tt+3}]", W('v', WV, t, ks)))
        for i, (d, A, B) in enumerate(ms):
            mm(d, A, B, ks == 0)
            if i in (0, 1) and ks + 3 < 16: xread1(ks + 3, (ks + 3) % 4, i)
            if i == 3 and DM: a(DM.pop(0))
            if i == 6 and ks + 1 < 16: a.ds_wait(f"x{ks+1}")
        if ks == 11:
            lab = f"{uid}_qf"
            a(f"s_cmp_eq_u32 s{S_QPEND}, 0")
            a(f"s_cbranch_scc1 {lab}")
            a(f"s_waitcnt vmcnt({8 if early else 0})")
            a(f"s_sub_u32 s{S_TMP+3}, s{S_QFO}, {32*16}")
            flag_store(a, S_TMP + 3)
            a.label(lab)
    assert not DM
    stamp(a, 1, st)
    a.lg = []
    a(f"buffer_load_dword v20, v{V_HF}, {WS}, s{S_HFO} offen sc1")
    for ks in range(3): xread(ks, ks)
    def cvt4(dst, accA, accB):
        return [f"v_cvt_pk_bf16_f32 v{dst}, v{accA}, v{accA+1}", f"v_cvt_pk_bf16_f32 v{dst+1}, v{accA+2}, v{accA+3}",
                f"v_cvt_pk_bf16_f32 v{dst+2}, v{accB}, v{accB+1}", f"v_cvt_pk_bf16_f32 v{dst+3}, v{accB+2}, v{accB+3}"]
    epi = []
    for tt in range(2):
        epi += cvt4(TO + 4*tt, AK + 4*tt, AK + 8 + 4*tt)
        epi.append(f"buffer_store_dwordx4 v[{TO+4*tt}:{TO+4*tt+3}], v{V_KO0 if tt == 0 else V_KO1}, {WS}, s{S_KXO} offen sc1")
    for t in range(2):
        epi += cvt4(TO + 8 + 4*t, AV + 8*t, AV + 8*t + 4)
        epi.append(f"buffer_store_dwordx4 v[{TO+8+4*t}:{TO+8+4*t+3}], v{V_VO}, {WS}, s{S_VXO} offen offset:{1024*t} sc1")
    a.ds_wait("x0")
    for ks in range(16):
        r = XR + 8 * (ks % 4)
        i = 0
        for t in range(2):
            for tt in range(2):
                mm(AQ + 8*t + 4*tt, W('a', WQ, t, ks), f"v[{r+4*tt}:{r+4*tt+3}]", ks == 0)
                if i in (0, 1) and ks + 3 < 16: xread1(ks + 3, (ks + 3) % 4, i)
                if ks >= 1 and epi and i in (1, 2, 3):
                    a(epi.pop(0))
                    if epi and epi[0].startswith("buffer"): a(epi.pop(0))
                elif DM and (i in (1, 3) or ks >= 13):
                    a(DM.pop(0))
                if i == 2 and ks + 1 < 16: a.ds_wait(f"x{ks+1}")
                i += 1
        if ks == 9:
            assert not epi
            stamp(a, 2, st)
            a("s_waitcnt vmcnt(4)")
            stamp(a, 3, st)
            look(a)
            if early:
                a(f"s_mov_b32 s{S_PRE}, 1")
            else:
                a(f"s_cmp_eq_u32 s{S_S}, 63")
                a(f"s_cselect_b32 s{S_PRE}, 0, s{S_TMP}")
                a(f"s_sub_u32 s{S_TMP+3}, s{S_HIN}, 32768")
                a(f"s_cmp_lg_u32 s{S_PRE}, 0")
                a(f"s_cselect_b32 s{S_TMP+3}, s{S_HIN}, s{S_TMP+3}")
                a(f"s_sub_u32 s{S_TMP+2}, {XBUF}, s{S_BUF}")
                DM = dma_row_units(S_TMP + 3, S_TMP + 2)
                a(DM.pop(0))
    for x in DM: a(x)
    stamp(a, 4, st)
    a.nops(6)
    for tt in range(2):
        for ins in cvt4(TO + 4*tt, AQ + 4*tt, AQ + 8 + 4*tt): a(ins)
        a(f"buffer_store_dwordx4 v[{TO+4*tt}:{TO+4*tt+3}], v{V_KO0 if tt == 0 else V_KO1}, {WS}, s{S_QXO} offen sc1")
    a(f"s_waitcnt vmcnt({2 if early else 10})")
    stamp(a, 5, st)
    flag_store(a, S_TFO)
    trace(a, 11, S_S)
    stamp(a, 6, st)
    a(f"s_mov_b32 s{S_QPEND}, 1")
    a(f"s_cmp_eq_u32 s{S_S}, 63")
    a(f"s_cbranch_scc1 T_end")
    if not early:
        a(f"s_cmp_lg_u32 s{S_PRE}, 0")
        a(f"s_cbranch_scc1 {uid}_have")
        hflag_wait(a, uid + "1")
        look(a)
        a(f"s_sub_u32 s{S_TMP+2}, {XBUF}, s{S_BUF}")
        dma_rows(a, S_HIN, S_TMP + 2)
        a("s_waitcnt vmcnt(0)")
        a(f"s_branch T_go")
        a.label(f"{uid}_have")
        a("s_waitcnt vmcnt(3)")
    a(f"s_branch T_go")

def role_T_main(a, uid="T", st=False):
    WS = f"s[{S_WS}:{S_WS+3}]"
    if st: stamps_init(a)
    hflag_wait(a, uid + "0")
    dma_rows(a, S_HIN, S_BUF)
    a("s_waitcnt vmcnt(0)")
    a("s_barrier")
    a.label(f"T_item")
    trace(a, 10, S_S)
    stamp(a, 0, st)
    a(f"s_add_u32 s{S_HFO}, s{S_HFO}, 128")
    a(f"s_add_u32 s{S_HIN}, s{S_HIN}, 32768")
    a(f"s_cmp_lg_u32 s{S_EARLY}, 0")
    a(f"s_cbranch_scc1 T_early")
    role_T_item(a, "Tl", False, st)
    a.label("T_early")
    role_T_item(a, "Te", True, st)
    a.label("T_go")
    stamp(a, 7, st)
    a(f"s_sub_u32 s{S_TMP+2}, {XBUF}, s{S_BUF}")
    a(f"s_sub_u32 s{S_TMP}, s{S_TMP+2}, s{S_BUF}")
    a(f"v_add_u32 v{V_XR}, s{S_TMP}, v{V_XR}")
    a(f"s_mov_b32 s{S_BUF}, s{S_TMP+2}")
    a(f"s_add_u32 s{S_S}, s{S_S}, 1")
    for sreg in (S_KXO, S_VXO, S_QXO):
        a(f"s_add_u32 s{sreg}, s{sreg}, {32*8192}")
    a(f"s_add_u32 s{S_TFO}, s{S_TFO}, {32*16}")
    a(f"s_add_u32 s{S_QFO}, s{S_QFO}, {32*16}")
    a("s_barrier")
    if st:
        stamp(a, 8); stamps_accumulate(a)
    a(f"s_branch T_item")
    a.label(f"T_end")
    a("s_waitcnt vmcnt(0)")
    flag_store(a, S_QFO)
    a("s_waitcnt vmcnt(0)")
    if st:
        a(f"s_cmp_eq_u32 s{S_L}, 0")
        a(f"s_cbranch_scc0 {uid}_nost")
        stamps_store(a)
        a.label(f"{uid}_nost")
```

```python
from common import *
V_L16, V_F4, V_M4, V_VM, V_D, V_Z, V_F = 1, 2, 3, 4, 5, 6, 7
Q_, K_, V_, KM_, VM_ = 200, 32, 64, 96, 112
XS_ = 232
MM = 136
P_, PM_ = 140, 144
OD = 148
T0 = 180
S_S, S_HH, S_QT0, S_BASE, S_KMO, S_TFO, S_OFO, S_C, S_PRE = 18, 19, 21, 23, 24, 25, 27, 28, 29
S_MSK = 30
S_TMP = 46

def role_TA_prologue(a, split=False):
    a.c("===== TA prologue =====")
    a(f"s_and_b32 s16, s{S_H}, 7")
    a(f"s_lshl_b32 s16, s16, 2")
    a(f"s_add_u32 s16, s16, s{S_W}")
    if split:
        a(f"s_lshr_b32 s{S_HH}, s16, 1")
        a(f"s_and_b32 s{S_QT0}, s16, 1")
    else:
        a(f"s_mov_b32 s{S_HH}, s16")
        a(f"s_mov_b32 s{S_QT0}, 0")
    n, g, t = 16, 17, 18
    a(f"v_and_b32 v{n}, 15, v0")
    a(f"v_lshrrev_b32 v{g}, 4, v0")
    a(f"v_lshlrev_b32 v{V_L16}, 4, v0")
    a(f"v_and_b32 v{t}, 3, v0")
    a(f"v_lshlrev_b32 v{V_F4}, 2, v{t}")
    a(f"v_bfe_u32 v19, v0, 2, 1")
    a(f"v_mul_u32_u24 v19, {QF - TF}, v19")
    a(f"v_add_u32 v{V_F4}, v{V_F4}, v19")
    a(f"v_lshlrev_b32 v{V_M4}, 10, v{t}")
    a(f"v_or_b32 v{t}, 2, v{n}")
    a(f"v_lshl_add_u32 v{t}, v{g}, 4, v{t}")
    a(f"v_lshlrev_b32 v{V_VM}, 4, v{t}")
    a(f"v_bfe_u32 v{t}, v{n}, 1, 1")
    a(f"v_lshl_add_u32 v{V_VM}, v{t}, 3, v{V_VM}")
    a(f"v_lshlrev_b32 v{t}, 2, v{g}")
    a(f"v_sub_u32 v{V_D}, v{n}, v{t}")
    a(f"v_mov_b32 v{V_Z}, 0")
    for w in range(8):
        a(f"v_mov_b32 v{VM_ + 2*w + 1}, 0")
    a(f"v_mov_b32 v{PM_+1}, 0")
    a(f"v_mov_b32 v197, 0")
    a(f"s_mul_i32 s{S_BASE}, s{S_L}, {KX_L}")
    a(f"s_lshl_b32 s16, s{S_HH}, 13")
    a(f"s_add_u32 s{S_BASE}, s{S_BASE}, s16")
    a(f"s_mul_i32 s{S_KMO}, s{S_L}, {KM_L}")
    a(f"s_lshl_b32 s16, s{S_HH}, 12")
    a(f"s_add_u32 s{S_KMO}, s{S_KMO}, s16")
    a(f"s_add_u32 s{S_KMO}, s{S_KMO}, {KM}")
    a(f"s_mul_i32 s{S_TFO}, s{S_L}, {TF_L}")
    a(f"s_lshl_b32 s16, s{S_HH}, 4")
    a(f"s_add_u32 s{S_TFO}, s{S_TFO}, s16")
    a(f"s_add_u32 s{S_TFO}, s{S_TFO}, {TF}")
    a(f"s_mul_i32 s{S_OFO}, s{S_L}, {OF_L}")
    a(f"s_lshl_b32 s16, s{S_HH}, 3")
    a(f"s_add_u32 s{S_OFO}, s{S_OFO}, s16")
    a(f"s_add_u32 s{S_OFO}, s{S_OFO}, {OF}")
    a(f"s_mov_b32 s{S_C}, 0x3e0293ee")
    a(f"s_lshr_b32 s{S_S}, s{S_H}, 3")
    a(f"s_mul_i32 s16, s{S_S}, {32*8192}")
    a(f"s_add_u32 s{S_BASE}, s{S_BASE}, s16")
    a(f"s_mul_i32 s16, s{S_S}, {32*4096}")
    a(f"s_add_u32 s{S_KMO}, s{S_KMO}, s16")
    a(f"s_mul_i32 s16, s{S_S}, {32*16}")
    a(f"s_add_u32 s{S_TFO}, s{S_TFO}, s16")
    a(f"s_mul_i32 s16, s{S_S}, {64*4}")
    a(f"s_add_u32 s{S_OFO}, s{S_OFO}, s16")

def role_TA_main(a, nqt, uid="TA", st=False):
    WS = f"s[{S_WS}:{S_WS+3}]"
    NLD = 16 + 4 * nqt
    if st: stamps_init(a)
    def issue_qkv():
        a(f"s_add_u32 s{S_TMP}, s{S_BASE}, {KX}")
        a(f"s_add_u32 s{S_TMP+1}, s{S_TMP}, 4096")
        for i in range(8):
            so = S_TMP if i < 4 else S_TMP + 1
            a(f"buffer_load_dwordx4 v[{K_+4*i}:{K_+4*i+3}], v{V_L16}, {WS}, s{so} offen offset:{1024*(i%4)} sc1")
        for u in range(nqt):
            a(f"s_add_u32 s{S_TMP+2}, s{S_QT0}, {u}")
            a(f"s_lshl_b32 s{S_TMP+2}, s{S_TMP+2}, 12")
            a(f"s_add_u32 s{S_TMP+2}, s{S_TMP+2}, s{S_BASE}")
            a(f"s_add_u32 s{S_TMP+2}, s{S_TMP+2}, {QX}")
            for i in range(4):
                r = Q_ + 16 * u + 4 * i
                a(f"buffer_load_dwordx4 v[{r}:{r+3}], v{V_L16}, {WS}, s{S_TMP+2} offen offset:{1024*i} sc1")
        a(f"s_add_u32 s{S_TMP}, s{S_BASE}, {VX}")
        a(f"s_add_u32 s{S_TMP+1}, s{S_TMP}, 4096")
        for i in range(8):
            so = S_TMP if i < 4 else S_TMP + 1
            a(f"buffer_load_dwordx4 v[{V_+4*i}:{V_+4*i+3}], v{V_L16}, {WS}, s{so} offen offset:{1024*(i%4)} sc1")
    def mloads():
        a(f"s_add_u32 s{S_TMP}, s{S_KMO}, {32*4096}")
        a(f"buffer_load_dword v{T0+2}, v{V_M4}, {WS}, s{S_TMP} offen sc1")
        for ks in range(4):
            a(f"buffer_load_dwordx4 v[{KM_+4*ks}:{KM_+4*ks+3}], v{V_L16}, {WS}, s{S_KMO} offen offset:{1024*ks} sc1")
        for w in range(4):
            for t in range(2):
                a(f"buffer_load_dword v{VM_+2*(2*w+t)}, v{V_VM}, {WS}, s{S_KMO} offen offset:{1024*w + 4*t} sc1")
    NM = 13
    flag_wait(a, T0, V_F4, S_TFO, uid + "0")
    issue_qkv()
    mloads()
    a(f"s_waitcnt vmcnt({8 + NM})")
    a.label(f"{uid}_item")
    stamp(a, 0, st)
    for u in range(nqt):
        X0, X1 = XS_ + 8 * u, XS_ + 8 * u + 4
        for ks in range(4):
            q = Q_ + 16 * u + 4 * ks
            c0 = "0" if ks == 0 else f"v[{X0}:{X0+3}]"
            c1 = "0" if ks == 0 else f"v[{X1}:{X1+3}]"
            a(f"v_mfma_f32_16x16x32_bf16 v[{X0}:{X0+3}], v[{K_+4*ks}:{K_+4*ks+3}], v[{q}:{q+3}], {c0}")
            a(f"v_mfma_f32_16x16x32_bf16 v[{X1}:{X1+3}], v[{K_+16+4*ks}:{K_+16+4*ks+3}], v[{q}:{q+3}], {c1}")
    a(f"s_add_u32 s{S_TFO}, s{S_TFO}, {2*32*16}")
    a(f"buffer_load_dword v{V_F}, v{V_F4}, {WS}, s{S_TFO} offen sc1")
    lab = f"{uid}_m"
    stamp(a, 1, st)
    for u in range(nqt):
        X0, X1 = XS_ + 8 * u, XS_ + 8 * u + 4
        a(f"s_add_u32 s{S_TMP+3}, s{S_QT0}, {u}")
        a(f"s_lshl_b32 s{S_TMP+3}, s{S_TMP+3}, 4")
        a(f"v_add_u32 v{T0}, s{S_TMP+3}, v{V_D}")
        for kt in range(2):
            for r in range(4):
                m = S_MSK + 2 * (4*kt + r)
                a(f"v_cmp_le_i32 s[{m}:{m+1}], {16*kt + r}, v{T0}")
        a(f"v_mov_b32 v{T0+1}, 0xff800000")
        for kt, X in ((0, X0), (1, X1)):
            for r in range(4):
                m = S_MSK + 2 * (4*kt + r)
                a(f"v_cndmask_b32 v{X+r}, v{T0+1}, v{X+r}, s[{m}:{m+1}]")
    a("s_waitcnt vmcnt(0)")
    a(f"s_cmp_ge_u32 s{S_S}, 62")
    a(f"s_cbranch_scc1 {lab}_strict")
    a(f"v_cmp_eq_u32 vcc, -1, v{T0+2}")
    a(f"s_cbranch_vccz {lab}_ok")
    a.label(lab + "_strict")
    a(f"s_add_u32 s{S_TMP}, s{S_KMO}, {32*4096}")
    a.label(lab)
    a(f"buffer_load_dword v{T0+2}, v{V_M4}, {WS}, s{S_TMP} offen sc1")
    a("s_waitcnt vmcnt(0)")
    a(f"v_cmp_eq_u32 vcc, -1, v{T0+2}")
    a(f"s_cbranch_vccz {lab}_got")
    backoff(a)
    a(f"s_sub_u32 s{S_TMO}, s{S_TMO}, 1")
    a(f"s_cbranch_scc0 {lab}")
    a.label(lab + "_got")
    mloads()
    a("s_waitcnt vmcnt(0)")
    a.label(lab + "_ok")
    trace(a, 128, S_S)
    stamp(a, 2, st)
    UR = (dict(MM=136, P=140, PM=144, OD=148, T=180), dict(MM=8, P=12, PM=196, OD=32, T=16))
    def unit(x, u):
        X0, X1 = XS_ + 8 * u, XS_ + 8 * u + 4
        MM, P_, PM_, OD, T0 = (UR[u][k] for k in ("MM", "P", "PM", "OD", "T"))
        for ks in range(4):
            q = Q_ + 16 * u + 4 * ks
            c = "0" if ks == 0 else f"v[{MM}:{MM+3}]"
            x(f"v_mfma_f32_16x16x32_bf16 v[{MM}:{MM+3}], v[{KM_+4*ks}:{KM_+4*ks+3}], v[{q}:{q+3}], {c}")
        x(f"v_max3_f32 v{T0}, v{X0}, v{X0+1}, v{X0+2}")
        x(f"v_max3_f32 v{T0+1}, v{X0+3}, v{X1}, v{X1+1}")
        x(f"v_max3_f32 v{T0}, v{T0}, v{X1+2}, v{X1+3}")
        x(f"v_max_f32 v{T0}, v{T0}, v{T0+1}")
        x("s_nop 4")
        x(f"v_max3_f32 v{T0}, v{T0}, v{MM}, v{MM+1}")
        x(f"v_mov_b32 v{T0+1}, v{T0}")
        x("s_nop 1")
        x(f"v_permlane16_swap_b32 v{T0}, v{T0+1}")
        x(f"v_max_f32 v{T0}, v{T0}, v{T0+1}")
        x(f"v_mov_b32 v{T0+1}, v{T0}")
        x("s_nop 1")
        x(f"v_permlane32_swap_b32 v{T0}, v{T0+1}")
        x(f"v_max_f32 v{T0}, v{T0}, v{T0+1}")
        x(f"v_mul_f32 v{T0}, s{S_C}, v{T0}")
        vals = [X0+r for r in range(4)] + [X1+r for r in range(4)] + [MM, MM+1]
        for r in vals: x(f"v_fma_f32 v{r}, v{r}, s{S_C}, -v{T0}")
        for r in vals: x(f"v_exp_f32 v{r}, v{r}")
        x("s_nop 1")
        x(f"v_cvt_pk_bf16_f32 v{P_}, v{X0}, v{X0+1}")
        x(f"v_cvt_pk_bf16_f32 v{P_+1}, v{X0+2}, v{X0+3}")
        x(f"v_cvt_pk_bf16_f32 v{P_+2}, v{X1}, v{X1+1}")
        x(f"v_cvt_pk_bf16_f32 v{P_+3}, v{X1+2}, v{X1+3}")
        x(f"v_cvt_pk_bf16_f32 v{PM_}, v{MM}, v{MM+1}")
        x("s_nop 2")
        for i in range(8):
            d = OD + 4 * i
            x(f"v_mfma_f32_16x16x32_bf16 v[{d}:{d+3}], v[{V_+4*i}:{V_+4*i+3}], v[{P_}:{P_+3}], 0")
        for i in range(8):
            d = OD + 4 * i
            x(f"v_mfma_f32_16x16x16_bf16 v[{d}:{d+3}], v[{VM_+2*i}:{VM_+2*i+1}], v[{PM_}:{PM_+1}], v[{d}:{d+3}]")
        x(f"v_add_f32 v{T0}, v{X0}, v{X0+1}")
        x(f"v_add_f32 v{T0+1}, v{X0+2}, v{X0+3}")
        x(f"v_add_f32 v{T0+2}, v{X1}, v{X1+1}")
        x(f"v_add_f32 v{T0+3}, v{X1+2}, v{X1+3}")
        x(f"v_add_f32 v{T0}, v{T0}, v{T0+1}")
        x(f"v_add_f32 v{T0+2}, v{T0+2}, v{T0+3}")
        x(f"v_add_f32 v{T0+1}, v{MM}, v{MM+1}")
        x(f"v_add_f32 v{T0}, v{T0}, v{T0+2}")
        x(f"v_add_f32 v{T0}, v{T0}, v{T0+1}")
        x(f"v_mov_b32 v{T0+1}, v{T0}")
        x("s_nop 1")
        x(f"v_permlane16_swap_b32 v{T0}, v{T0+1}")
        x(f"v_add_f32 v{T0}, v{T0}, v{T0+1}")
        x(f"v_mov_b32 v{T0+1}, v{T0}")
        x("s_nop 1")
        x(f"v_permlane32_swap_b32 v{T0}, v{T0+1}")
        x(f"v_add_f32 v{T0}, v{T0}, v{T0+1}")
        x(f"v_rcp_f32 v{T0}, v{T0}")
        x("s_nop 1")
        x(f"v_mov_b32 v{T0+1}, v{T0}")
    def unit_out(x, u):
        OD, T0 = UR[u]["OD"], UR[u]["T"]
        so = S_TMP + 2 + u
        for w in range(4):
            d = OD + 8 * w
            for k in range(0, 8, 2):
                x(f"v_pk_mul_f32 v[{d+k}:{d+k+1}], v[{d+k}:{d+k+1}], v[{T0}:{T0+1}]")
            o = T0 + 4 + 4 * (w & 1)
            for k in range(4):
                x(f"v_cvt_pk_bf16_f32 v{o+k}, v{d+2*k}, v{d+2*k+1}")
            x(f"buffer_store_dwordx4 v[{o}:{o+3}], v{V_L16}, {WS}, s{so} offen offset:{1024*w} sc1")
    assert nqt == 2
    interleave2(a, lambda x: unit(x, 0), lambda x: unit(x, 1))
    for u in range(2):
        a(f"s_add_u32 s{S_TMP+2+u}, s{S_BASE}, {OB + 4096*u}")
    interleave2(a, lambda x: unit_out(x, 0), lambda x: unit_out(x, 1))
    stamp(a, 3, st)
    a(f"s_add_u32 s{S_BASE}, s{S_BASE}, {2*32*8192}")
    a(f"s_add_u32 s{S_KMO}, s{S_KMO}, {2*32*4096}")
    lab = f"{uid}_pre"
    a(f"s_cmp_ge_u32 s{S_S}, 62")
    a(f"s_cbranch_scc1 {lab}_last")
    def oflag():
        a(f"v_mov_b32 v{T0}, 1")
        a(f"v_lshlrev_b32 v{T0+1}, 2, v0")
        a(f"s_mov_b64 exec, {(1 << nqt) - 1}")
        a(f"buffer_store_dword v{T0}, v{T0+1}, {WS}, s{S_OFO} offen sc1")
        a("s_mov_b64 exec, -1")
        trace(a, 129, S_S)
    a(f"buffer_load_dword v{V_F}, v{V_F4}, {WS}, s{S_TFO} offen sc1")
    a("s_waitcnt vmcnt(0)")
    stamp(a, 4, st)
    oflag()
    a(f"v_cmp_eq_u32 vcc, 0, v{V_F}")
    a(f"s_cbranch_vccz {lab}_cp")
    flag_wait(a, T0, V_F4, S_TFO, uid + "1")
    a.label(lab + "_cp")
    issue_qkv()
    mloads()
    a(f"s_waitcnt vmcnt({8 + NM})")
    a.label(f"{uid}_go")
    a(f"s_add_u32 s{S_S}, s{S_S}, 2")
    a(f"s_add_u32 s{S_OFO}, s{S_OFO}, {2*64*4}")
    if st:
        stamp(a, 5); stamp(a, 6); stamp(a, 7); stamp(a, 8); stamps_accumulate(a)
    a(f"s_branch {uid}_item")
    a.label(lab + "_last")
    a("s_waitcnt vmcnt(0)")
    oflag()
    a.label(f"{uid}_end")
    a("s_waitcnt vmcnt(0)")
    if st:
        a(f"s_cmp_eq_u32 s{S_L}, 0")
        a(f"s_cbranch_scc0 {uid}_nost")
        stamps_store(a)
        a.label(f"{uid}_nost")
```

```python
import sys
from common import *
import role_R, role_T, role_TA, role_O, role_O16, role_Ao, role_Aq
opts = set(sys.argv[2:])
import common
common.TRACE_ON = "trace" in opts
for o_ in opts:
    if o_.startswith("bo="): common.BACKOFF = int(o_[3:])
role_R_L2PF = "pf" in opts
out = sys.argv[1]
NAME = "interleave_layers__sliding_block__memory_aug_recurrent_mem_tr__prompt"
role_R.L2PF = role_R_L2PF
S_LOCAL = 100
S_TEAM = 99
TMO = 1 << 20

HEADER = f"""; Sliding-window attention / recurrent-memory transformer stack, two launches:
;   {NAME}_kernel : persistent dataflow kernel, one workgroup per CU, one role per group of 32 workgroups
; @launch kernel=prep_kernel grid=(256,1,1) block=(256,1,1) lds=0
; @launch kernel={NAME}_kernel grid=(256,1,1) block=(256,1,1) lds=163840
"""

def prep_kernel(a):
    name = "prep_kernel"
    a(kernel_header(name))
    a("s_cmp_ge_u32 s2, 256")
    a("s_cbranch_scc1 prep_exit")
    srd_from_kernarg(a, S_WS, KA_WS, WS_BYTES)
    srd_from_kernarg(a, S_T0, KA_AX, S * D * 2)
    WS = f"s[{S_WS}:{S_WS+3}]"
    a("v_lshrrev_b32 v1, 6, v0")
    a("s_nop 0")
    a(f"v_readfirstlane_b32 s{S_W}, v1")
    a("v_and_b32 v2, 63, v0")
    a("v_lshlrev_b32 v3, 4, v2")
    a("s_lshl_b32 s16, s2, 2")
    a(f"s_add_u32 s16, s16, s{S_W}")
    a("s_lshl_b32 s16, s16, 11")
    a(f"buffer_load_dwordx4 v[16:19], v3, s[{S_T0}:{S_T0+3}], s16 offen")
    a(f"buffer_load_dwordx4 v[20:23], v3, s[{S_T0}:{S_T0+3}], s16 offen offset:1024")
    a("v_lshlrev_b32 v4, 4, v0")
    for r in range(8, 12): a(f"v_mov_b32 v{r}, -1")
    for r in range(12, 16): a(f"v_mov_b32 v{r}, 0")
    assert FF_END == 3 * MB
    a("s_lshl_b32 s17, s2, 12")
    for k in range(3):
        a(f"s_add_u32 s18, s17, {k * MB}")
        a(f"buffer_store_dwordx4 v[8:11], v4, {WS}, s18 offen")
    nfl = (FLAGS_END - FLAGS) // 4096
    a(f"s_cmp_ge_u32 s2, {nfl}")
    a("s_cbranch_scc1 prep_nofl")
    a(f"s_add_u32 s18, s17, {FLAGS}")
    a(f"buffer_store_dwordx4 v[12:15], v4, {WS}, s18 offen")
    a.label("prep_nofl")
    nmark = 2 * 65 * 32 * 4
    a("s_lshl_b32 s18, s2, 8")
    a("v_add_u32 v5, s18, v0")
    a(f"v_cmp_gt_u32 vcc, {nmark}, v5")
    a("s_and_saveexec_b64 s[20:21], vcc")
    a("s_cbranch_execz prep_nomark")
    a("v_lshlrev_b32 v5, 10, v5")
    a(f"s_mov_b32 s18, {KM}")
    a(f"buffer_store_dword v8, v5, {WS}, s18 offen")
    a.label("prep_nomark")
    a("s_mov_b64 exec, s[20:21]")
    a("s_waitcnt vmcnt(0)")
    def ln_only(x, XR, Y, T):
        for k in range(4):
            x(f"v_lshlrev_b32 v{Y+2*k}, 16, v{XR+k}")
            x(f"v_and_b32 v{Y+2*k+1}, 0xffff0000, v{XR+k}")
        m, t = T + 4, T + 5
        x(f"v_pk_add_f32 v[{T}:{T+1}], v[{Y}:{Y+1}], v[{Y+2}:{Y+3}]")
        x(f"v_pk_add_f32 v[{T+2}:{T+3}], v[{Y+4}:{Y+5}], v[{Y+6}:{Y+7}]")
        x(f"v_pk_add_f32 v[{T}:{T+1}], v[{T}:{T+1}], v[{T+2}:{T+3}]")
        x(f"v_add_f32 v{m}, v{T}, v{T+1}")
        wave_allreduce_add(x, m, t)
        x(f"v_mul_f32 v{m}, 0xbb000000, v{m}")
        x(f"v_mov_b32 v{t}, v{m}")
        for k in range(4):
            x(f"v_pk_add_f32 v[{Y+2*k}:{Y+2*k+1}], v[{Y+2*k}:{Y+2*k+1}], v[{m}:{t}]")
        x(f"v_pk_mul_f32 v[{T}:{T+1}], v[{Y}:{Y+1}], v[{Y}:{Y+1}]")
        for k in range(1, 4):
            x(f"v_pk_fma_f32 v[{T}:{T+1}], v[{Y+2*k}:{Y+2*k+1}], v[{Y+2*k}:{Y+2*k+1}], v[{T}:{T+1}]")
        s_, t2 = T + 6, T + 7
        x(f"v_add_f32 v{s_}, v{T}, v{T+1}")
        wave_allreduce_add(x, s_, t2)
        x(f"v_mov_b32 v{t2}, 0x3727c5ac")
        x(f"v_fmac_f32 v{t2}, 0x3b000000, v{s_}")
        x(f"v_rsq_f32 v{s_}, v{t2}")
        x("s_nop 0")
        x(f"v_mov_b32 v{t2}, v{s_}")
        for k in range(4):
            x(f"v_pk_mul_f32 v[{Y+2*k}:{Y+2*k+1}], v[{Y+2*k}:{Y+2*k+1}], v[{s_}:{t2}]")
        for k in range(4):
            x(f"v_cvt_pk_bf16_f32 v{T+k}, v{Y+2*k}, v{Y+2*k+1}")
    interleave2(a, lambda x: ln_only(x, 16, 24, 40), lambda x: ln_only(x, 20, 32, 52))
    a(f"s_add_u32 s16, s16, {HB}")
    a(f"buffer_store_dwordx4 v[40:43], v3, {WS}, s16 offen")
    a(f"buffer_store_dwordx4 v[52:55], v3, {WS}, s16 offen offset:1024")
    a("s_waitcnt vmcnt(0)")
    a.label("prep_exit")
    a("s_endpgm")

def census_wait(a, uid):
    lab = f"census_{uid}"
    srd_from_kernarg(a, S_T0, KA_DBG, 256)
    a("v_and_b32 v21, 7, v0")
    a("v_lshlrev_b32 v21, 4, v21")
    a.label(lab)
    a(f"buffer_load_dword v20, v21, s[{S_T0}:{S_T0+3}], 0 offen sc1")
    a("s_waitcnt vmcnt(0)")
    a("s_mov_b32 s16, 0")
    for k in range(8):
        a(f"v_readlane_b32 s17, v20, {k}")
        a("s_nop 0")
        a("s_add_u32 s16, s16, s17")
    a(f"s_cmp_ge_u32 s16, 256")
    a(f"s_cbranch_scc1 {lab}_ok")
    a(f"s_sub_u32 s{S_TMO}, s{S_TMO}, 1")
    a(f"s_cbranch_scc1 {lab}_ok")
    a(f"s_branch {lab}")
    a.label(lab + "_ok")

def mega_kernel(a):
    name = NAME + "_kernel"
    a(kernel_header(name))
    a("s_cmp_ge_u32 s2, 256")
    a("s_cbranch_scc1 L_exit")
    srd_from_kernarg(a, S_WS, KA_WS, WS_BYTES)
    srd_from_kernarg(a, S_T0, KA_DBG, 256)
    a(f"s_mov_b32 s{S_TMO}, {TMO}")
    a("s_getreg_b32 s20, hwreg(HW_REG_XCC_ID, 0, 4)")
    a("s_and_b32 s20, s20, 7")
    a("s_lshl_b32 s21, s20, 4")
    a("v_mov_b32 v1, s21")
    a("v_mov_b32 v2, 1")
    a("v_cmp_eq_u32 vcc, 0, v0")
    a("s_and_saveexec_b64 s[22:23], vcc")
    a("s_cbranch_execz L_noat")
    a(f"buffer_atomic_add v2, v1, s[{S_T0}:{S_T0+3}], 0 offen sc0")
    a("s_waitcnt vmcnt(0)")
    a("v_mov_b32 v1, 0")
    a("ds_write_b32 v1, v2")
    a("s_waitcnt lgkmcnt(0)")
    a.label("L_noat")
    a("s_mov_b64 exec, s[22:23]")
    a("s_barrier")
    a("v_mov_b32 v1, 0")
    a("ds_read_b32 v2, v1")
    a("s_waitcnt lgkmcnt(0)")
    a(f"v_readfirstlane_b32 s{S_H}, v2")
    a("v_lshrrev_b32 v1, 6, v0")
    a("s_nop 0")
    a(f"v_readfirstlane_b32 s{S_W}, v1")
    a("v_and_b32 v0, 63, v0")
    a(f"s_mov_b32 s{S_TEAM}, s20")
    a("s_barrier")
    a(f"s_cmp_lt_u32 s{S_H}, 32")
    a("s_cbranch_scc1 L_haveslot")
    census_wait(a, "ov")
    a(f"s_sub_u32 s18, s{S_H}, 32")
    for k in range(8):
        a(f"v_readlane_b32 s17, v20, {k}")
        a("s_nop 0")
        a("s_max_u32 s17, s17, 32")
        a("s_sub_u32 s17, s17, 32")
        a(f"s_cmp_lt_u32 {k}, s{S_TEAM}")
        a("s_cselect_b32 s17, s17, 0")
        a("s_add_u32 s18, s18, s17")
    a(f"s_mov_b32 s19, 0")
    for k in range(8):
        lab = f"L_vac{k}"
        a(f"v_readlane_b32 s17, v20, {k}")
        a("s_nop 0")
        a("s_min_u32 s17, s17, 32")
        a("s_sub_u32 s16, 32, s17")
        a("s_cmp_lg_u32 s19, 0")
        a(f"s_cbranch_scc1 {lab}")
        a("s_cmp_lt_u32 s18, s16")
        a(f"s_cbranch_scc0 {lab}_n")
        a(f"s_mov_b32 s{S_TEAM}, {k}")
        a(f"s_add_u32 s{S_H}, s17, s18")
        a("s_mov_b32 s19, 1")
        a(f"s_branch {lab}")
        a.label(lab + "_n")
        a("s_sub_u32 s18, s18, s16")
        a.label(lab)
    a("s_cmp_eq_u32 s19, 0")
    a("s_cbranch_scc1 L_exit")
    a.label("L_haveslot")
    for t, lab in ((0, "J_R0"), (1, "J_R1"), (5, "J_O0"), (6, "J_O1")):
        a(f"s_cmp_eq_u32 s{S_TEAM}, {t}")
        a(f"s_cbranch_scc1 {lab}")
    a(f"s_sub_u32 s16, s{S_TEAM}, 2")
    a(f"s_cmp_eq_u32 s{S_TEAM}, 7")
    a(f"s_cselect_b32 s16, 3, s16")
    a(f"s_lshr_b32 s17, s{S_H}, 3")
    a(f"s_and_b32 s18, s{S_H}, 7")
    a(f"s_lshl_b32 s19, s16, 3")
    a(f"s_add_u32 s{S_H}, s19, s18")
    a(f"s_cmp_eq_u32 s17, 0")
    a(f"s_cbranch_scc1 J_T0")
    a(f"s_cmp_eq_u32 s17, 1")
    a(f"s_cbranch_scc1 J_T1")
    a(f"s_cmp_eq_u32 s17, 2")
    a(f"s_cbranch_scc1 J_Aq")
    a(f"s_lshl_b32 s18, s18, 2")
    a(f"s_add_u32 s{S_H}, s18, s16")
    a("s_branch X7_entry")
    for lab, layer, dst in (("J_R0", 0, "R_entry"), ("J_R1", 1, "R_entry"), ("J_O0", 0, "O_entry"), ("J_O1", 1, "X6_entry"),
                            ("J_T0", 0, "T_entry"), ("J_T1", 1, "T_entry"), ("J_Aq", 0, "Aq_entry")):
        a.label(lab)
        a(f"s_mov_b32 s{S_L}, {layer}")
        far_jump(a, dst)
    a.label("L_exit")
    a("s_endpgm")
    def local_flag(uid):
        census_wait(a, uid)
        a(f"v_readlane_b32 s17, v20, s{S_TEAM}")
        a("s_nop 0")
        a("s_cmp_ge_u32 s17, 32")
        a(f"s_cselect_b32 s{S_LOCAL}, 1, 0")
    st = "st" in opts
    a.label("R_entry")
    role_R.role_R_prologue(a)
    a(f"s_mov_b32 s{S_TEAM}, s{S_L}")
    local_flag("R")
    a(f"s_mov_b32 s{role_R.S_S}, 0")
    a(f"s_cmp_eq_u32 s{S_LOCAL}, 0")
    a("s_cbranch_scc1 R_nonlocal")
    if common.TRACE_ON:
        a("s_memtime s[86:87]"); a("s_memrealtime s[88:89]"); a("s_waitcnt lgkmcnt(0)")
    role_R.role_R_main(a, local=True, uid="Rl", stamps=("stR" in opts), probe=("probe" in opts))
    if "stR" in opts:
        a(f"s_cmp_eq_u32 s{S_L}, {1 if 'l1' in opts else 0}")
        a("s_cbranch_scc0 R_nost")
        stamps_store(a)
        a.label("R_nost")
    if common.TRACE_ON:
        a("s_memtime s[92:93]"); a("s_memrealtime s[94:95]"); a("s_waitcnt lgkmcnt(0)")
        a("s_sub_u32 s92, s92, s86"); a("s_sub_u32 s94, s94, s88")
        a("s_mov_b32 m0, 63"); a("v_writelane_b32 v20, s92, m0")
        a("s_mov_b32 m0, 62"); a("v_writelane_b32 v20, s94, m0")
        a("v_mov_b32 v17, v20")
    finish(a, "Rl", st)
    a.label("R_nonlocal")
    role_R.role_R_main(a, local=False, uid="Rn")
    a("s_endpgm")
    a.label("T_entry")
    role_T.role_T_prologue(a)
    role_T.role_T_main(a, st=("stT" in opts))
    finish(a, "T", False)
    a.label("Aq_entry")
    role_Aq.role_Aq_prologue(a)
    role_Aq.role_Aq_main(a, st=st)
    finish(a, "Aq", False)
    a.label("O_entry")
    role_O.role_O_prologue(a)
    a(f"s_mov_b32 s{S_TEAM}, 5")
    local_flag("O")
    a(f"s_mov_b32 s{role_O.S_S}, 0")
    a(f"s_cmp_eq_u32 s{S_LOCAL}, 0")
    a("s_cbranch_scc1 O_l0n")
    role_O.role_O_main(a, 0, local=True, uid="O0l", st=("stO" in opts)); finish(a, "O0l", False)
    a.label("O_l0n")
    role_O.role_O_main(a, 0, local=False, uid="O0n"); a("s_endpgm")
    a.label("X6_entry")
    a(f"s_cmp_lt_u32 s{S_H}, 16")
    a("s_cbranch_scc1 O16_entry")
    a(f"s_sub_u32 s{S_H}, s{S_H}, 16")
    a("s_branch TA_entry")
    a.label("O16_entry")
    role_O16.role_O16_prologue(a)
    a(f"s_mov_b32 s{S_TEAM}, 6")
    local_flag("O16")
    a(f"s_mov_b32 s{role_O16.S_S}, 0")
    a(f"s_cmp_eq_u32 s{S_LOCAL}, 0")
    a("s_cbranch_scc1 O16_n")
    role_O16.role_O16_main(a, local=True, uid="O16l", st=("stO16" in opts)); finish(a, "O1l", False)
    a.label("O16_n")
    role_O16.role_O16_main(a, local=False, uid="O16n"); a("s_endpgm")
    a.label("X7_entry")
    a(f"s_mov_b32 s{S_L}, 0")
    a(f"s_cmp_lt_u32 s{S_H}, 16")
    a("s_cbranch_scc1 TA_entry")
    a(f"s_sub_u32 s{S_H}, s{S_H}, 16")
    role_Ao.role_Ao_prologue(a)
    role_Ao.role_Ao_main(a, st=st)
    finish(a, "Ao", False)
    a.label("TA_entry")
    role_TA.role_TA_prologue(a)
    role_TA.role_TA_main(a, 2, uid="TA", st=("stTA" in opts))
    finish(a, "TA", False)

def far_jump(a, lab):
    a(f"s_branch {lab}")

def finish(a, uid, st):
    if common.TRACE_ON:
        role, regs = {"Rl": (None, [0, 17]), "T": (None, [10, 11]), "Aq": ("aq", [240, 241]), "O0l": (5, [9, 10]), "O1l": (6, [9, 10]),
                      "Ao": ("ao", [12, 13]), "TA": ("ta", [128, 129])}[uid]
        if uid == "Rl": a(f"s_mov_b32 s92, s{S_L}")
        elif uid == "T": a(f"s_add_u32 s92, s{S_L}, 2")
        elif uid == "Aq":
            a(f"s_lshr_b32 s92, s{S_H}, 4")
            a(f"s_mul_i32 s92, s92, 7")
            a(f"s_add_u32 s92, s92, 4")
            a(f"s_and_b32 s{S_H}, s{S_H}, 15")
        elif uid == "TA": a(f"s_add_u32 s92, s{S_L}, 7")
        elif uid == "Ao":
            a(f"s_lshr_b32 s92, s{S_H}, 3")
            a(f"s_add_u32 s92, s92, 9")
            a(f"s_and_b32 s{S_H}, s{S_H}, 7")
        else: a(f"s_mov_b32 s92, {role}")
        trace_dump(a, regs, 92)
    a("s_endpgm")

a = Asm()
a.L.append(HEADER.rstrip("\n"))
a('.amdgcn_target "amdgcn-amd-amdhsa--gfx950"')
a(".text")
prep_kernel(a)
mega_kernel(a)
a('.section .rodata,"a"')
a(".p2align 6")
a(kernel_desc("prep_kernel", vgpr=64, accum=64, sgpr=40))
a(".p2align 6")
a(kernel_desc(NAME + "_kernel"))
open(out, "w").write(a.text())
print(out, len(a.L), "lines", len(a.text()), "bytes")
```

```python
S, D, H, DH, M, SEG, NSEG = 2048, 512, 32, 128, 8, 32, 64
KA_AX, KA_AWQKV, KA_AWO, KA_BX, KA_MEM0, KA_WQ, KA_WK, KA_WV, KA_WO, KA_SEG, KA_OUT, KA_DBG, KA_WS = [8*i for i in range(13)]
MB = 1 << 20
MEMRING   = 0
MEMRING_L = 4 * 8192
INBOX     = 1 * MB
INBOX_SLOT= 32 * 32 * 256
INBOX_L   = 2 * INBOX_SLOT
OIN       = 2 * MB
OIN_SLOT  = 32 * 8 * 1024
OIN_L     = 2 * OIN_SLOT
FF_END    = 3 * MB
FLAGS     = 4 * MB
TF        = FLAGS
TF_L      = 65 * 32 * 16
QF        = FLAGS + 0x20000
QF_L      = TF_L
AOF       = FLAGS + 0x40000
AOF_L     = 64 * 64 * 4
HF        = FLAGS + 0x48000
HF_J      = 64 * 32 * 4
OF        = FLAGS + 0x50000
OF_L      = 64 * 64 * 4
FLAGS_END = FLAGS + 0x60000
HB        = 8 * MB
XB        = 16 * MB
ROWS_J    = S * D * 2
AO        = 24 * MB
AO_L      = 64 * 32768
QX        = 32 * MB
KX        = 64 * MB
VX        = 96 * MB
KX_L      = 64 * 32 * 8192
KM        = 129 * MB
KM_L      = 66 * 32 * 4096
OB        = 160 * MB
OB_L      = 64 * 32 * 8192
STAMP     = 250 * MB
WS_BYTES  = 256 * MB

O2_SPLIT = 52
```

```python
from common import *
L_Y = 65536
V_L16, V_XRD, V_OF, V_PST, V_INR, V_YW, V_YR, V_Z = 1, 2, 3, 4, 5, 6, 7, 8
SEL = 12
XF = 24
ACC = 56
MSG = 72
INA, INB, RD = 80, 84, 88
Y_, RES, TT = 96, 104, 108
W_ = 0
S_S, S_OBO, S_OFO, S_BUF, S_PRE, S_INS, S_TAG, S_XIN, S_XOUT, S_HOUT, S_HFO, S_PEND, S_OINB = 18, 19, 20, 21, 22, 23, 24, 25, 26, 27, 28, 29, 30
S_LO8 = 32
S_M0, S_M1 = 40, 42
S_EARLY = 31
S_SEG = 34
S_OUT = 36
S_TMP = 44

def role_O_prologue(a):
    a.c("===== O prologue =====")
    a(f"s_lshr_b32 s18, s{S_H}, 2")
    a(f"s_lshl_b32 s18, s18, 19")
    a(f"s_and_b32 s19, s{S_H}, 3")
    a(f"s_lshl_b32 s19, s19, 8")
    a(f"s_add_u32 s18, s18, s19")
    load_slabs(a, [(KA_WO, 'a', W_)], tmp=24, row_shift=10, nbytes=H * DH * D * 2, base_sgpr=18)
    n, g, t = 24, 25, 26
    a(f"v_and_b32 v{n}, 15, v0")
    a(f"v_lshrrev_b32 v{g}, 4, v0")
    a(f"v_lshlrev_b32 v{V_L16}, 4, v0")
    a(f"v_mov_b32 v{V_XRD}, v{V_L16}")
    a(f"v_mov_b32 v{V_Z}, 0")
    a(f"v_and_b32 v{t}, 7, v0")
    a(f"v_lshlrev_b32 v{V_OF}, 2, v{t}")
    a(f"v_bfe_u32 v{t}, v0, 3, 1")
    a(f"v_lshl_add_u32 v{V_OF}, v{t}, 8, v{V_OF}")
    a(f"s_lshr_b32 s16, s{S_H}, 2")
    a(f"s_lshl_b32 s16, s16, 5")
    a(f"v_add_u32 v{V_OF}, s16, v{V_OF}")
    a(f"v_lshlrev_b32 v{V_PST}, 13, v{n}")
    a(f"v_lshl_add_u32 v{V_PST}, v{g}, 4, v{V_PST}")
    a(f"s_lshr_b32 s16, s{S_H}, 2")
    a(f"s_lshl_b32 s16, s16, 10")
    a(f"s_and_b32 s17, s{S_H}, 3")
    a(f"s_lshl_b32 s17, s17, 8")
    a(f"s_add_u32 s16, s16, s17")
    a(f"s_lshl_b32 s17, s{S_W}, 6")
    a(f"s_add_u32 s16, s16, s17")
    a(f"v_add_u32 v{V_PST}, s16, v{V_PST}")
    a(f"v_lshlrev_b32 v{V_INR}, 10, v{g}")
    a(f"v_lshl_add_u32 v{V_INR}, v{n}, 4, v{V_INR}")
    a(f"s_lshl_b32 s16, s{S_H}, 13")
    a(f"s_lshl_b32 s17, s{S_W}, 8")
    a(f"s_add_u32 s16, s16, s17")
    a(f"v_add_u32 v{V_INR}, s16, v{V_INR}")
    a(f"v_lshl_add_u32 v{t}, v{g}, 5, v{n}")
    a(f"s_lshl_b32 s16, s{S_W}, 7")
    a(f"v_add_u32 v{t}, s16, v{t}")
    a(f"v_lshlrev_b32 v{V_YW}, 2, v{t}")
    a(f"v_add_u32 v{V_YW}, {L_Y}, v{V_YW}")
    a(f"v_lshlrev_b32 v{V_YR}, 5, v0")
    a(f"v_add_u32 v{V_YR}, {L_Y}, v{V_YR}")
    build_sel(a, SEL, n, t)
    a(f"s_mov_b32 s{S_LO8}, 0x00FF00FF")
    a(f"s_mov_b32 s{S_LO8+1}, 0x00FF00FF")
    a(f"s_mov_b32 s{S_M0}, 0x00FF00FF")
    a(f"s_mov_b32 s{S_M0+1}, 0x00FF00FF")
    a(f"s_mov_b32 s{S_M1}, 0xFF00FF00")
    a(f"s_mov_b32 s{S_M1+1}, 0xFF00FF00")
    a(f"s_mov_b32 s{S_EARLY}, 0")
    a(f"s_mul_i32 s{S_OBO}, s{S_L}, {OB_L}")
    a(f"s_lshr_b32 s16, s{S_H}, 2")
    a(f"s_lshl_b32 s16, s16, 15")
    a(f"s_add_u32 s{S_OBO}, s{S_OBO}, s16")
    a(f"s_add_u32 s{S_OBO}, s{S_OBO}, {OB}")
    a(f"s_mul_i32 s{S_OFO}, s{S_L}, {OF_L}")
    a(f"s_add_u32 s{S_OFO}, s{S_OFO}, {OF}")
    a(f"s_mul_i32 s{S_OINB}, s{S_L}, {OIN_L}")
    a(f"s_add_u32 s{S_OINB}, s{S_OINB}, {OIN}")
    a(f"s_lshl_b32 s16, s{S_L}, 1")
    a(f"s_add_u32 s16, s16, 1")
    a(f"s_mul_i32 s{S_XIN}, s16, {ROWS_J}")
    a(f"s_lshl_b32 s17, s{S_H}, 10")
    a(f"s_add_u32 s{S_XIN}, s{S_XIN}, s17")
    a(f"s_add_u32 s{S_XIN}, s{S_XIN}, {XB}")
    a(f"s_add_u32 s{S_XOUT}, s17, {XB + 2*ROWS_J}")
    a(f"s_add_u32 s{S_HOUT}, s17, {HB + 2*ROWS_J}")
    a(f"s_lshl_b32 s{S_HFO}, s{S_H}, 2")
    a(f"s_add_u32 s{S_HFO}, s{S_HFO}, {HF + 2*HF_J}")
    srd_from_kernarg(a, S_OUT, KA_OUT, S * D * 2)
    a(f"s_mov_b32 s{S_S}, 0")
    a(f"s_mov_b32 s{S_SEG}, 0")
    a(f"s_mov_b32 s{S_BUF}, 0")
    a(f"s_mov_b32 s{S_PEND}, 0")

def role_O_phase2(a):
    a(f"s_mov_b32 s{S_S}, 64")
    a(f"s_mov_b32 s{S_SEG}, {O2_SPLIT}")
    a(f"s_mov_b32 s{S_EARLY}, 0")
    a(f"s_lshr_b32 s16, s{S_H}, 2")
    a(f"s_lshl_b32 s16, s16, 15")
    a(f"s_add_u32 s{S_OBO}, s16, {OB + OB_L + O2_SPLIT * 32 * 8192}")
    a(f"s_mov_b32 s{S_OFO}, {OF + OF_L + O2_SPLIT * 256}")
    a(f"s_lshl_b32 s17, s{S_H}, 10")
    a(f"s_add_u32 s{S_XIN}, s17, {XB + 3*ROWS_J + O2_SPLIT * 32768}")

def dma_o(a, sbuf):
    a(f"s_sub_u32 s{S_TMP}, s{S_W}, 1")
    a(f"s_lshl_b32 s{S_TMP}, s{S_TMP}, 10")
    a(f"s_add_u32 s{S_TMP+1}, s{S_TMP}, s{sbuf}")
    a(f"s_add_u32 s{S_TMP}, s{S_TMP}, s{S_OBO}")
    for j in range(11):
        if j == 10:
            a(f"s_cmp_eq_u32 s{S_W}, 3")
            a(f"s_cselect_b32 s{S_TMP+3}, 1024, 0")
            a(f"s_sub_u32 s{S_TMP}, s{S_TMP}, s{S_TMP+3}")
            a(f"s_sub_u32 s{S_TMP+1}, s{S_TMP+1}, s{S_TMP+3}")
        a(f"s_mov_b32 m0, s{S_TMP+1}")
        a(f"s_add_u32 s{S_TMP+1}, s{S_TMP+1}, 3072")
        a(f"buffer_load_dwordx4 v{V_L16}, s[{S_WS}:{S_WS+3}], s{S_TMP} offen sc1 lds")
        a(f"s_add_u32 s{S_TMP}, s{S_TMP}, 3072")

def dma_o_units3(sbuf):
    A = Asm(); dma_o(A, sbuf)
    L = [x.strip() for x in A.L]
    units = ["\n  ".join(L[:4])]
    L = L[4:]
    cur = []
    for x in L:
        cur.append(x)
        if x.startswith("s_add_u32") and "3072" in x and len(cur) >= 4 and cur[-2].startswith("buffer_load"):
            units.append("\n  ".join(cur)); cur = []
    assert not cur and len(units) == 12
    return units

def oflag_wait(a, uid):
    WS = f"s[{S_WS}:{S_WS+3}]"
    lab = f"ofw_{uid}"
    a.label(lab)
    a(f"buffer_load_dword v20, v{V_OF}, {WS}, s{S_OFO} offen sc1")
    a("s_waitcnt vmcnt(0)")
    a(f"v_cmp_eq_u32 vcc, 0, v20")
    a(f"s_and_b64 vcc, vcc, s[{S_M0}:{S_M0+1}]")
    a(f"s_cbranch_scc0 {lab}_ok")
    a(f"s_sub_u32 s{S_TMO}, s{S_TMO}, 1")
    a(f"s_cbranch_scc1 {lab}_ok")
    backoff(a)
    a(f"s_branch {lab}")
    a.label(lab + "_ok")

def dma_o_units(ssrc, sbuf):
    u = [f"s_lshl_b32 s{S_TMP}, s{S_W}, 13\n  s_add_u32 s{S_TMP+1}, s{S_TMP}, s{sbuf}\n  s_add_u32 s{S_TMP}, s{S_TMP}, s{ssrc}\n  s_mov_b32 m0, s{S_TMP+1}\n  s_nop 0"]
    for half in range(2):
        if half: u.append(f"s_add_u32 m0, s{S_TMP+1}, 4096\n  s_add_u32 s{S_TMP}, s{S_TMP}, 4096")
        for j in range(4):
            u.append(f"buffer_load_dwordx4 v{V_L16}, s[{S_WS}:{S_WS+3}], s{S_TMP} offen offset:{1024*j} sc1 lds")
    return u

def role_O_main(a, layer, local=True, uid="O", st=False):
    WS = f"s[{S_WS}:{S_WS+3}]"
    stf = "" if local else "sc1"
    ldf = "nt" if local else "sc1"
    if st: stamps_init(a)
    a(f"s_cmp_eq_u32 s{S_W}, 0")
    a(f"s_cbranch_scc1 {uid}_first")
    oflag_wait(a, uid + "0")
    dma_o(a, S_BUF)
    a("s_waitcnt vmcnt(0)")
    a.label(f"{uid}_first")
    a("s_barrier")
    a.label(f"{uid}_item")
    a.lg = []
    trace(a, 9 if layer == 0 else 11, S_SEG)
    stamp(a, 0, st)
    a(f"s_add_u32 s{S_OFO}, s{S_OFO}, {64*4}")
    a(f"s_add_u32 s{S_OBO}, s{S_OBO}, {32*8192}")
    a(f"buffer_load_dwordx4 v[{RES}:{RES+3}], v{V_L16}, {WS}, s{S_XIN} offen sc1")
    a(f"buffer_load_dword v22, v{V_OF}, {WS}, s{S_OFO} offen sc1")
    a(f"s_and_b32 s{S_TMP}, s{S_S}, 1")
    a(f"s_mul_i32 s{S_TMP}, s{S_TMP}, {OIN_SLOT}")
    a(f"s_add_u32 s{S_INS}, s{S_TMP}, s{S_OINB}")
    a(f"s_bfe_u32 s{S_TAG}, s{S_S}, 0x10001")
    def xread(ks, slot):
        r = XF + 8 * slot
        hh, k4 = ks // 4, ks % 4
        a.ds(f"ds_read_b128 v[{r}:{r+3}], v{V_XRD} offset:{hh*8192 + k4*1024}", f"x{ks}")
        a.ds(f"ds_read_b128 v[{r+4}:{r+7}], v{V_XRD} offset:{hh*8192 + 4096 + k4*1024}", f"x{ks}")
    for ks in range(3): xread(ks, ks)
    def xread1(ks, slot, tt):
        r = XF + 8 * slot + 4 * tt
        hh, k4 = ks // 4, ks % 4
        a.ds(f"ds_read_b128 v[{r}:{r+3}], v{V_XRD} offset:{hh*8192 + 4096*tt + k4*1024}", f"x{ks}")
    def mfma_loop(DM):
        a.ds_wait("x0")
        for ks in range(16):
            r = XF + 8 * (ks % 4)
            i = 0
            for t in range(2):
                for tt in range(2):
                    d = ACC + 8*t + 4*tt; wr = W_ + t * 64 + ks * 4
                    c = "0" if ks == 0 else f"v[{d}:{d+3}]"
                    a(f"v_mfma_f32_16x16x32_bf16 v[{d}:{d+3}], a[{wr}:{wr+3}], v[{r+4*tt}:{r+4*tt+3}], {c}")
                    if i in (0, 1) and ks + 3 < 16: xread1(ks + 3, (ks + 3) % 4, i)
                    if i == 2 and ks + 1 < 16: a.ds_wait(f"x{ks+1}")
                    if i == 3 and DM: a(DM.pop(0))
                    i += 1
        assert not DM
    a(f"s_mov_b32 s{S_PRE}, s{S_EARLY}")
    a(f"s_cmp_lg_u32 s{S_EARLY}, 0")
    a(f"s_cbranch_scc1 {uid}_mearly")
    sv = list(a.lg)
    mfma_loop([])
    a(f"s_branch {uid}_mdone")
    a.label(f"{uid}_mearly")
    a.lg = sv
    a(f"s_sub_u32 s{S_TMP+2}, 32768, s{S_BUF}")
    mfma_loop(dma_o_units3(S_TMP + 2))
    a.label(f"{uid}_mdone")
    stamp(a, 1, st)
    a.nops(6)
    for tt in range(2):
        mq = MSG + 4 * tt
        A0, A1 = ACC + 4*tt, ACC + 8 + 4*tt
        a(f"v_cvt_pk_bf16_f32 v{mq}, v{A0}, v{A0+1}")
        a(f"v_cvt_pk_bf16_f32 v{mq+1}, v{A0+2}, v{A0+3}")
        a(f"v_cvt_pk_bf16_f32 v{mq+2}, v{A1}, v{A1+1}")
        a(f"v_cvt_pk_bf16_f32 v{mq+3}, v{A1+2}, v{A1+3}")
        a(f"v_bfi_b32 v{mq}, 1, s{S_TAG}, v{mq}")
        a(f"s_add_u32 s{S_TMP}, s{S_INS}, {tt * 16 * 8192}")
        a(f"buffer_store_dwordx4 v[{mq}:{mq+3}], v{V_PST}, {WS}, s{S_TMP} offen {stf}")
    a("s_waitcnt vmcnt(0)")
    stamp(a, 2, st)
    def both():
        a(f"buffer_load_dwordx4 v[{INA}:{INA+3}], v{V_INR}, {WS}, s{S_INS} offen {ldf}")
        a(f"s_add_u32 s{S_TMP}, s{S_INS}, 4096")
        a(f"buffer_load_dwordx4 v[{INB}:{INB+3}], v{V_INR}, {WS}, s{S_TMP} offen {ldf}")
    lab = f"{uid}_in"
    both()
    a("s_waitcnt vmcnt(0)")
    a.label(lab)
    a(f"v_bitop3_b32 v21, v{INA}, v{INB}, s{S_TAG} bitop3:0x7E")
    a(f"v_and_b32 v21, 1, v21")
    a("v_cmp_ne_u32 vcc, 0, v21")
    a(f"s_cbranch_vccz {lab}_ok")
    a(f"s_sub_u32 s{S_TMO}, s{S_TMO}, 1")
    a(f"s_cbranch_scc1 {lab}_ok")
    a("s_mov_b64 exec, vcc")
    both()
    a("s_waitcnt vmcnt(0)")
    a(f"s_branch {lab}")
    a.label(lab + "_ok")
    a("s_mov_b64 exec, -1")
    a(f"buffer_load_dword v20, v{V_OF}, {WS}, s{S_OFO} offen sc1")
    a.nops(3)
    a(f"v_mfma_f32_16x16x32_bf16 v[{RD}:{RD+3}], v[{INA}:{INA+3}], v[{SEL}:{SEL+3}], 0")
    a(f"v_mfma_f32_16x16x32_bf16 v[{RD}:{RD+3}], v[{INB}:{INB+3}], v[{SEL}:{SEL+3}], v[{RD}:{RD+3}]")
    a.nops(8)
    a(f"s_mov_b64 exec, s[{S_LO8}:{S_LO8+1}]")
    for r in range(4):
        a(f"ds_write_b32 v{V_YW}, v{RD+r} offset:{32*r}")
    a("s_mov_b64 exec, -1")
    a("s_waitcnt lgkmcnt(0)")
    a("s_barrier")
    stamp(a, 3, st)
    fin = f"{uid}_fin"
    nst = 2 if layer == 0 else 1
    a(f"s_cmp_lg_u32 s{S_W}, 0")
    a(f"s_cbranch_scc1 {fin}")
    a(f"ds_read_b128 v[{Y_}:{Y_+3}], v{V_YR}")
    a(f"ds_read_b128 v[{Y_+4}:{Y_+7}], v{V_YR} offset:16")
    a("s_waitcnt lgkmcnt(0)")
    row_finish(a, Y_, RES, TT, with_ln=(layer == 0))
    if layer == 0:
        a(f"buffer_store_dwordx4 v[{TT}:{TT+3}], v{V_L16}, {WS}, s{S_HOUT} offen sc1")
        a(f"buffer_store_dwordx4 v[{RES}:{RES+3}], v{V_L16}, {WS}, s{S_XOUT} offen sc1")
    else:
        a(f"s_lshl_b32 s{S_TMP}, s{S_SEG}, 15")
        a(f"s_lshl_b32 s{S_TMP+1}, s{S_H}, 10")
        a(f"s_add_u32 s{S_TMP}, s{S_TMP}, s{S_TMP+1}")
        a(f"buffer_store_dwordx4 v[{RES}:{RES+3}], v{V_L16}, s[{S_OUT}:{S_OUT+3}], s{S_TMP} offen")
    trace(a, 10 if layer == 0 else 23, S_SEG)
    stamp(a, 4, st)
    def hflag():
        if layer == 0:
            a(f"v_mov_b32 v21, 1")
            a("s_mov_b64 exec, 1")
            a(f"buffer_store_dword v21, v{V_Z}, {WS}, s{S_HFO} offen sc1")
            a("s_mov_b64 exec, -1")
    a("s_waitcnt vmcnt(0)")
    hflag()
    a(f"s_cmp_eq_u32 s{S_SEG}, 63")
    a(f"s_cbranch_scc1 {uid}_end")
    a(f"s_branch {uid}_go")
    a.label(fin)
    stamp(a, 4, st)
    a(f"s_cmp_eq_u32 s{S_SEG}, 63")
    a(f"s_cbranch_scc1 {uid}_end")
    def look():
        a("v_cmp_eq_u32 vcc, 0, v20")
        a(f"s_and_b64 s[{S_TMP}:{S_TMP+1}], vcc, s[{S_M1}:{S_M1+1}]")
        a(f"s_cselect_b32 s{S_EARLY}, 0, 1")
        a(f"s_cmp_ge_u32 s{S_SEG}, 62")
        a(f"s_cselect_b32 s{S_EARLY}, 0, s{S_EARLY}")
        a(f"s_and_b64 vcc, vcc, s[{S_M0}:{S_M0+1}]")
    a(f"s_cmp_eq_u32 s{S_PRE}, 0")
    a(f"s_cbranch_scc1 {uid}_late")
    a("v_cmp_eq_u32 vcc, 0, v22")
    a(f"s_and_b64 s[{S_TMP}:{S_TMP+1}], vcc, s[{S_M1}:{S_M1+1}]")
    a(f"s_cselect_b32 s{S_EARLY}, 0, 1")
    a(f"s_cmp_ge_u32 s{S_SEG}, 62")
    a(f"s_cselect_b32 s{S_EARLY}, 0, s{S_EARLY}")
    a(f"s_branch {uid}_go")
    a.label(f"{uid}_late")
    a("s_waitcnt vmcnt(0)")
    look()
    a(f"s_cbranch_scc0 {uid}_chk")
    oflag_wait(a, uid + "1")
    look()
    a(f"s_branch {uid}_copy")
    a.label(f"{uid}_chk")
    a(f"s_cmp_lg_u32 s{S_PRE}, 0")
    a(f"s_cbranch_scc1 {uid}_go")
    a.label(f"{uid}_copy")
    a(f"s_sub_u32 s{S_TMP+2}, 32768, s{S_BUF}")
    dma_o(a, S_TMP + 2)
    a("s_waitcnt vmcnt(0)")
    a.label(f"{uid}_go")
    stamp(a, 5, st)
    a(f"s_sub_u32 s{S_TMP+2}, 32768, s{S_BUF}")
    a(f"s_sub_u32 s{S_TMP}, s{S_TMP+2}, s{S_BUF}")
    a(f"v_add_u32 v{V_XRD}, s{S_TMP}, v{V_XRD}")
    a(f"s_mov_b32 s{S_BUF}, s{S_TMP+2}")
    a(f"s_add_u32 s{S_S}, s{S_S}, 1")
    a(f"s_add_u32 s{S_SEG}, s{S_SEG}, 1")
    for sreg in (S_XIN, S_XOUT, S_HOUT):
        a(f"s_add_u32 s{sreg}, s{sreg}, 32768")
    a(f"s_add_u32 s{S_HFO}, s{S_HFO}, 128")
    a("s_barrier")
    if st:
        stamp(a, 6); stamp(a, 7); stamp(a, 8); stamps_accumulate(a)
    a(f"s_branch {uid}_item")
    a.label(f"{uid}_end")
    a("s_waitcnt vmcnt(0)")
    if layer == 0:
        pass
    if st: stamps_store(a)
```

```python
import sys
from common import *
import role_R, role_T, role_TA, role_O, role_O16, role_Ao, role_Aq
opts = set(sys.argv[2:])
import common
common.TRACE_ON = "trace" in opts
for o_ in opts:
    if o_.startswith("bo="): common.BACKOFF = int(o_[3:])
role_R_L2PF = "pf" in opts
out = sys.argv[1]
NAME = "interleave_layers__sliding_block__memory_aug_recurrent_mem_tr__prompt"
role_R.L2PF = role_R_L2PF
S_LOCAL = 100
S_TEAM = 99
TMO = 1 << 20

HEADER = f"""; Sliding-window attention / recurrent-memory transformer stack, two launches:
;   {NAME}_kernel : persistent dataflow kernel, one workgroup per CU, one role per group of 32 workgroups
; @launch kernel=prep_kernel grid=(256,1,1) block=(256,1,1) lds=0
; @launch kernel={NAME}_kernel grid=(256,1,1) block=(256,1,1) lds=163840
"""

def prep_kernel(a):
    name = "prep_kernel"
    a(kernel_header(name))
    a("s_cmp_ge_u32 s2, 256")
    a("s_cbranch_scc1 prep_exit")
    srd_from_kernarg(a, S_WS, KA_WS, WS_BYTES)
    srd_from_kernarg(a, S_T0, KA_AX, S * D * 2)
    WS = f"s[{S_WS}:{S_WS+3}]"
    a("v_lshrrev_b32 v1, 6, v0")
    a("s_nop 0")
    a(f"v_readfirstlane_b32 s{S_W}, v1")
    a("v_and_b32 v2, 63, v0")
    a("v_lshlrev_b32 v3, 4, v2")
    a("s_lshl_b32 s16, s2, 2")
    a(f"s_add_u32 s16, s16, s{S_W}")
    a("s_lshl_b32 s16, s16, 11")
    a(f"buffer_load_dwordx4 v[16:19], v3, s[{S_T0}:{S_T0+3}], s16 offen")
    a(f"buffer_load_dwordx4 v[20:23], v3, s[{S_T0}:{S_T0+3}], s16 offen offset:1024")
    a("v_lshlrev_b32 v4, 4, v0")
    for r in range(8, 12): a(f"v_mov_b32 v{r}, -1")
    for r in range(12, 16): a(f"v_mov_b32 v{r}, 0")
    assert FF_END == 3 * MB
    a("s_lshl_b32 s17, s2, 12")
    for k in range(3):
        a(f"s_add_u32 s18, s17, {k * MB}")
        a(f"buffer_store_dwordx4 v[8:11], v4, {WS}, s18 offen")
    nfl = (FLAGS_END - FLAGS) // 4096
    a(f"s_cmp_ge_u32 s2, {nfl}")
    a("s_cbranch_scc1 prep_nofl")
    a(f"s_add_u32 s18, s17, {FLAGS}")
    a(f"buffer_store_dwordx4 v[12:15], v4, {WS}, s18 offen")
    a.label("prep_nofl")
    nmark = 2 * 66 * 32 * 4
    a("s_lshl_b32 s18, s2, 8")
    a("v_add_u32 v5, s18, v0")
    a(f"v_cmp_gt_u32 vcc, {nmark}, v5")
    a("s_and_saveexec_b64 s[20:21], vcc")
    a("s_cbranch_execz prep_nomark")
    a("v_lshlrev_b32 v5, 10, v5")
    a(f"s_mov_b32 s18, {KM}")
    a(f"buffer_store_dword v8, v5, {WS}, s18 offen")
    a.label("prep_nomark")
    a("s_mov_b64 exec, s[20:21]")
    a("s_waitcnt vmcnt(0)")
    def ln_only(x, XR, Y, T):
        for k in range(4):
            x(f"v_lshlrev_b32 v{Y+2*k}, 16, v{XR+k}")
            x(f"v_and_b32 v{Y+2*k+1}, 0xffff0000, v{XR+k}")
        m, t = T + 4, T + 5
        x(f"v_pk_add_f32 v[{T}:{T+1}], v[{Y}:{Y+1}], v[{Y+2}:{Y+3}]")
        x(f"v_pk_add_f32 v[{T+2}:{T+3}], v[{Y+4}:{Y+5}], v[{Y+6}:{Y+7}]")
        x(f"v_pk_add_f32 v[{T}:{T+1}], v[{T}:{T+1}], v[{T+2}:{T+3}]")
        x(f"v_add_f32 v{m}, v{T}, v{T+1}")
        wave_allreduce_add(x, m, t)
        x(f"v_mul_f32 v{m}, 0xbb000000, v{m}")
        x(f"v_mov_b32 v{t}, v{m}")
        for k in range(4):
            x(f"v_pk_add_f32 v[{Y+2*k}:{Y+2*k+1}], v[{Y+2*k}:{Y+2*k+1}], v[{m}:{t}]")
        x(f"v_pk_mul_f32 v[{T}:{T+1}], v[{Y}:{Y+1}], v[{Y}:{Y+1}]")
        for k in range(1, 4):
            x(f"v_pk_fma_f32 v[{T}:{T+1}], v[{Y+2*k}:{Y+2*k+1}], v[{Y+2*k}:{Y+2*k+1}], v[{T}:{T+1}]")
        s_, t2 = T + 6, T + 7
        x(f"v_add_f32 v{s_}, v{T}, v{T+1}")
        wave_allreduce_add(x, s_, t2)
        x(f"v_mov_b32 v{t2}, 0x3727c5ac")
        x(f"v_fmac_f32 v{t2}, 0x3b000000, v{s_}")
        x(f"v_rsq_f32 v{s_}, v{t2}")
        x("s_nop 0")
        x(f"v_mov_b32 v{t2}, v{s_}")
        for k in range(4):
            x(f"v_pk_mul_f32 v[{Y+2*k}:{Y+2*k+1}], v[{Y+2*k}:{Y+2*k+1}], v[{s_}:{t2}]")
        for k in range(4):
            x(f"v_cvt_pk_bf16_f32 v{T+k}, v{Y+2*k}, v{Y+2*k+1}")
    interleave2(a, lambda x: ln_only(x, 16, 24, 40), lambda x: ln_only(x, 20, 32, 52))
    a(f"s_add_u32 s16, s16, {HB}")
    a(f"buffer_store_dwordx4 v[40:43], v3, {WS}, s16 offen")
    a(f"buffer_store_dwordx4 v[52:55], v3, {WS}, s16 offen offset:1024")
    a("s_waitcnt vmcnt(0)")
    a.label("prep_exit")
    a("s_endpgm")

def census_wait(a, uid):
    lab = f"census_{uid}"
    srd_from_kernarg(a, S_T0, KA_DBG, 256)
    a("v_and_b32 v21, 7, v0")
    a("v_lshlrev_b32 v21, 4, v21")
    a.label(lab)
    a(f"buffer_load_dword v20, v21, s[{S_T0}:{S_T0+3}], 0 offen sc1")
    a("s_waitcnt vmcnt(0)")
    a("s_mov_b32 s16, 0")
    for k in range(8):
        a(f"v_readlane_b32 s17, v20, {k}")
        a("s_nop 0")
        a("s_add_u32 s16, s16, s17")
    a(f"s_cmp_ge_u32 s16, 256")
    a(f"s_cbranch_scc1 {lab}_ok")
    a(f"s_sub_u32 s{S_TMO}, s{S_TMO}, 1")
    a(f"s_cbranch_scc1 {lab}_ok")
    a(f"s_branch {lab}")
    a.label(lab + "_ok")

def mega_kernel(a):
    name = NAME + "_kernel"
    a(kernel_header(name))
    a("s_cmp_ge_u32 s2, 256")
    a("s_cbranch_scc1 L_exit")
    srd_from_kernarg(a, S_WS, KA_WS, WS_BYTES)
    srd_from_kernarg(a, S_T0, KA_DBG, 256)
    a(f"s_mov_b32 s{S_TMO}, {TMO}")
    a("s_getreg_b32 s20, hwreg(HW_REG_XCC_ID, 0, 4)")
    a("s_and_b32 s20, s20, 7")
    a("s_lshl_b32 s21, s20, 4")
    a("v_mov_b32 v1, s21")
    a("v_mov_b32 v2, 1")
    a("v_cmp_eq_u32 vcc, 0, v0")
    a("s_and_saveexec_b64 s[22:23], vcc")
    a("s_cbranch_execz L_noat")
    a(f"buffer_atomic_add v2, v1, s[{S_T0}:{S_T0+3}], 0 offen sc0")
    a("s_waitcnt vmcnt(0)")
    a("v_mov_b32 v1, 0")
    a("ds_write_b32 v1, v2")
    a("s_waitcnt lgkmcnt(0)")
    a.label("L_noat")
    a("s_mov_b64 exec, s[22:23]")
    a("s_barrier")
    a("v_mov_b32 v1, 0")
    a("ds_read_b32 v2, v1")
    a("s_waitcnt lgkmcnt(0)")
    a(f"v_readfirstlane_b32 s{S_H}, v2")
    a("v_lshrrev_b32 v1, 6, v0")
    a("s_nop 0")
    a(f"v_readfirstlane_b32 s{S_W}, v1")
    a("v_and_b32 v0, 63, v0")
    a(f"s_mov_b32 s{S_TEAM}, s20")
    a("s_barrier")
    a(f"s_cmp_lt_u32 s{S_H}, 32")
    a("s_cbranch_scc1 L_haveslot")
    census_wait(a, "ov")
    a(f"s_sub_u32 s18, s{S_H}, 32")
    for k in range(8):
        a(f"v_readlane_b32 s17, v20, {k}")
        a("s_nop 0")
        a("s_max_u32 s17, s17, 32")
        a("s_sub_u32 s17, s17, 32")
        a(f"s_cmp_lt_u32 {k}, s{S_TEAM}")
        a("s_cselect_b32 s17, s17, 0")
        a("s_add_u32 s18, s18, s17")
    a(f"s_mov_b32 s19, 0")
    for k in range(8):
        lab = f"L_vac{k}"
        a(f"v_readlane_b32 s17, v20, {k}")
        a("s_nop 0")
        a("s_min_u32 s17, s17, 32")
        a("s_sub_u32 s16, 32, s17")
        a("s_cmp_lg_u32 s19, 0")
        a(f"s_cbranch_scc1 {lab}")
        a("s_cmp_lt_u32 s18, s16")
        a(f"s_cbranch_scc0 {lab}_n")
        a(f"s_mov_b32 s{S_TEAM}, {k}")
        a(f"s_add_u32 s{S_H}, s17, s18")
        a("s_mov_b32 s19, 1")
        a(f"s_branch {lab}")
        a.label(lab + "_n")
        a("s_sub_u32 s18, s18, s16")
        a.label(lab)
    a("s_cmp_eq_u32 s19, 0")
    a("s_cbranch_scc1 L_exit")
    a.label("L_haveslot")
    for t, lab in ((0, "J_R0"), (1, "J_R1"), (5, "J_O0"), (6, "J_O1")):
        a(f"s_cmp_eq_u32 s{S_TEAM}, {t}")
        a(f"s_cbranch_scc1 {lab}")
    a(f"s_sub_u32 s16, s{S_TEAM}, 2")
    a(f"s_cmp_eq_u32 s{S_TEAM}, 7")
    a(f"s_cselect_b32 s16, 3, s16")
    a(f"s_lshr_b32 s17, s{S_H}, 3")
    a(f"s_and_b32 s18, s{S_H}, 7")
    a(f"s_lshl_b32 s19, s16, 3")
    a(f"s_add_u32 s{S_H}, s19, s18")
    a(f"s_cmp_eq_u32 s17, 0")
    a(f"s_cbranch_scc1 J_T0")
    a(f"s_cmp_eq_u32 s17, 1")
    a(f"s_cbranch_scc1 J_T1")
    a(f"s_cmp_eq_u32 s17, 2")
    a(f"s_cbranch_scc1 J_Aq")
    a(f"s_lshl_b32 s18, s18, 2")
    a(f"s_add_u32 s{S_H}, s18, s16")
    a("s_branch X7_entry")
    for lab, layer, dst in (("J_R0", 0, "R_entry"), ("J_R1", 1, "R_entry"), ("J_O0", 0, "O_entry"), ("J_O1", 1, "X6_entry"),
                            ("J_T0", 0, "T_entry"), ("J_T1", 1, "T_entry"), ("J_Aq", 0, "Aq_entry")):
        a.label(lab)
        a(f"s_mov_b32 s{S_L}, {layer}")
        far_jump(a, dst)
    a.label("L_exit")
    a("s_endpgm")
    def local_flag(uid):
        census_wait(a, uid)
        a(f"v_readlane_b32 s17, v20, s{S_TEAM}")
        a("s_nop 0")
        a("s_cmp_ge_u32 s17, 32")
        a(f"s_cselect_b32 s{S_LOCAL}, 1, 0")
    st = "st" in opts
    a.label("R_entry")
    role_R.role_R_prologue(a)
    a(f"s_mov_b32 s{S_TEAM}, s{S_L}")
    local_flag("R")
    a(f"s_mov_b32 s{role_R.S_S}, 0")
    a(f"s_cmp_eq_u32 s{S_LOCAL}, 0")
    a("s_cbranch_scc1 R_nonlocal")
    if common.TRACE_ON:
        a("s_memtime s[86:87]"); a("s_memrealtime s[88:89]"); a("s_waitcnt lgkmcnt(0)")
    role_R.role_R_main(a, local=True, uid="Rl", stamps=("stR" in opts), probe=("probe" in opts))
    if "stR" in opts:
        a(f"s_cmp_eq_u32 s{S_L}, {1 if 'l1' in opts else 0}")
        a("s_cbranch_scc0 R_nost")
        stamps_store(a)
        a.label("R_nost")
    if common.TRACE_ON:
        a("s_memtime s[92:93]"); a("s_memrealtime s[94:95]"); a("s_waitcnt lgkmcnt(0)")
        a("s_sub_u32 s92, s92, s86"); a("s_sub_u32 s94, s94, s88")
        a("s_mov_b32 m0, 63"); a("v_writelane_b32 v20, s92, m0")
        a("s_mov_b32 m0, 62"); a("v_writelane_b32 v20, s94, m0")
        a("v_mov_b32 v17, v20")
    finish(a, "Rl", st)
    a.label("R_nonlocal")
    role_R.role_R_main(a, local=False, uid="Rn")
    a("s_endpgm")
    a.label("T_entry")
    role_T.role_T_prologue(a)
    role_T.role_T_main(a, st=("stT" in opts))
    finish(a, "T", False)
    a.label("Aq_entry")
    role_Aq.role_Aq_prologue(a)
    role_Aq.role_Aq_main(a, st=st)
    finish(a, "Aq", False)
    a.label("O_entry")
    role_O.role_O_prologue(a)
    a(f"s_mov_b32 s{S_TEAM}, 5")
    local_flag("O")
    a(f"s_mov_b32 s{role_O.S_S}, 0")
    a(f"s_cmp_eq_u32 s{S_LOCAL}, 0")
    a("s_cbranch_scc1 O_l0n")
    role_O.role_O_main(a, 0, local=True, uid="O0l", st=("stO" in opts))
    a("s_barrier")
    role_O.role_O_phase2(a)
    role_O.role_O_main(a, 1, local=True, uid="O2l"); finish(a, "O0l", False)
    a.label("O_l0n")
    role_O.role_O_main(a, 0, local=False, uid="O0n")
    a("s_barrier")
    role_O.role_O_phase2(a)
    role_O.role_O_main(a, 1, local=False, uid="O2n"); a("s_endpgm")
    a.label("X6_entry")
    a(f"s_cmp_lt_u32 s{S_H}, 16")
    a("s_cbranch_scc1 O16_entry")
    a(f"s_sub_u32 s{S_H}, s{S_H}, 16")
    a("s_branch TA_entry")
    a.label("O16_entry")
    role_O16.role_O16_prologue(a)
    a(f"s_mov_b32 s{S_TEAM}, 6")
    local_flag("O16")
    a(f"s_mov_b32 s{role_O16.S_S}, 0")
    a(f"s_cmp_eq_u32 s{S_LOCAL}, 0")
    a("s_cbranch_scc1 O16_n")
    role_O16.role_O16_main(a, local=True, uid="O16l", st=("stO16" in opts)); finish(a, "O1l", False)
    a.label("O16_n")
    role_O16.role_O16_main(a, local=False, uid="O16n"); a("s_endpgm")
    a.label("X7_entry")
    a(f"s_mov_b32 s{S_L}, 0")
    a(f"s_cmp_lt_u32 s{S_H}, 16")
    a("s_cbranch_scc1 TA_entry")
    a(f"s_sub_u32 s{S_H}, s{S_H}, 16")
    role_Ao.role_Ao_prologue(a)
    role_Ao.role_Ao_main(a, st=st)
    finish(a, "Ao", False)
    a.label("TA_entry")
    role_TA.role_TA_prologue(a)
    role_TA.role_TA_main(a, 2, uid="TA", st=("stTA" in opts))
    finish(a, "TA", False)

def far_jump(a, lab):
    a(f"s_branch {lab}")

def finish(a, uid, st):
    if common.TRACE_ON:
        role, regs = {"Rl": (None, [0, 17]), "T": (None, [10, 11]), "Aq": ("aq", [240, 241]), "O0l": (5, [9, 10, 11, 23]), "O1l": (6, [9, 10]),
                      "Ao": ("ao", [12, 13]), "TA": ("ta", [128, 129])}[uid]
        if uid == "Rl": a(f"s_mov_b32 s92, s{S_L}")
        elif uid == "T": a(f"s_add_u32 s92, s{S_L}, 2")
        elif uid == "Aq":
            a(f"s_lshr_b32 s92, s{S_H}, 4")
            a(f"s_mul_i32 s92, s92, 7")
            a(f"s_add_u32 s92, s92, 4")
            a(f"s_and_b32 s{S_H}, s{S_H}, 15")
        elif uid == "TA": a(f"s_add_u32 s92, s{S_L}, 7")
        elif uid == "Ao":
            a(f"s_lshr_b32 s92, s{S_H}, 3")
            a(f"s_add_u32 s92, s92, 9")
            a(f"s_and_b32 s{S_H}, s{S_H}, 7")
        else: a(f"s_mov_b32 s92, {role}")
        trace_dump(a, regs, 92)
    a("s_endpgm")

a = Asm()
a.L.append(HEADER.rstrip("\n"))
a('.amdgcn_target "amdgcn-amd-amdhsa--gfx950"')
a(".text")
prep_kernel(a)
mega_kernel(a)
a('.section .rodata,"a"')
a(".p2align 6")
a(kernel_desc("prep_kernel", vgpr=64, accum=64, sgpr=40))
a(".p2align 6")
a(kernel_desc(NAME + "_kernel"))
open(out, "w").write(a.text())
print(out, len(a.L), "lines", len(a.text()), "bytes")
```

```python
from asmlib import *
from layout import *

S_KA   = 0
S_WS   = 4
S_T0   = 8
S_W    = 12
S_H    = 13
S_L    = 14
S_TMO  = 15

def srd_from_kernarg(a, sreg, ka_off, nbytes):
    a(f"s_load_dwordx2 s[{sreg}:{sreg+1}], s[0:1], {ka_off}")
    a("s_waitcnt lgkmcnt(0)")
    a(f"s_mov_b32 s{sreg+2}, {nbytes}")
    a(f"s_mov_b32 s{sreg+3}, 0x20000")

def load_slabs(a, dests, tmp, row_shift=13, nbytes=D * H * DH * 2, base_sgpr=None):
    vA, vB, vR0, vR1, t0, t1 = range(tmp, tmp + 6)
    a(f"v_lshrrev_b32 v{t0}, 4, v0")
    a(f"v_and_b32 v{t1}, 15, v0")
    a(f"v_lshrrev_b32 v{t1}, 1, v{t1}")
    a(f"v_xor_b32 v{vA}, v{t1}, v{t0}")
    a(f"v_xor_b32 v{vB}, 4, v{vA}")
    a(f"v_lshlrev_b32 v{vA}, 5, v{vA}")
    a(f"v_lshlrev_b32 v{vB}, 5, v{vB}")
    a(f"v_lshlrev_b32 v{t0}, {row_shift}, v{t0}")
    a(f"v_and_b32 v{t1}, 1, v0")
    a(f"v_lshlrev_b32 v{t1}, 4, v{t1}")
    a(f"v_add3_u32 v{vA}, v{vA}, v{t0}, v{t1}")
    a(f"v_add3_u32 v{vB}, v{vB}, v{t0}, v{t1}")
    a(f"v_lshrrev_b32 v{t0}, 4, v0")
    a(f"v_bfe_u32 v{t1}, v0, 2, 2")
    a(f"v_lshlrev_b32 v{vR0}, 3, v{t0}")
    a(f"v_add_u32 v{vR0}, v{vR0}, v{t1}")
    a(f"v_lshlrev_b32 v{vR0}, 8, v{vR0}")
    a(f"v_and_b32 v{t0}, 1, v{t0}")
    a(f"v_lshl_add_u32 v{t1}, v{t0}, 2, v{t1}")
    a(f"v_bfe_u32 v{t0}, v0, 1, 1")
    a(f"s_lshl_b32 s16, s{S_W}, 1")
    a(f"v_add_u32 v{t0}, s16, v{t0}")
    a(f"v_xor_b32 v{t0}, v{t0}, v{t1}")
    a(f"v_lshl_add_u32 v{vR0}, v{t0}, 5, v{vR0}")
    a(f"v_and_b32 v{t0}, 1, v0")
    a(f"v_lshl_add_u32 v{vR0}, v{t0}, 4, v{vR0}")
    a(f"v_add_u32 v{vR1}, 0x10000, v{vR0}")
    for (ka, rf, base) in dests:
        srd_from_kernarg(a, S_T0, ka, nbytes)
        a(f"s_lshl_b32 s16, s{S_W}, {row_shift + 7}")
        if base_sgpr is None:
            a(f"s_lshl_b32 s17, s{S_H}, 8")
            a(f"s_add_u32 s16, s16, s17")
        else:
            a(f"s_add_u32 s16, s16, s{base_sgpr}")
        a(f"s_lshl_b32 s17, s{S_W}, 15")
        for j in range(32):
            a(f"s_mov_b32 m0, s17")
            v = vA if ((j >> 1) & 1) == 0 else vB
            a(f"s_add_u32 s17, s17, 1024")
            a(f"buffer_load_dwordx4 v{v}, s[{S_T0}:{S_T0+3}], s16 offen lds")
            a(f"s_add_u32 s16, s16, {4 << row_shift}")
        a("s_waitcnt vmcnt(0)")
        a("s_barrier")
        for t in range(2):
            for ks in range(16):
                for p in range(2):
                    off = ks * 8192 + p * 1024 + 8 * t
                    vb = vR0
                    if off >= 65536:
                        off -= 65536; vb = vR1
                    r = base + t * 64 + ks * 4 + 2 * p
                    dst = f"a[{r}:{r+1}]" if rf == 'a' else f"v[{r}:{r+1}]"
                    a(f"ds_read_b64_tr_b16 {dst}, v{vb} offset:{off}")
        a("s_waitcnt lgkmcnt(0)")
        a("s_barrier")

def load_qkv_weights(a, dests, tmp):
    load_slabs(a, dests, tmp)

BACKOFF = 2
def backoff(a):
    import common
    if common.BACKOFF: a(f"s_sleep {common.BACKOFF}")

def flag_wait(a, vdst, vaddr, soff, uid, nz_all=True):
    lab = f"fw_{uid}"
    a.label(lab)
    a(f"buffer_load_dword v{vdst}, v{vaddr}, s[{S_WS}:{S_WS+3}], s{soff} offen sc1")
    a("s_waitcnt vmcnt(0)")
    a(f"v_cmp_eq_u32 vcc, 0, v{vdst}")
    a(f"s_cbranch_vccz {lab}_ok")
    a(f"s_sub_u32 s{S_TMO}, s{S_TMO}, 1")
    a(f"s_cbranch_scc1 {lab}_ok")
    backoff(a)
    a(f"s_branch {lab}")
    a.label(lab + "_ok")

S_STAMP = 50
S_ACC = 68
def stamp(a, i, on=True):
    if on: a(f"s_memtime s[{S_STAMP+2*i}:{S_STAMP+2*i+1}]")
def stamps_init(a):
    for i in range(8): a(f"s_mov_b32 s{S_ACC+i}, 0")
def stamps_accumulate(a, n=8):
    a("s_waitcnt lgkmcnt(0)")
    for i in range(n):
        a(f"s_sub_u32 s98, s{S_STAMP+2*i+2}, s{S_STAMP+2*i}")
        a(f"s_add_u32 s{S_ACC+i}, s{S_ACC+i}, s98")
def stamps_store(a):
    a(f"s_lshl_b32 s44, s{S_H}, 2")
    a(f"s_add_u32 s44, s44, s{S_W}")
    a(f"s_lshl_b32 s44, s44, 5")
    a(f"s_add_u32 s44, s44, {STAMP}")
    for i in range(8):
        a(f"v_mov_b32 v20, s{S_ACC+i}")
        a(f"v_mov_b32 v21, {4*i}")
        a(f"buffer_store_dword v20, v21, s[{S_WS}:{S_WS+3}], s44 offen")
    a("s_waitcnt vmcnt(0)")

def wave_allreduce_add(a, v, t):
    a("s_nop 1")
    a(f"v_add_f32_dpp v{v}, v{v}, v{v} quad_perm:[1,0,3,2] row_mask:0xf bank_mask:0xf")
    a("s_nop 1")
    a(f"v_add_f32_dpp v{v}, v{v}, v{v} quad_perm:[2,3,0,1] row_mask:0xf bank_mask:0xf")
    a("s_nop 1")
    a(f"v_add_f32_dpp v{v}, v{v}, v{v} row_ror:4 row_mask:0xf bank_mask:0xf")
    a("s_nop 1")
    a(f"v_add_f32_dpp v{v}, v{v}, v{v} row_ror:8 row_mask:0xf bank_mask:0xf")
    a(f"v_mov_b32 v{t}, v{v}")
    a("s_nop 1")
    a(f"v_permlane16_swap_b32 v{v}, v{t}")
    a(f"v_add_f32 v{v}, v{v}, v{t}")
    a(f"v_mov_b32 v{t}, v{v}")
    a("s_nop 1")
    a(f"v_permlane32_swap_b32 v{v}, v{t}")
    a(f"v_add_f32 v{v}, v{v}, v{t}")

def row_finish(a, Y, XR, T, with_ln):
    for k in range(4):
        a(f"v_cvt_pk_bf16_f32 v{T+k}, v{Y+2*k}, v{Y+2*k+1}")
    for k in range(4):
        a(f"v_lshlrev_b32 v{Y+2*k}, 16, v{T+k}")
        a(f"v_and_b32 v{Y+2*k+1}, 0xffff0000, v{T+k}")
    for k in range(4):
        a(f"v_lshlrev_b32 v{T+4+2*k}, 16, v{XR+k}")
        a(f"v_and_b32 v{T+5+2*k}, 0xffff0000, v{XR+k}")
    for k in range(4):
        a(f"v_pk_add_f32 v[{Y+2*k}:{Y+2*k+1}], v[{Y+2*k}:{Y+2*k+1}], v[{T+4+2*k}:{T+5+2*k}]")
    for k in range(4):
        a(f"v_cvt_pk_bf16_f32 v{XR+k}, v{Y+2*k}, v{Y+2*k+1}")
    if not with_ln:
        return
    for k in range(4):
        a(f"v_lshlrev_b32 v{Y+2*k}, 16, v{XR+k}")
        a(f"v_and_b32 v{Y+2*k+1}, 0xffff0000, v{XR+k}")
    m, t = T + 4, T + 5
    a(f"v_pk_add_f32 v[{T}:{T+1}], v[{Y}:{Y+1}], v[{Y+2}:{Y+3}]")
    a(f"v_pk_add_f32 v[{T+2}:{T+3}], v[{Y+4}:{Y+5}], v[{Y+6}:{Y+7}]")
    a(f"v_pk_add_f32 v[{T}:{T+1}], v[{T}:{T+1}], v[{T+2}:{T+3}]")
    a(f"v_add_f32 v{m}, v{T}, v{T+1}")
    wave_allreduce_add(a, m, t)
    a(f"v_mul_f32 v{m}, 0xbb000000, v{m}")
    a(f"v_mov_b32 v{t}, v{m}")
    for k in range(4):
        a(f"v_pk_add_f32 v[{Y+2*k}:{Y+2*k+1}], v[{Y+2*k}:{Y+2*k+1}], v[{m}:{t}]")
    a(f"v_pk_mul_f32 v[{T}:{T+1}], v[{Y}:{Y+1}], v[{Y}:{Y+1}]")
    for k in range(1, 4):
        a(f"v_pk_fma_f32 v[{T}:{T+1}], v[{Y+2*k}:{Y+2*k+1}], v[{Y+2*k}:{Y+2*k+1}], v[{T}:{T+1}]")
    s, t2 = T + 6, T + 7
    a(f"v_add_f32 v{s}, v{T}, v{T+1}")
    wave_allreduce_add(a, s, t2)
    a(f"v_mov_b32 v{t2}, 0x3727c5ac")
    a(f"v_fmac_f32 v{t2}, 0x3b000000, v{s}")
    a(f"v_rsq_f32 v{s}, v{t2}")
    a("s_nop 0")
    a(f"v_mov_b32 v{t2}, v{s}")
    for k in range(4):
        a(f"v_pk_mul_f32 v[{Y+2*k}:{Y+2*k+1}], v[{Y+2*k}:{Y+2*k+1}], v[{s}:{t2}]")
    for k in range(4):
        a(f"v_cvt_pk_bf16_f32 v{T+k}, v{Y+2*k}, v{Y+2*k+1}")

def build_sel(a, dst, n, tmp):
    for r in range(4):
        a(f"v_mov_b32 v{dst+r}, 0")
        a(f"v_cmp_eq_u32 vcc, {2*r}, v{n}")
        a(f"v_mov_b32 v{tmp}, 0x3f80")
        a(f"s_nop 0")
        a(f"v_cndmask_b32 v{dst+r}, v{dst+r}, v{tmp}, vcc")
        a(f"v_cmp_eq_u32 vcc, {2*r+1}, v{n}")
        a(f"v_mov_b32 v{tmp}, 0x3f800000")
        a(f"s_nop 0")
        a(f"v_cndmask_b32 v{dst+r}, v{dst+r}, v{tmp}, vcc")

def interleave2(a, fa, fb):
    A, B = Asm(), Asm()
    fa(A); fb(B)
    assert len(A.L) == len(B.L)
    for x, y in zip(A.L, B.L):
        xs = x.strip()
        if xs.startswith("s_nop"):
            k = int(xs.split()[1])
            if k > 0: a(f"s_nop {k-1}")
        else:
            a(x); a(y)

def load_rowmajor_chunks(a, ka, nbytes, row0_sgpr, lds_base, nrows_per_wave, tmp):
    a(f"v_lshlrev_b32 v{tmp}, 4, v0")
    a(f"s_mul_i32 s17, s{S_W}, {nrows_per_wave * 1024}")
    a(f"s_lshl_b32 s16, s{row0_sgpr}, 10")
    a(f"s_add_u32 s16, s16, s17")
    a(f"s_add_u32 s17, s17, {lds_base}")
    for j in range(nrows_per_wave):
        key = (j & 3) + 4 * ((j >> 3) & 1)
        a(f"v_xor_b32 v{tmp+1}, {key << 5}, v{tmp}")
        a(f"s_mov_b32 m0, s17")
        a(f"s_add_u32 s17, s17, 1024")
        a(f"buffer_load_dwordx4 v{tmp+1}, s[{S_T0}:{S_T0+3}], s16 offen lds")
        a(f"s_add_u32 s16, s16, 1024")

TRACE_ON = False
TRACE_BASE = STAMP + 5 * MB
def trace(a, vreg, sitem):
    import common
    if not common.TRACE_ON: return
    a("s_memrealtime s[90:91]")
    a("s_waitcnt lgkmcnt(0)")
    a("s_mov_b32 s91, m0")
    a(f"s_mov_b32 m0, s{sitem}")
    a(f"v_writelane_b32 v{vreg}, s90, m0")
    a("s_mov_b32 m0, s91")
def trace_dump(a, vregs, role_expr_sgpr):
    import common
    if not common.TRACE_ON: return
    lab = a.newlabel("trd")
    a(f"s_cmp_lg_u32 s{S_W}, 0")
    a(f"s_cbranch_scc1 {lab}")
    a(f"s_lshl_b32 s91, s{role_expr_sgpr}, 5")
    a(f"s_add_u32 s91, s91, s{S_H}")
    a(f"s_lshl_b32 s91, s91, 10")
    a(f"s_add_u32 s91, s91, {TRACE_BASE}")
    a("v_mbcnt_lo_u32_b32 v20, -1, 0")
    a("v_mbcnt_hi_u32_b32 v20, -1, v20")
    a("v_lshlrev_b32 v20, 2, v20")
    for k, v in enumerate(vregs):
        a(f"buffer_store_dword v{v}, v20, s[{S_WS}:{S_WS+3}], s91 offen offset:{256*k}")
    a("s_waitcnt vmcnt(0)")
    a.label(lab)
```

```python
from common import *
L_K   = 0
L_V   = 18432
L_O   = 36864
L_X   = 40960
XBUF  = 32768
V_L16, V_HF, V_OW, V_OR, V_AOA, V_Z, V_FL = 1, 2, 3, 4, 5, 6, 7
T0 = 8
XF = 16
AK_, AQ_, AV_ = 32, 36, 40
QB = 44
ADR, AW = 48, 57
XA, VD = 58, 62
KA, VA, SC = 72, 108, 144
PB, OA, LS = 216, 220, 224
WQ, WK, WV = 0, 64, 128
S_S, S_A, S_HIN, S_HFO, S_AOO, S_AFO, S_BUF, S_C, S_PRE, S_PEND, S_SRC, S_TT8 = 18, 19, 20, 21, 22, 23, 24, 25, 26, 27, 28, 29
S_EARLY = 76
S_MSK = 30
S_TMP = 46

def role_Aq_prologue(a):
    a.c("===== Aq prologue =====")
    a(f"s_lshr_b32 s{S_A}, s{S_H}, 4")
    a(f"s_and_b32 s18, s{S_H}, 15")
    srd_from_kernarg(a, S_T0, KA_AWQKV, D * 3 * D * 2)
    a("v_lshrrev_b32 v16, 2, v0")
    a("v_mul_u32_u24 v16, 3072, v16")
    a("v_and_b32 v17, 3, v0")
    a("v_lshl_add_u32 v16, v17, 4, v16")
    a(f"s_lshl_b32 s16, s18, 6")
    a(f"s_mul_i32 s17, s{S_W}, {128 * 3072}")
    a(f"s_add_u32 s16, s16, s17")
    a(f"s_lshl_b32 s17, s{S_W}, 13")
    for m in range(3):
        for j in range(8):
            a(f"s_add_u32 s20, s17, {m * 32768 + j * 1024}")
            a(f"s_mov_b32 m0, s20")
            a(f"s_add_u32 s21, s16, {m * 1024 + j * 16 * 3072}")
            a(f"buffer_load_dwordx4 v16, s[{S_T0}:{S_T0+3}], s21 offen lds")
    a("v_lshrrev_b32 v17, 4, v0")
    a("v_bfe_u32 v18, v0, 2, 2")
    a("v_lshl_add_u32 v17, v17, 3, v18")
    a("v_lshlrev_b32 v17, 6, v17")
    a("v_and_b32 v18, 3, v0")
    a("v_lshl_add_u32 v17, v18, 3, v17")
    a(f"s_lshr_b32 s16, s{S_W}, 1")
    a(f"s_lshl_b32 s16, s16, 5")
    a("v_add_u32 v17, s16, v17")
    a("v_add_u32 v18, 0x10000, v17")
    a("s_waitcnt vmcnt(0)")
    a("s_barrier")
    for m, base in enumerate((WQ, WK, WV)):
        for ks in range(16):
            for p in range(2):
                r = base + 4 * ks + 2 * p
                off = m * 32768 + ks * 2048 + p * 256
                vb = 17
                if off >= 65536: off -= 65536; vb = 18
                a(f"ds_read_b64_tr_b16 a[{r}:{r+1}], v{vb} offset:{off}")
    a("s_waitcnt lgkmcnt(0)")
    a("s_barrier")
    n, g, t = 16, 17, 18
    a(f"v_and_b32 v{n}, 15, v0")
    a(f"v_lshrrev_b32 v{g}, 4, v0")
    a(f"v_lshlrev_b32 v{V_L16}, 4, v0")
    a(f"s_and_b32 s19, s{S_W}, 1")
    a(f"s_lshl_b32 s{S_TT8}, s19, 3")
    a(f"s_lshl_b32 s16, s19, 14")
    a(f"s_add_u32 s16, s16, {L_X}")
    for q in range(4):
        a(f"v_add_u32 v{t}, {4*q}, v{g}")
        a(f"v_xor_b32 v{t}, v{t}, v{n}")
        a(f"v_lshlrev_b32 v{XA+q}, 4, v{t}")
        a(f"v_lshl_add_u32 v{XA+q}, v{n}, 10, v{XA+q}")
        a(f"v_add_u32 v{XA+q}, s16, v{XA+q}")
    a(f"s_lshl_b32 s16, s19, 3")
    for j in range(8):
        a(f"s_add_u32 s17, s16, {j}")
        a(f"v_xor_b32 v{t}, s17, v0")
        a(f"v_lshlrev_b32 v{VD+j}, 4, v{t}")
    a(f"v_lshlrev_b32 v{V_HF}, 2, v0")
    a(f"v_mov_b32 v{V_Z}, 0")
    a(f"v_lshrrev_b32 v{t}, 3, v{n}")
    a(f"v_lshlrev_b32 v{V_AOA}, 13, v{t}")
    a(f"v_and_b32 v{t}, 3, v{n}")
    a(f"v_lshl_add_u32 v{V_AOA}, v{t}, 6, v{V_AOA}")
    a(f"v_bfe_u32 v{t}, v{n}, 2, 1")
    a(f"v_lshl_add_u32 v{V_AOA}, v{t}, 4, v{V_AOA}")
    a(f"v_lshl_add_u32 v{V_AOA}, v{g}, 2, v{V_AOA}")
    a(f"s_lshl_b32 s16, s19, 14")
    a(f"s_lshl_b32 s17, s18, 1")
    a(f"s_lshr_b32 s20, s{S_W}, 1")
    a(f"s_add_u32 s17, s17, s20")
    a(f"s_lshl_b32 s20, s17, 8")
    a(f"s_add_u32 s16, s16, s20")
    a(f"v_add_u32 v{V_AOA}, s16, v{V_AOA}")
    a(f"s_lshl_b32 s17, s17, 1")
    a(f"s_add_u32 s17, s17, s19")
    a(f"s_lshl_b32 s17, s17, 2")
    a(f"v_mov_b32 v{V_FL}, s17")
    a(f"v_lshlrev_b32 v{t}, 2, v{g}")
    a(f"v_sub_u32 v{t}, v{n}, v{t}")
    a(f"s_lshl_b32 s16, s19, 4")
    a(f"v_add_u32 v{t}, s16, v{t}")
    for kt in range(2):
        for r in range(4):
            m = S_MSK + 2 * (4*kt + r)
            a(f"v_cmp_gt_i32 s[{m}:{m+1}], {16*kt + r}, v{t}")
    a(f"s_lshr_b32 s16, s{S_W}, 1")
    a(f"s_mul_i32 s16, s16, 9216")
    for i in range(9):
        a(f"s_add_u32 s17, s16, {i * 1024}")
        a(f"v_add_u32 v{ADR+i}, s17, v{V_L16}")
    for r in range(20, 24): a(f"v_mov_b32 v{r}, 0")
    a(f"s_lshl_b32 s16, s{S_W}, 10")
    a(f"v_add_u32 v{t}, s16, v{V_L16}")
    for j in range(9):
        a(f"ds_write_b128 v{t}, v[20:23] offset:{j * 4096}")
    a(f"s_mov_b32 s{S_C}, 0x3eb8aa3b")
    a(f"s_lshr_b32 s{S_A}, s{S_H}, 4")
    a(f"s_mul_i32 s{S_HIN}, s{S_A}, {2*ROWS_J}")
    a(f"s_add_u32 s{S_HIN}, s{S_HIN}, {HB}")
    a(f"s_mov_b32 s{S_HFO}, {HF + 2*HF_J}")
    a(f"s_mul_i32 s{S_AOO}, s{S_A}, {AO_L}")
    a(f"s_add_u32 s{S_AOO}, s{S_AOO}, {AO}")
    a(f"s_mul_i32 s{S_AFO}, s{S_A}, {AOF_L}")
    a(f"s_add_u32 s{S_AFO}, s{S_AFO}, {AOF}")
    a(f"s_mov_b32 s{S_S}, 0")
    a(f"s_mov_b32 s{S_BUF}, {L_X}")
    a(f"s_mov_b32 s{S_PEND}, 0")
    a("s_waitcnt lgkmcnt(0)")
    a("s_barrier")

def dma_x_units(srow, sbuf):
    u = []
    u.append(f"s_lshl_b32 s{S_TMP}, s{S_W}, 13\n  s_add_u32 s{S_TMP+1}, s{S_TMP}, s{sbuf}\n  s_add_u32 s{S_TMP}, s{S_TMP}, s{srow}\n  s_mov_b32 m0, s{S_TMP+1}\n  s_nop 0")
    for half in range(2):
        if half == 1:
            u.append(f"s_add_u32 m0, s{S_TMP+1}, 4096\n  s_add_u32 s{S_TMP}, s{S_TMP}, 4096")
        for j in range(4):
            u.append(f"buffer_load_dwordx4 v{VD+4*half+j}, s[{S_WS}:{S_WS+3}], s{S_TMP} offen offset:{1024*j} sc1 lds")
    return u
def dma_x(a, srow, sbuf):
    for x in dma_x_units(srow, sbuf): a(x)

def out_flag(a):
    a(f"v_mov_b32 v{T0}, 1")
    a(f"s_sub_u32 s{S_TMP+2}, s{S_AFO}, 256")
    a("s_mov_b64 exec, 1")
    a(f"buffer_store_dword v{T0}, v{V_FL}, s[{S_WS}:{S_WS+3}], s{S_TMP+2} offen sc1")
    a("s_mov_b64 exec, -1")
    a(f"s_mov_b32 s{S_PEND}, 0")

def role_Aq_item(a, uid, early, st, tails):
    WS = f"s[{S_WS}:{S_WS+3}]"
    a.lg = []
    trace(a, 240, S_S)
    stamp(a, 0, st)
    def xread(ks):
        r = XF + 4 * (ks % 4)
        a.ds(f"ds_read_b128 v[{r}:{r+3}], v{XA + (ks & 3)} offset:{256*(ks >> 2)}", f"x{ks}")
    for ks in range(3): xread(ks)
    F = []
    F.append(f"s_add_u32 s{S_HFO}, s{S_HFO}, 128")
    F.append(f"s_mov_b32 s{S_SRC}, s{S_HIN}")
    F.append(f"s_add_u32 s{S_HIN}, s{S_HIN}, 32768")
    F.append(f"v_mov_b32 v{AW}, v{ADR}")
    for i in range(8): F.append(f"v_mov_b32 v{ADR+i}, v{ADR+i+1}")
    F.append(f"v_mov_b32 v{ADR+8}, v{AW}")
    F.append(f"v_add_u32 v{AW}, s{S_TT8}, v{AW}")
    for i in range(8):
        F.append(("ds", f"ds_read_b128 v[{KA+4*i}:{KA+4*i+3}], v{ADR+i} offset:{L_K}", f"k{i}"))
    for i in range(8):
        F.append(("ds", f"ds_read_b128 v[{VA+4*i}:{VA+4*i+3}], v{ADR+i} offset:{L_V}", f"v{i}"))
    DM = []
    if early:
        du = dma_x_units(S_HIN, S_TMP + 3)
        F.insert(3, f"s_sub_u32 s{S_TMP+3}, {2*L_X + XBUF}, s{S_BUF}")
        F.insert(4, du.pop(0))
        DM = du
    a.ds_wait("x0")
    for ks in range(16):
        r = XF + 4 * (ks % 4)
        for i, (acc, A, B) in enumerate(((AK_, f"a[{WK+4*ks}:{WK+4*ks+3}]", f"v[{r}:{r+3}]"), (AV_, f"v[{r}:{r+3}]", f"a[{WV+4*ks}:{WV+4*ks+3}]"), (AQ_, f"a[{WQ+4*ks}:{WQ+4*ks+3}]", f"v[{r}:{r+3}]"))):
            c = "0" if ks == 0 else f"v[{acc}:{acc+3}]"
            a(f"v_mfma_f32_16x16x32_bf16 v[{acc}:{acc+3}], {A}, {B}, {c}")
            if i == 0 and ks + 3 < 16: xread(ks + 3)
            if i == 1 and ks + 1 < 16: a.ds_wait(f"x{ks+1}")
            if F and i != 0:
                f = F.pop(0)
                if isinstance(f, tuple): a.ds(f[1], f[2])
                else: a(f)
            if early and i == 2 and ks in (9, 14): a(DM.pop(0))
    assert not F
    a.nops(5)
    a(f"v_cvt_pk_bf16_f32 v{T0+2}, v{AK_}, v{AK_+1}")
    a(f"v_cvt_pk_bf16_f32 v{T0+3}, v{AK_+2}, v{AK_+3}")
    a(f"ds_write_b64 v{AW}, v[{T0+2}:{T0+3}] offset:{L_K}")
    a(f"v_cvt_pk_bf16_f32 v{T0+4}, v{AV_}, v{AV_+1}")
    a(f"v_cvt_pk_bf16_f32 v{T0+5}, v{AV_+2}, v{AV_+3}")
    a(f"ds_write_b64 v{AW}, v[{T0+4}:{T0+5}] offset:{L_V}")
    a(f"v_cvt_pk_bf16_f32 v{QB}, v{AQ_}, v{AQ_+1}")
    a(f"v_cvt_pk_bf16_f32 v{QB+1}, v{AQ_+2}, v{AQ_+3}")
    a.lg += ["w", "w"]
    lab = f"{uid}_mid"
    a(f"s_cmp_eq_u32 s{S_PEND}, 0")
    a(f"s_cbranch_scc1 {lab}")
    a(f"s_waitcnt vmcnt({2 if early else 0})")
    out_flag(a)
    a.label(lab)
    mx, t1 = T0 + 3, T0 + 4
    a(f"v_mov_b32 v{T0+1}, 0xff800000")
    def score(i):
        for kt in range(2):
            d = SC + 8*i + 4*kt
            a(f"v_mfma_f32_16x16x16_bf16 v[{d}:{d+3}], v[{KA+4*i+2*kt}:{KA+4*i+2*kt+1}], v[{QB}:{QB+1}], 0")
    MX = []
    for i in range(1, 8):
        b = SC + 8 * i
        if i == 1:
            MX += [f"v_max3_f32 v{mx}, v{b}, v{b+1}, v{b+2}", f"v_max3_f32 v{t1}, v{b+3}, v{b+4}, v{b+5}", f"v_max3_f32 v{mx}, v{mx}, v{b+6}, v{b+7}"]
        else:
            MX += [f"v_max3_f32 v{mx}, v{mx}, v{b}, v{b+1}", f"v_max3_f32 v{t1}, v{t1}, v{b+2}, v{b+3}", f"v_max3_f32 v{mx}, v{mx}, v{b+4}, v{b+5}", f"v_max3_f32 v{t1}, v{t1}, v{b+6}, v{b+7}"]
    early_start = f"{uid}_es"
    a.ds_wait("k7")
    a(f"s_cmp_lt_u32 s{S_S}, 8")
    a(f"s_cbranch_scc1 {uid}_start")
    mxq = list(MX)
    for i in range(8):
        for kt in range(2):
            d = SC + 8*i + 4*kt
            a(f"v_mfma_f32_16x16x16_bf16 v[{d}:{d+3}], v[{KA+4*i+2*kt}:{KA+4*i+2*kt+1}], v[{QB}:{QB+1}], 0")
            if i >= 4:
                for _ in range(2):
                    if mxq and int(mxq[0].split("v")[-1].strip().rstrip(",")) < SC + 8 * (i - 2): a(mxq.pop(0))
    a.nops(4)
    for kt in range(2):
        for r in range(4):
            m = S_MSK + 2 * (4*kt + r)
            a(f"v_cndmask_b32 v{SC+4*kt+r}, v{T0+1}, v{SC+4*kt+r}, s[{m}:{m+1}]")
    for x in mxq: a(x)
    def start_path():
        a.label(f"{uid}_start")
        for i in range(8): score(i)
        a.nops(8)
        for i in range(8):
            lab = f"{uid}_nv{i}"
            a(f"s_add_u32 s{S_TMP+2}, s{S_S}, {i}")
            a(f"s_cmp_ge_u32 s{S_TMP+2}, 8")
            a(f"s_cbranch_scc1 {lab}")
            for r in range(8):
                a(f"v_mov_b32 v{SC+8*i+r}, v{T0+1}")
            a.label(lab)
        for kt in range(2):
            for r in range(4):
                m = S_MSK + 2 * (4*kt + r)
                a(f"v_cndmask_b32 v{SC+4*kt+r}, v{T0+1}, v{SC+4*kt+r}, s[{m}:{m+1}]")
        for x in MX: a(x)
        a(f"s_branch {uid}_mxdone")
    tails.append(start_path)
    a.label(f"{uid}_mxdone")
    for k in range(0, 8, 4):
        a(f"v_max3_f32 v{mx}, v{mx}, v{SC+k}, v{SC+k+1}")
        a(f"v_max3_f32 v{t1}, v{t1}, v{SC+k+2}, v{SC+k+3}")
    if early: a(DM.pop(0))
    a("s_waitcnt lgkmcnt(0)")
    a("s_barrier")
    stamp(a, 1, st)
    a.lg = []
    a.ds(f"ds_read_b128 v[{KA+32}:{KA+35}], v{ADR+8} offset:{L_K}", "k8")
    a.ds(f"ds_read_b128 v[{VA+32}:{VA+35}], v{ADR+8} offset:{L_V}", "v8")
    a.ds_wait("k8")
    score(8)
    a.nops(8)
    for kt in range(2):
        for r in range(4):
            m = S_MSK + 2 * (4*kt + r)
            a(f"v_cndmask_b32 v{SC+64+4*kt+r}, v{SC+64+4*kt+r}, v{T0+1}, s[{m}:{m+1}]")
    for k in range(64, 72, 4):
        a(f"v_max3_f32 v{mx}, v{mx}, v{SC+k}, v{SC+k+1}")
        a(f"v_max3_f32 v{t1}, v{t1}, v{SC+k+2}, v{SC+k+3}")
    a(f"v_max_f32 v{mx}, v{mx}, v{t1}")
    a(f"v_mov_b32 v{t1}, v{mx}")
    a("s_nop 1")
    a(f"v_permlane16_swap_b32 v{mx}, v{t1}")
    a(f"v_max_f32 v{mx}, v{mx}, v{t1}")
    a(f"v_mov_b32 v{t1}, v{mx}")
    a("s_nop 1")
    a(f"v_permlane32_swap_b32 v{mx}, v{t1}")
    a(f"v_max_f32 v{mx}, v{mx}, v{t1}")
    a(f"v_mul_f32 v{t1}, s{S_C}, v{mx}")
    a(f"v_mov_b32 v{t1+1}, v{t1}")
    a(f"v_mov_b32 v{T0+6}, s{S_C}")
    a(f"v_mov_b32 v{T0+7}, s{S_C}")
    stamp(a, 2, st)
    a.ds_wait("v8")
    FV = LS + 2
    a(f"buffer_load_dword v{FV}, v{V_HF}, {WS}, s{S_HFO} offen sc1")
    CHK = 3
    younger = 0
    for i in range(9):
        b = SC + 8 * i
        for r in range(0, 8, 2):
            a(f"v_pk_fma_f32 v[{b+r}:{b+r+1}], v[{b+r}:{b+r+1}], v[{T0+6}:{T0+7}], v[{t1}:{t1+1}] neg_lo:[0,0,1] neg_hi:[0,0,1]")
        for r in range(8):
            a(f"v_exp_f32 v{b+r}, v{b+r}")
            if DM and ((early and r == 5) or (not early and r in (2, 6))):
                u = DM.pop(0); a(u)
                if u.startswith("buffer"): younger += 1
        if i == CHK:
            a(f"s_waitcnt vmcnt({younger})")
            a(f"v_cmp_eq_u32 vcc, 0, v{FV}")
            a("s_nop 0")
            a(f"s_cmp_eq_u32 vcc_hi, 0")
            a(f"s_cselect_b32 s{S_EARLY}, 1, 0")
            a(f"s_cmp_eq_u32 s{S_A}, 0")
            a(f"s_cselect_b32 s{S_EARLY}, 1, s{S_EARLY}")
            a(f"s_cmp_ge_u32 s{S_S}, 62")
            a(f"s_cselect_b32 s{S_EARLY}, 0, s{S_EARLY}")
            if early:
                a(f"s_mov_b32 s{S_PRE}, 1")
            else:
                a(f"s_sub_u32 s{S_TMP+3}, {2*L_X + XBUF}, s{S_BUF}")
                a(f"s_cmp_eq_u32 vcc_lo, 0")
                a(f"s_cselect_b32 s{S_PRE}, 1, 0")
                a(f"s_cmp_eq_u32 s{S_A}, 0")
                a(f"s_cselect_b32 s{S_PRE}, 1, s{S_PRE}")
                a(f"s_cmp_eq_u32 s{S_S}, 63")
                a(f"s_cselect_b32 s{S_PRE}, 0, s{S_PRE}")
                a(f"s_cmp_lg_u32 s{S_PRE}, 0")
                a(f"s_cselect_b32 s{S_SRC}, s{S_HIN}, s{S_SRC}")
                DM = dma_x_units(S_SRC, S_TMP + 3)
                a(DM.pop(0))
        else:
            a("s_nop 0")
        if i == 0:
            a(f"v_pk_add_f32 v[{LS}:{LS+1}], v[{b}:{b+1}], v[{b+2}:{b+3}]")
        else:
            a(f"v_pk_add_f32 v[{LS}:{LS+1}], v[{LS}:{LS+1}], v[{b}:{b+1}]")
            a(f"v_pk_add_f32 v[{LS}:{LS+1}], v[{LS}:{LS+1}], v[{b+2}:{b+3}]")
        for k in range(4):
            a(f"v_cvt_pk_bf16_f32 v{PB+k}, v{b+2*k}, v{b+2*k+1}")
        c = "0" if i == 0 else f"v[{OA}:{OA+3}]"
        a(f"v_pk_add_f32 v[{LS}:{LS+1}], v[{LS}:{LS+1}], v[{b+4}:{b+5}]")
        a(f"v_pk_add_f32 v[{LS}:{LS+1}], v[{LS}:{LS+1}], v[{b+6}:{b+7}]")
        a(f"v_mfma_f32_16x16x32_bf16 v[{OA}:{OA+3}], v[{VA+4*i}:{VA+4*i+3}], v[{PB}:{PB+3}], {c}")
    for x in DM: a(x)
    a(f"v_add_f32 v{LS}, v{LS}, v{LS+1}")
    a(f"v_mov_b32 v{T0+6}, v{LS}")
    a("s_nop 1")
    a(f"v_permlane16_swap_b32 v{LS}, v{T0+6}")
    a(f"v_add_f32 v{LS}, v{LS}, v{T0+6}")
    a(f"v_mov_b32 v{T0+6}, v{LS}")
    a("s_nop 1")
    a(f"v_permlane32_swap_b32 v{LS}, v{T0+6}")
    a(f"v_add_f32 v{LS}, v{LS}, v{T0+6}")
    a(f"v_rcp_f32 v{LS}, v{LS}")
    a("s_nop 0")
    for r in range(4):
        a(f"v_mul_f32 v{OA+r}, v{OA+r}, v{LS}")
    a(f"v_cvt_pk_bf16_f32 v{OA}, v{OA}, v{OA+1}")
    a(f"v_cvt_pk_bf16_f32 v{OA+1}, v{OA+2}, v{OA+3}")
    a(f"s_lshl_b32 s{S_TMP+2}, s{S_S}, 15")
    a(f"s_add_u32 s{S_TMP+2}, s{S_TMP+2}, s{S_AOO}")
    a(f"s_add_u32 s{S_AFO}, s{S_AFO}, 256")
    a(f"buffer_store_dword v{OA}, v{V_AOA}, {WS}, s{S_TMP+2} offen sc1")
    a(f"buffer_store_dword v{OA+1}, v{V_AOA}, {WS}, s{S_TMP+2} offen offset:32 sc1")
    a(f"s_mov_b32 s{S_PEND}, 1")
    trace(a, 241, S_S)
    stamp(a, 3, st)
    a(f"s_cmp_eq_u32 s{S_S}, 63")
    a(f"s_cbranch_scc1 Aq_end")
    if not early:
        a(f"s_cmp_lg_u32 s{S_PRE}, 0")
        a(f"s_cbranch_scc1 {uid}_have")
        a(f"buffer_load_dword v{T0+7}, v{V_HF}, {WS}, s{S_HFO} offen sc1")
        a("s_waitcnt vmcnt(0)")
        out_flag(a)
        lab = f"{uid}_w"
        a.label(lab)
        a(f"v_cmp_eq_u32 vcc, 0, v{T0+7}")
        a("s_nop 0")
        a(f"s_cmp_eq_u32 vcc_lo, 0")
        a(f"s_cbranch_scc1 {lab}_ok")
        a(f"s_sub_u32 s{S_TMO}, s{S_TMO}, 1")
        a(f"s_cbranch_scc1 {lab}_ok")
        backoff(a)
        a(f"buffer_load_dword v{T0+7}, v{V_HF}, {WS}, s{S_HFO} offen sc1")
        a("s_waitcnt vmcnt(0)")
        a(f"s_branch {lab}")
        a.label(lab + "_ok")
        a(f"s_sub_u32 s{S_TMP+3}, {2*L_X + XBUF}, s{S_BUF}")
        dma_x(a, S_HIN, S_TMP + 3)
        a("s_waitcnt vmcnt(0)")
        a(f"s_branch Aq_go")
        a.label(f"{uid}_have")
        a("s_waitcnt vmcnt(2)")
        a(f"s_branch Aq_go")
    else:
        a("s_waitcnt vmcnt(2)")

def role_Aq_main(a, uid="Aq", st=False):
    WS = f"s[{S_WS}:{S_WS+3}]"
    if st: stamps_init(a)
    a(f"s_mov_b32 s{S_EARLY}, 0")
    a(f"s_cmp_eq_u32 s{S_A}, 0")
    a(f"s_cbranch_scc1 {uid}_f0")
    lab = f"{uid}_w0"
    a.label(lab)
    a(f"buffer_load_dword v{T0+7}, v{V_HF}, {WS}, s{S_HFO} offen sc1")
    a("s_waitcnt vmcnt(0)")
    a(f"v_cmp_eq_u32 vcc, 0, v{T0+7}")
    a("s_nop 0")
    a(f"s_cmp_eq_u32 vcc_lo, 0")
    a(f"s_cbranch_scc1 {uid}_f0")
    backoff(a)
    a(f"s_sub_u32 s{S_TMO}, s{S_TMO}, 1")
    a(f"s_cbranch_scc0 {lab}")
    a.label(f"{uid}_f0")
    dma_x(a, S_HIN, S_BUF)
    a("s_waitcnt vmcnt(0)")
    a("s_barrier")
    a.label(f"Aq_item")
    a(f"s_cmp_lg_u32 s{S_EARLY}, 0")
    a(f"s_cbranch_scc1 Aq_early")
    tails = []
    role_Aq_item(a, "Aql", False, st, tails)
    a.label("Aq_early")
    role_Aq_item(a, "Aqe", True, st, tails)
    a.label(f"Aq_go")
    a(f"s_sub_u32 s{S_TMP+3}, {2*L_X + XBUF}, s{S_BUF}")
    a(f"s_sub_u32 s{S_TMP+2}, s{S_TMP+3}, s{S_BUF}")
    for q in range(4):
        a(f"v_add_u32 v{XA+q}, s{S_TMP+2}, v{XA+q}")
    a(f"s_mov_b32 s{S_BUF}, s{S_TMP+3}")
    a(f"s_add_u32 s{S_S}, s{S_S}, 1")
    a("s_barrier")
    if st:
        stamp(a, 4); stamp(a, 5); stamp(a, 6); stamp(a, 7); stamp(a, 8); stamps_accumulate(a)
    a(f"s_branch Aq_item")
    for t_ in tails: t_()
    a.label(f"Aq_end")
    a("s_waitcnt vmcnt(0)")
    out_flag(a)
    a("s_waitcnt vmcnt(0)")
    if st: stamps_store(a)
```

```python
from common import *
L_Y = 65536
V_L16, V_XRD, V_OF, V_PST, V_INR, V_YW, V_YR, V_Z = 1, 2, 3, 4, 5, 6, 7, 8
SEL = 12
XF = 24
ACC = 56
MSG = 72
INA, INB, RD = 80, 84, 88
Y_, RES, TT = 96, 104, 108
W_ = 0
S_S, S_OBO, S_OFO, S_BUF, S_PRE, S_INS, S_TAG, S_XIN, S_XOUT, S_HOUT, S_HFO, S_PEND, S_OINB = 18, 19, 20, 21, 22, 23, 24, 25, 26, 27, 28, 29, 30
S_LO8 = 32
S_M0, S_M1 = 40, 42
S_EARLY = 31
S_SEG = 34
S_OUT = 36
S_TMP = 44

def role_O_prologue(a):
    a.c("===== O prologue =====")
    a(f"s_lshr_b32 s18, s{S_H}, 2")
    a(f"s_lshl_b32 s18, s18, 19")
    a(f"s_and_b32 s19, s{S_H}, 3")
    a(f"s_lshl_b32 s19, s19, 8")
    a(f"s_add_u32 s18, s18, s19")
    load_slabs(a, [(KA_WO, 'a', W_)], tmp=24, row_shift=10, nbytes=H * DH * D * 2, base_sgpr=18)
    n, g, t = 24, 25, 26
    a(f"v_and_b32 v{n}, 15, v0")
    a(f"v_lshrrev_b32 v{g}, 4, v0")
    a(f"v_lshlrev_b32 v{V_L16}, 4, v0")
    a(f"v_mov_b32 v{V_XRD}, v{V_L16}")
    a(f"v_mov_b32 v{V_Z}, 0")
    a(f"v_and_b32 v{t}, 7, v0")
    a(f"v_lshlrev_b32 v{V_OF}, 2, v{t}")
    a(f"v_bfe_u32 v{t}, v0, 3, 1")
    a(f"v_lshl_add_u32 v{V_OF}, v{t}, 8, v{V_OF}")
    a(f"s_lshr_b32 s16, s{S_H}, 2")
    a(f"s_lshl_b32 s16, s16, 5")
    a(f"v_add_u32 v{V_OF}, s16, v{V_OF}")
    a(f"v_lshlrev_b32 v{V_PST}, 13, v{n}")
    a(f"v_lshl_add_u32 v{V_PST}, v{g}, 4, v{V_PST}")
    a(f"s_lshr_b32 s16, s{S_H}, 2")
    a(f"s_lshl_b32 s16, s16, 10")
    a(f"s_and_b32 s17, s{S_H}, 3")
    a(f"s_lshl_b32 s17, s17, 8")
    a(f"s_add_u32 s16, s16, s17")
    a(f"s_lshl_b32 s17, s{S_W}, 6")
    a(f"s_add_u32 s16, s16, s17")
    a(f"v_add_u32 v{V_PST}, s16, v{V_PST}")
    a(f"v_lshlrev_b32 v{V_INR}, 10, v{g}")
    a(f"v_lshl_add_u32 v{V_INR}, v{n}, 4, v{V_INR}")
    a(f"s_lshl_b32 s16, s{S_H}, 13")
    a(f"s_lshl_b32 s17, s{S_W}, 8")
    a(f"s_add_u32 s16, s16, s17")
    a(f"v_add_u32 v{V_INR}, s16, v{V_INR}")
    a(f"v_lshl_add_u32 v{t}, v{g}, 5, v{n}")
    a(f"s_lshl_b32 s16, s{S_W}, 7")
    a(f"v_add_u32 v{t}, s16, v{t}")
    a(f"v_lshlrev_b32 v{V_YW}, 2, v{t}")
    a(f"v_add_u32 v{V_YW}, {L_Y}, v{V_YW}")
    a(f"v_lshlrev_b32 v{V_YR}, 5, v0")
    a(f"v_add_u32 v{V_YR}, {L_Y}, v{V_YR}")
    build_sel(a, SEL, n, t)
    a(f"s_mov_b32 s{S_LO8}, 0x00FF00FF")
    a(f"s_mov_b32 s{S_LO8+1}, 0x00FF00FF")
    a(f"s_mov_b32 s{S_M0}, 0x00FF00FF")
    a(f"s_mov_b32 s{S_M0+1}, 0x00FF00FF")
    a(f"s_mov_b32 s{S_M1}, 0xFF00FF00")
    a(f"s_mov_b32 s{S_M1+1}, 0xFF00FF00")
    a(f"s_mov_b32 s{S_EARLY}, 0")
    a(f"s_mul_i32 s{S_OBO}, s{S_L}, {OB_L}")
    a(f"s_lshr_b32 s16, s{S_H}, 2")
    a(f"s_lshl_b32 s16, s16, 15")
    a(f"s_add_u32 s{S_OBO}, s{S_OBO}, s16")
    a(f"s_add_u32 s{S_OBO}, s{S_OBO}, {OB}")
    a(f"s_mul_i32 s{S_OFO}, s{S_L}, {OF_L}")
    a(f"s_add_u32 s{S_OFO}, s{S_OFO}, {OF}")
    a(f"s_mul_i32 s{S_OINB}, s{S_L}, {OIN_L}")
    a(f"s_add_u32 s{S_OINB}, s{S_OINB}, {OIN}")
    a(f"s_lshl_b32 s16, s{S_L}, 1")
    a(f"s_add_u32 s16, s16, 1")
    a(f"s_mul_i32 s{S_XIN}, s16, {ROWS_J}")
    a(f"s_lshl_b32 s17, s{S_H}, 10")
    a(f"s_add_u32 s{S_XIN}, s{S_XIN}, s17")
    a(f"s_add_u32 s{S_XIN}, s{S_XIN}, {XB}")
    a(f"s_add_u32 s{S_XOUT}, s17, {XB + 2*ROWS_J}")
    a(f"s_add_u32 s{S_HOUT}, s17, {HB + 2*ROWS_J}")
    a(f"s_lshl_b32 s{S_HFO}, s{S_H}, 2")
    a(f"s_add_u32 s{S_HFO}, s{S_HFO}, {HF + 2*HF_J}")
    srd_from_kernarg(a, S_OUT, KA_OUT, S * D * 2)
    a(f"s_mov_b32 s{S_S}, 0")
    a(f"s_mov_b32 s{S_SEG}, 0")
    a(f"s_mov_b32 s{S_BUF}, 0")
    a(f"s_mov_b32 s{S_PEND}, 0")

def role_O_phase2(a):
    a(f"s_mov_b32 s{S_S}, 64")
    a(f"s_mov_b32 s{S_SEG}, {O2_SPLIT}")
    a(f"s_mov_b32 s{S_EARLY}, 0")
    a(f"s_lshr_b32 s16, s{S_H}, 2")
    a(f"s_lshl_b32 s16, s16, 15")
    a(f"s_add_u32 s{S_OBO}, s16, {OB + OB_L + O2_SPLIT * 32 * 8192}")
    a(f"s_mov_b32 s{S_OFO}, {OF + OF_L + O2_SPLIT * 256}")
    a(f"s_lshl_b32 s17, s{S_H}, 10")
    a(f"s_add_u32 s{S_XIN}, s17, {XB + 3*ROWS_J + O2_SPLIT * 32768}")

def dma_o(a, sbuf):
    a(f"s_sub_u32 s{S_TMP}, s{S_W}, 1")
    a(f"s_lshl_b32 s{S_TMP}, s{S_TMP}, 10")
    a(f"s_add_u32 s{S_TMP+1}, s{S_TMP}, s{sbuf}")
    a(f"s_add_u32 s{S_TMP}, s{S_TMP}, s{S_OBO}")
    for j in range(11):
        if j == 10:
            a(f"s_cmp_eq_u32 s{S_W}, 3")
            a(f"s_cselect_b32 s{S_TMP+3}, 1024, 0")
            a(f"s_sub_u32 s{S_TMP}, s{S_TMP}, s{S_TMP+3}")
            a(f"s_sub_u32 s{S_TMP+1}, s{S_TMP+1}, s{S_TMP+3}")
        a(f"s_mov_b32 m0, s{S_TMP+1}")
        a(f"s_add_u32 s{S_TMP+1}, s{S_TMP+1}, 3072")
        a(f"buffer_load_dwordx4 v{V_L16}, s[{S_WS}:{S_WS+3}], s{S_TMP} offen sc1 lds")
        a(f"s_add_u32 s{S_TMP}, s{S_TMP}, 3072")

def dma_o_units3(sbuf):
    A = Asm(); dma_o(A, sbuf)
    L = [x.strip() for x in A.L]
    units = ["\n  ".join(L[:4])]
    L = L[4:]
    cur = []
    for x in L:
        cur.append(x)
        if x.startswith("s_add_u32") and "3072" in x and len(cur) >= 4 and cur[-2].startswith("buffer_load"):
            units.append("\n  ".join(cur)); cur = []
    assert not cur and len(units) == 12
    return units

def oflag_wait(a, uid):
    WS = f"s[{S_WS}:{S_WS+3}]"
    lab = f"ofw_{uid}"
    a.label(lab)
    a(f"buffer_load_dword v20, v{V_OF}, {WS}, s{S_OFO} offen sc1")
    a("s_waitcnt vmcnt(0)")
    a(f"v_cmp_eq_u32 vcc, 0, v20")
    a(f"s_and_b64 vcc, vcc, s[{S_M0}:{S_M0+1}]")
    a(f"s_cbranch_scc0 {lab}_ok")
    a(f"s_sub_u32 s{S_TMO}, s{S_TMO}, 1")
    a(f"s_cbranch_scc1 {lab}_ok")
    backoff(a)
    a(f"s_branch {lab}")
    a.label(lab + "_ok")

def dma_o_units(ssrc, sbuf):
    u = [f"s_lshl_b32 s{S_TMP}, s{S_W}, 13\n  s_add_u32 s{S_TMP+1}, s{S_TMP}, s{sbuf}\n  s_add_u32 s{S_TMP}, s{S_TMP}, s{ssrc}\n  s_mov_b32 m0, s{S_TMP+1}\n  s_nop 0"]
    for half in range(2):
        if half: u.append(f"s_add_u32 m0, s{S_TMP+1}, 4096\n  s_add_u32 s{S_TMP}, s{S_TMP}, 4096")
        for j in range(4):
            u.append(f"buffer_load_dwordx4 v{V_L16}, s[{S_WS}:{S_WS+3}], s{S_TMP} offen offset:{1024*j} sc1 lds")
    return u

def role_O_main(a, layer, local=True, uid="O", st=False):
    WS = f"s[{S_WS}:{S_WS+3}]"
    stf = "" if local else "sc1"
    ldf = "nt" if local else "sc1"
    if st: stamps_init(a)
    a(f"s_cmp_eq_u32 s{S_W}, 0")
    a(f"s_cbranch_scc1 {uid}_first")
    oflag_wait(a, uid + "0")
    dma_o(a, S_BUF)
    a("s_waitcnt vmcnt(0)")
    a.label(f"{uid}_first")
    a("s_barrier")
    a.label(f"{uid}_item")
    a.lg = []
    trace(a, 9 if layer == 0 else 11, S_SEG)
    stamp(a, 0, st)
    a(f"s_add_u32 s{S_OFO}, s{S_OFO}, {64*4}")
    a(f"s_add_u32 s{S_OBO}, s{S_OBO}, {32*8192}")
    a(f"buffer_load_dwordx4 v[{RES}:{RES+3}], v{V_L16}, {WS}, s{S_XIN} offen sc1")
    a(f"buffer_load_dword v22, v{V_OF}, {WS}, s{S_OFO} offen sc1")
    a(f"s_and_b32 s{S_TMP}, s{S_S}, 1")
    a(f"s_mul_i32 s{S_TMP}, s{S_TMP}, {OIN_SLOT}")
    a(f"s_add_u32 s{S_INS}, s{S_TMP}, s{S_OINB}")
    a(f"s_bfe_u32 s{S_TAG}, s{S_S}, 0x10001")
    def xread(ks, slot):
        r = XF + 8 * slot
        hh, k4 = ks // 4, ks % 4
        a.ds(f"ds_read_b128 v[{r}:{r+3}], v{V_XRD} offset:{hh*8192 + k4*1024}", f"x{ks}")
        a.ds(f"ds_read_b128 v[{r+4}:{r+7}], v{V_XRD} offset:{hh*8192 + 4096 + k4*1024}", f"x{ks}")
    for ks in range(3): xread(ks, ks)
    def xread1(ks, slot, tt):
        r = XF + 8 * slot + 4 * tt
        hh, k4 = ks // 4, ks % 4
        a.ds(f"ds_read_b128 v[{r}:{r+3}], v{V_XRD} offset:{hh*8192 + 4096*tt + k4*1024}", f"x{ks}")
    def mfma_loop(DM):
        a.ds_wait("x0")
        for ks in range(16):
            r = XF + 8 * (ks % 4)
            i = 0
            for t in range(2):
                for tt in range(2):
                    d = ACC + 8*t + 4*tt; wr = W_ + t * 64 + ks * 4
                    c = "0" if ks == 0 else f"v[{d}:{d+3}]"
                    a(f"v_mfma_f32_16x16x32_bf16 v[{d}:{d+3}], a[{wr}:{wr+3}], v[{r+4*tt}:{r+4*tt+3}], {c}")
                    if i in (0, 1) and ks + 3 < 16: xread1(ks + 3, (ks + 3) % 4, i)
                    if i == 2 and ks + 1 < 16: a.ds_wait(f"x{ks+1}")
                    if i == 3 and DM: a(DM.pop(0))
                    i += 1
        assert not DM
    a(f"s_mov_b32 s{S_PRE}, s{S_EARLY}")
    a(f"s_cmp_lg_u32 s{S_EARLY}, 0")
    a(f"s_cbranch_scc1 {uid}_mearly")
    sv = list(a.lg)
    mfma_loop([])
    a(f"s_branch {uid}_mdone")
    a.label(f"{uid}_mearly")
    a.lg = sv
    a(f"s_sub_u32 s{S_TMP+2}, 32768, s{S_BUF}")
    mfma_loop(dma_o_units3(S_TMP + 2))
    a.label(f"{uid}_mdone")
    stamp(a, 1, st)
    a.nops(6)
    for tt in range(2):
        mq = MSG + 4 * tt
        A0, A1 = ACC + 4*tt, ACC + 8 + 4*tt
        a(f"v_cvt_pk_bf16_f32 v{mq}, v{A0}, v{A0+1}")
        a(f"v_cvt_pk_bf16_f32 v{mq+1}, v{A0+2}, v{A0+3}")
        a(f"v_cvt_pk_bf16_f32 v{mq+2}, v{A1}, v{A1+1}")
        a(f"v_cvt_pk_bf16_f32 v{mq+3}, v{A1+2}, v{A1+3}")
        a(f"v_bfi_b32 v{mq}, 1, s{S_TAG}, v{mq}")
        a(f"s_add_u32 s{S_TMP}, s{S_INS}, {tt * 16 * 8192}")
        a(f"buffer_store_dwordx4 v[{mq}:{mq+3}], v{V_PST}, {WS}, s{S_TMP} offen {stf}")
    a("s_waitcnt vmcnt(0)")
    stamp(a, 2, st)
    def both():
        a(f"buffer_load_dwordx4 v[{INA}:{INA+3}], v{V_INR}, {WS}, s{S_INS} offen {ldf}")
        a(f"s_add_u32 s{S_TMP}, s{S_INS}, 4096")
        a(f"buffer_load_dwordx4 v[{INB}:{INB+3}], v{V_INR}, {WS}, s{S_TMP} offen {ldf}")
    lab = f"{uid}_in"
    def gtest():
        a(f"v_bitop3_b32 v21, v{INA}, v{INB}, s{S_TAG} bitop3:0x7E")
        a(f"v_and_b32 v21, 1, v21")
        a("v_cmp_ne_u32 vcc, 0, v21")
    both()
    a("s_waitcnt vmcnt(0)")
    gtest()
    a(f"s_cbranch_vccz {lab}_ok")
    a.label(lab)
    a("s_mov_b64 exec, vcc")
    both()
    a(f"s_sub_u32 s{S_TMO}, s{S_TMO}, 1")
    a(f"s_cbranch_scc1 {lab}_ok")
    a("s_waitcnt vmcnt(0)")
    gtest()
    a(f"s_cbranch_vccnz {lab}")
    a.label(lab + "_ok")
    a("s_mov_b64 exec, -1")
    a(f"buffer_load_dword v20, v{V_OF}, {WS}, s{S_OFO} offen sc1")
    a.nops(3)
    a(f"v_mfma_f32_16x16x32_bf16 v[{RD}:{RD+3}], v[{INA}:{INA+3}], v[{SEL}:{SEL+3}], 0")
    a(f"v_mfma_f32_16x16x32_bf16 v[{RD}:{RD+3}], v[{INB}:{INB+3}], v[{SEL}:{SEL+3}], v[{RD}:{RD+3}]")
    a.nops(8)
    a(f"s_mov_b64 exec, s[{S_LO8}:{S_LO8+1}]")
    for r in range(4):
        a(f"ds_write_b32 v{V_YW}, v{RD+r} offset:{32*r}")
    a("s_mov_b64 exec, -1")
    a("s_waitcnt lgkmcnt(0)")
    a("s_barrier")
    stamp(a, 3, st)
    fin = f"{uid}_fin"
    nst = 2 if layer == 0 else 1
    a(f"s_cmp_lg_u32 s{S_W}, 0")
    a(f"s_cbranch_scc1 {fin}")
    a(f"ds_read_b128 v[{Y_}:{Y_+3}], v{V_YR}")
    a(f"ds_read_b128 v[{Y_+4}:{Y_+7}], v{V_YR} offset:16")
    a("s_waitcnt lgkmcnt(0)")
    row_finish(a, Y_, RES, TT, with_ln=(layer == 0))
    if layer == 0:
        a(f"buffer_store_dwordx4 v[{TT}:{TT+3}], v{V_L16}, {WS}, s{S_HOUT} offen sc1")
        a(f"buffer_store_dwordx4 v[{RES}:{RES+3}], v{V_L16}, {WS}, s{S_XOUT} offen sc1")
    else:
        a(f"s_lshl_b32 s{S_TMP}, s{S_SEG}, 15")
        a(f"s_lshl_b32 s{S_TMP+1}, s{S_H}, 10")
        a(f"s_add_u32 s{S_TMP}, s{S_TMP}, s{S_TMP+1}")
        a(f"buffer_store_dwordx4 v[{RES}:{RES+3}], v{V_L16}, s[{S_OUT}:{S_OUT+3}], s{S_TMP} offen")
    trace(a, 10 if layer == 0 else 23, S_SEG)
    stamp(a, 4, st)
    def hflag():
        if layer == 0:
            a(f"v_mov_b32 v21, 1")
            a("s_mov_b64 exec, 1")
            a(f"buffer_store_dword v21, v{V_Z}, {WS}, s{S_HFO} offen sc1")
            a("s_mov_b64 exec, -1")
    a("s_waitcnt vmcnt(0)")
    hflag()
    a(f"s_cmp_eq_u32 s{S_SEG}, 63")
    a(f"s_cbranch_scc1 {uid}_end")
    a(f"s_branch {uid}_go")
    a.label(fin)
    stamp(a, 4, st)
    a(f"s_cmp_eq_u32 s{S_SEG}, 63")
    a(f"s_cbranch_scc1 {uid}_end")
    def look():
        a("v_cmp_eq_u32 vcc, 0, v20")
        a(f"s_and_b64 s[{S_TMP}:{S_TMP+1}], vcc, s[{S_M1}:{S_M1+1}]")
        a(f"s_cselect_b32 s{S_EARLY}, 0, 1")
        a(f"s_cmp_ge_u32 s{S_SEG}, 62")
        a(f"s_cselect_b32 s{S_EARLY}, 0, s{S_EARLY}")
        a(f"s_and_b64 vcc, vcc, s[{S_M0}:{S_M0+1}]")
    a(f"s_cmp_eq_u32 s{S_PRE}, 0")
    a(f"s_cbranch_scc1 {uid}_late")
    a("v_cmp_eq_u32 vcc, 0, v22")
    a(f"s_and_b64 s[{S_TMP}:{S_TMP+1}], vcc, s[{S_M1}:{S_M1+1}]")
    a(f"s_cselect_b32 s{S_EARLY}, 0, 1")
    a(f"s_cmp_ge_u32 s{S_SEG}, 62")
    a(f"s_cselect_b32 s{S_EARLY}, 0, s{S_EARLY}")
    a(f"s_branch {uid}_go")
    a.label(f"{uid}_late")
    a("s_waitcnt vmcnt(0)")
    look()
    a(f"s_cbranch_scc0 {uid}_chk")
    oflag_wait(a, uid + "1")
    look()
    a(f"s_branch {uid}_copy")
    a.label(f"{uid}_chk")
    a(f"s_cmp_lg_u32 s{S_PRE}, 0")
    a(f"s_cbranch_scc1 {uid}_go")
    a.label(f"{uid}_copy")
    a(f"s_sub_u32 s{S_TMP+2}, 32768, s{S_BUF}")
    dma_o(a, S_TMP + 2)
    a("s_waitcnt vmcnt(0)")
    a.label(f"{uid}_go")
    stamp(a, 5, st)
    a(f"s_sub_u32 s{S_TMP+2}, 32768, s{S_BUF}")
    a(f"s_sub_u32 s{S_TMP}, s{S_TMP+2}, s{S_BUF}")
    a(f"v_add_u32 v{V_XRD}, s{S_TMP}, v{V_XRD}")
    a(f"s_mov_b32 s{S_BUF}, s{S_TMP+2}")
    a(f"s_add_u32 s{S_S}, s{S_S}, 1")
    a(f"s_add_u32 s{S_SEG}, s{S_SEG}, 1")
    for sreg in (S_XIN, S_XOUT, S_HOUT):
        a(f"s_add_u32 s{sreg}, s{sreg}, 32768")
    a(f"s_add_u32 s{S_HFO}, s{S_HFO}, 128")
    a("s_barrier")
    if st:
        stamp(a, 6); stamp(a, 7); stamp(a, 8); stamps_accumulate(a)
    a(f"s_branch {uid}_item")
    a.label(f"{uid}_end")
    a("s_waitcnt vmcnt(0)")
    if layer == 0:
        pass
    if st: stamps_store(a)
```

```python
from common import *
L_Y = 131072
V_L16, V_XRD, V_OF, V_PST, V_INR, V_YW, V_YR, V_XR1 = 1, 2, 3, 4, 5, 6, 7, 8
SEL = 12
XF = 24
ACC = 56
MSG = 72
INA, INB, RD0, RD1 = 80, 84, 88, 92
Y_, RES, TT = 96, 104, 108
BUF = 65536
S_S, S_OBO, S_OFO, S_BUF, S_PRE, S_INS, S_TAG, S_XIN, S_OINB, S_EARLY = 18, 19, 20, 21, 22, 23, 24, 25, 30, 31
S_LO8 = 32
S_OUT = 36
S_M0, S_M1 = 40, 42
S_TMP = 44

def role_O16_prologue(a):
    a.c("===== O16 prologue =====")
    for half in range(2):
        a(f"s_lshr_b32 s18, s{S_H}, 2")
        a(f"s_lshl_b32 s18, s18, 20")
        a(f"s_and_b32 s19, s{S_H}, 3")
        a(f"s_lshl_b32 s19, s19, 8")
        a(f"s_add_u32 s18, s18, s19")
        a(f"s_add_u32 s18, s18, {half * 512 * 1024}")
        load_slabs(a, [(KA_WO, 'a', 128 * half)], tmp=24, row_shift=10, nbytes=H * DH * D * 2, base_sgpr=18)
    n, g, t = 24, 25, 26
    a(f"v_and_b32 v{n}, 15, v0")
    a(f"v_lshrrev_b32 v{g}, 4, v0")
    a(f"v_lshlrev_b32 v{V_L16}, 4, v0")
    a(f"v_mov_b32 v{V_XRD}, v{V_L16}")
    a(f"v_add_u32 v{V_XR1}, 32768, v{V_L16}")
    a(f"v_lshlrev_b32 v{V_OF}, 2, v{n}")
    a(f"v_bfe_u32 v{t}, v0, 4, 1")
    a(f"v_lshl_add_u32 v{V_OF}, v{t}, 8, v{V_OF}")
    a(f"s_lshr_b32 s16, s{S_H}, 2")
    a(f"s_lshl_b32 s16, s16, 6")
    a(f"v_add_u32 v{V_OF}, s16, v{V_OF}")
    a(f"v_lshlrev_b32 v{V_PST}, 12, v{n}")
    a(f"v_lshl_add_u32 v{V_PST}, v{g}, 4, v{V_PST}")
    a(f"s_lshr_b32 s16, s{S_H}, 2")
    a(f"s_lshl_b32 s16, s16, 10")
    a(f"s_and_b32 s17, s{S_H}, 3")
    a(f"s_lshl_b32 s17, s17, 8")
    a(f"s_add_u32 s16, s16, s17")
    a(f"s_lshl_b32 s17, s{S_W}, 6")
    a(f"s_add_u32 s16, s16, s17")
    a(f"v_add_u32 v{V_PST}, s16, v{V_PST}")
    a(f"v_lshlrev_b32 v{V_INR}, 10, v{g}")
    a(f"v_lshl_add_u32 v{V_INR}, v{n}, 4, v{V_INR}")
    a(f"s_lshl_b32 s16, s{S_H}, 13")
    a(f"s_lshl_b32 s17, s{S_W}, 8")
    a(f"s_add_u32 s16, s16, s17")
    a(f"v_add_u32 v{V_INR}, s16, v{V_INR}")
    a(f"v_lshl_add_u32 v{t}, v{g}, 5, v{n}")
    a(f"s_lshl_b32 s16, s{S_W}, 7")
    a(f"v_add_u32 v{t}, s16, v{t}")
    a(f"v_lshlrev_b32 v{V_YW}, 2, v{t}")
    a(f"v_add_u32 v{V_YW}, {L_Y}, v{V_YW}")
    a(f"s_and_b32 s16, s{S_W}, 1")
    a(f"s_lshl_b32 s16, s16, 11")
    a(f"s_add_u32 s16, s16, {L_Y}")
    a(f"v_lshlrev_b32 v{V_YR}, 5, v0")
    a(f"v_add_u32 v{V_YR}, s16, v{V_YR}")
    build_sel(a, SEL, n, t)
    a(f"s_mov_b32 s{S_LO8}, 0x00FF00FF")
    a(f"s_mov_b32 s{S_LO8+1}, 0x00FF00FF")
    a(f"s_mov_b32 s{S_M0}, 0x0000FFFF")
    a(f"s_mov_b32 s{S_M0+1}, 0x0000FFFF")
    a(f"s_mov_b32 s{S_M1}, 0xFFFF0000")
    a(f"s_mov_b32 s{S_M1+1}, 0xFFFF0000")
    a(f"s_mov_b32 s{S_EARLY}, 0")
    a(f"s_lshr_b32 s16, s{S_H}, 2")
    a(f"s_lshl_b32 s16, s16, 16")
    a(f"s_add_u32 s{S_OBO}, s16, {OB + OB_L}")
    a(f"s_mov_b32 s{S_OFO}, {OF + OF_L}")
    a(f"s_mov_b32 s{S_OINB}, {OIN + OIN_L}")
    a(f"s_lshl_b32 s16, s{S_H}, 1")
    a(f"s_and_b32 s17, s{S_W}, 1")
    a(f"s_add_u32 s16, s16, s17")
    a(f"s_lshl_b32 s{S_XIN}, s16, 10")
    srd_from_kernarg(a, S_OUT, KA_OUT, S * D * 2)
    a(f"s_mov_b32 s{S_S}, 0")
    a(f"s_mov_b32 s{S_BUF}, 0")

def dma_units(ssrc, sbuf):
    u = [f"s_lshl_b32 s{S_TMP}, s{S_W}, 14\n  s_add_u32 s{S_TMP+1}, s{S_TMP}, s{sbuf}\n  s_add_u32 s{S_TMP}, s{S_TMP}, s{ssrc}\n  s_mov_b32 m0, s{S_TMP+1}\n  s_nop 0"]
    for q in range(4):
        if q: u.append(f"s_add_u32 s{S_TMP+1}, s{S_TMP+1}, 4096\n  s_mov_b32 m0, s{S_TMP+1}\n  s_add_u32 s{S_TMP}, s{S_TMP}, 4096")
        for j in range(4):
            u.append(f"buffer_load_dwordx4 v{V_L16}, s[{S_WS}:{S_WS+3}], s{S_TMP} offen offset:{1024*j} sc1 lds")
    return u
def dma(a, ssrc, sbuf):
    for x in dma_units(ssrc, sbuf): a(x)

def oflag_wait(a, uid):
    WS = f"s[{S_WS}:{S_WS+3}]"
    lab = f"ofw_{uid}"
    a.label(lab)
    a(f"buffer_load_dword v20, v{V_OF}, {WS}, s{S_OFO} offen sc1")
    a("s_waitcnt vmcnt(0)")
    a(f"v_cmp_eq_u32 vcc, 0, v20")
    a(f"s_and_b64 vcc, vcc, s[{S_M0}:{S_M0+1}]")
    a(f"s_cbranch_scc0 {lab}_ok")
    a(f"s_sub_u32 s{S_TMO}, s{S_TMO}, 1")
    a(f"s_cbranch_scc1 {lab}_ok")
    backoff(a)
    a(f"s_branch {lab}")
    a.label(lab + "_ok")

def role_O16_main(a, local=True, uid="O16", st=False):
    if st: stamps_init(a)
    WS = f"s[{S_WS}:{S_WS+3}]"
    stf = "" if local else "sc1"
    ldf = "nt" if local else "sc1"
    oflag_wait(a, uid + "0")
    dma(a, S_OBO, S_BUF)
    a("s_waitcnt vmcnt(0)")
    a("s_barrier")
    a.label(f"{uid}_item")
    a.lg = []
    trace(a, 9, S_S)
    stamp(a, 0, st)
    a(f"s_add_u32 s{S_OFO}, s{S_OFO}, {64*4}")
    a(f"s_add_u32 s{S_OBO}, s{S_OBO}, {32*8192}")
    a(f"s_lshl_b32 s{S_TMP}, s{S_S}, 15")
    a(f"s_add_u32 s{S_TMP}, s{S_TMP}, s{S_XIN}")
    a(f"s_add_u32 s{S_TMP}, s{S_TMP}, {XB + 3*ROWS_J}")
    a(f"buffer_load_dwordx4 v[{RES}:{RES+3}], v{V_L16}, {WS}, s{S_TMP} offen sc1")
    a(f"buffer_load_dword v22, v{V_OF}, {WS}, s{S_OFO} offen sc1")
    a(f"s_and_b32 s{S_TMP}, s{S_S}, 1")
    a(f"s_mul_i32 s{S_TMP}, s{S_TMP}, {32*4096}")
    a(f"s_add_u32 s{S_INS}, s{S_TMP}, s{S_OINB}")
    a(f"s_bfe_u32 s{S_TAG}, s{S_S}, 0x10001")
    def xread(ks, slot):
        r = XF + 8 * slot
        hh, k4 = ks // 4, ks % 4
        vb = V_XRD if hh < 4 else V_XR1
        o = (hh % 4) * 8192 + k4 * 1024
        a.ds(f"ds_read_b128 v[{r}:{r+3}], v{vb} offset:{o}", f"x{ks}")
        a.ds(f"ds_read_b128 v[{r+4}:{r+7}], v{vb} offset:{o + 4096}", f"x{ks}")
    for ks in range(3): xread(ks, ks)
    a(f"s_sub_u32 s{S_TMP+3}, s{S_OBO}, {32*8192}")
    a(f"s_cmp_lg_u32 s{S_EARLY}, 0")
    a(f"s_cselect_b32 s{S_TMP+3}, s{S_OBO}, s{S_TMP+3}")
    a(f"s_sub_u32 s{S_TMP+2}, {BUF}, s{S_BUF}")
    a(f"s_mov_b32 s{S_PRE}, s{S_EARLY}")
    DM = dma_units(S_TMP + 3, S_TMP + 2)
    def xread1(ks, slot, tt):
        r = XF + 8 * slot + 4 * tt
        hh, k4 = ks // 4, ks % 4
        vb = V_XRD if hh < 4 else V_XR1
        a.ds(f"ds_read_b128 v[{r}:{r+3}], v{vb} offset:{(hh % 4) * 8192 + k4 * 1024 + 4096 * tt}", f"x{ks}")
    a.ds_wait("x0")
    for ks in range(32):
        r = XF + 8 * (ks % 4)
        i = 0
        for t in range(2):
            for tt in range(2):
                d = ACC + 8*t + 4*tt; wr = (ks // 16) * 128 + t * 64 + (ks % 16) * 4
                c = "0" if ks == 0 else f"v[{d}:{d+3}]"
                a(f"v_mfma_f32_16x16x32_bf16 v[{d}:{d+3}], a[{wr}:{wr+3}], v[{r+4*tt}:{r+4*tt+3}], {c}")
                if i in (0, 1) and ks + 3 < 32: xread1(ks + 3, (ks + 3) % 4, i)
                if i == 2 and ks + 1 < 32: a.ds_wait(f"x{ks+1}")
                if i == 3 and DM: a(DM.pop(0))
                i += 1
    assert not DM
    stamp(a, 1, st)
    a.nops(6)
    for tt in range(2):
        mq = MSG + 4 * tt
        A0, A1 = ACC + 4*tt, ACC + 8 + 4*tt
        a(f"v_cvt_pk_bf16_f32 v{mq}, v{A0}, v{A0+1}")
        a(f"v_cvt_pk_bf16_f32 v{mq+1}, v{A0+2}, v{A0+3}")
        a(f"v_cvt_pk_bf16_f32 v{mq+2}, v{A1}, v{A1+1}")
        a(f"v_cvt_pk_bf16_f32 v{mq+3}, v{A1+2}, v{A1+3}")
        a(f"v_bfi_b32 v{mq}, 1, s{S_TAG}, v{mq}")
        a(f"s_add_u32 s{S_TMP}, s{S_INS}, {tt * 16 * 4096}")
        a(f"buffer_store_dwordx4 v[{mq}:{mq+3}], v{V_PST}, {WS}, s{S_TMP} offen {stf}")
    a("s_waitcnt vmcnt(0)")
    stamp(a, 2, st)
    def both():
        a(f"buffer_load_dwordx4 v[{INA}:{INA+3}], v{V_INR}, {WS}, s{S_INS} offen {ldf}")
        a(f"s_add_u32 s{S_TMP}, s{S_INS}, 4096")
        a(f"buffer_load_dwordx4 v[{INB}:{INB+3}], v{V_INR}, {WS}, s{S_TMP} offen {ldf}")
    lab = f"{uid}_in"
    def gtest():
        a(f"v_bitop3_b32 v21, v{INA}, v{INB}, s{S_TAG} bitop3:0x7E")
        a(f"v_and_b32 v21, 1, v21")
        a("v_cmp_ne_u32 vcc, 0, v21")
    both()
    a("s_waitcnt vmcnt(0)")
    gtest()
    a(f"s_cbranch_vccz {lab}_ok")
    a.label(lab)
    a("s_mov_b64 exec, vcc")
    both()
    a(f"s_sub_u32 s{S_TMO}, s{S_TMO}, 1")
    a(f"s_cbranch_scc1 {lab}_ok")
    a("s_waitcnt vmcnt(0)")
    gtest()
    a(f"s_cbranch_vccnz {lab}")
    a.label(lab + "_ok")
    a("s_mov_b64 exec, -1")
    stamp(a, 3, st)
    a(f"buffer_load_dword v20, v{V_OF}, {WS}, s{S_OFO} offen sc1")
    a.nops(3)
    a(f"v_mfma_f32_16x16x32_bf16 v[{RD0}:{RD0+3}], v[{INA}:{INA+3}], v[{SEL}:{SEL+3}], 0")
    a(f"v_mfma_f32_16x16x32_bf16 v[{RD1}:{RD1+3}], v[{INB}:{INB+3}], v[{SEL}:{SEL+3}], 0")
    a.nops(8)
    a(f"s_mov_b64 exec, s[{S_LO8}:{S_LO8+1}]")
    for r in range(4):
        a(f"ds_write_b32 v{V_YW}, v{RD0+r} offset:{32*r}")
        a(f"ds_write_b32 v{V_YW}, v{RD1+r} offset:{32*r + 2048}")
    a("s_mov_b64 exec, -1")
    a("s_waitcnt lgkmcnt(0)")
    a("s_barrier")
    stamp(a, 4, st)
    fin = f"{uid}_fin"
    a(f"s_cmp_ge_u32 s{S_W}, 2")
    a(f"s_cbranch_scc1 {fin}")
    a(f"ds_read_b128 v[{Y_}:{Y_+3}], v{V_YR}")
    a(f"ds_read_b128 v[{Y_+4}:{Y_+7}], v{V_YR} offset:16")
    a("s_waitcnt lgkmcnt(0)")
    row_finish(a, Y_, RES, TT, with_ln=False)
    a(f"s_lshl_b32 s{S_TMP}, s{S_S}, 15")
    a(f"s_add_u32 s{S_TMP}, s{S_TMP}, s{S_XIN}")
    a(f"buffer_store_dwordx4 v[{RES}:{RES+3}], v{V_L16}, s[{S_OUT}:{S_OUT+3}], s{S_TMP} offen")
    trace(a, 10, S_S)
    a.label(fin)
    stamp(a, 5, st)
    a(f"s_cmp_eq_u32 s{S_S}, {O2_SPLIT - 1}")
    a(f"s_cbranch_scc1 {uid}_end")
    a(f"s_cmp_eq_u32 s{S_PRE}, 0")
    a(f"s_cbranch_scc1 {uid}_late")
    a("v_cmp_eq_u32 vcc, 0, v22")
    a(f"s_and_b64 s[{S_TMP}:{S_TMP+1}], vcc, s[{S_M1}:{S_M1+1}]")
    a(f"s_cselect_b32 s{S_EARLY}, 0, 1")
    a(f"s_cmp_ge_u32 s{S_S}, {O2_SPLIT - 2}")
    a(f"s_cselect_b32 s{S_EARLY}, 0, s{S_EARLY}")
    a(f"s_branch {uid}_go")
    a.label(f"{uid}_late")
    a(f"s_cmp_ge_u32 s{S_W}, 2")
    a(f"s_cbranch_scc1 {uid}_w23")
    a("s_waitcnt vmcnt(1)")
    a(f"s_branch {uid}_lk")
    a.label(f"{uid}_w23")
    a("s_waitcnt vmcnt(0)")
    a.label(f"{uid}_lk")
    def look():
        a("v_cmp_eq_u32 vcc, 0, v20")
        a(f"s_and_b64 s[{S_TMP}:{S_TMP+1}], vcc, s[{S_M1}:{S_M1+1}]")
        a(f"s_cselect_b32 s{S_EARLY}, 0, 1")
        a(f"s_cmp_ge_u32 s{S_S}, {O2_SPLIT - 2}")
        a(f"s_cselect_b32 s{S_EARLY}, 0, s{S_EARLY}")
        a(f"s_and_b64 vcc, vcc, s[{S_M0}:{S_M0+1}]")
    look()
    a(f"s_cbranch_scc0 {uid}_chk")
    oflag_wait(a, uid + "1")
    look()
    a(f"s_branch {uid}_copy")
    a.label(f"{uid}_chk")
    a(f"s_cmp_lg_u32 s{S_PRE}, 0")
    a(f"s_cbranch_scc1 {uid}_go")
    a.label(f"{uid}_copy")
    a(f"s_sub_u32 s{S_TMP+2}, {BUF}, s{S_BUF}")
    dma(a, S_OBO, S_TMP + 2)
    a("s_waitcnt vmcnt(0)")
    a.label(f"{uid}_go")
    stamp(a, 6, st)
    a(f"s_sub_u32 s{S_TMP+2}, {BUF}, s{S_BUF}")
    a(f"s_sub_u32 s{S_TMP}, s{S_TMP+2}, s{S_BUF}")
    a(f"v_add_u32 v{V_XRD}, s{S_TMP}, v{V_XRD}")
    a(f"v_add_u32 v{V_XR1}, s{S_TMP}, v{V_XR1}")
    a(f"s_mov_b32 s{S_BUF}, s{S_TMP+2}")
    a(f"s_add_u32 s{S_S}, s{S_S}, 1")
    a("s_barrier")
    if st:
        stamp(a, 7); stamp(a, 8); stamps_accumulate(a)
    a(f"s_branch {uid}_item")
    a.label(f"{uid}_end")
    a("s_waitcnt vmcnt(0)")
    if st: stamps_store(a)
```

```python
from common import *
from common import trace as ptrace

L_WO   = 0
L_SM   = 131072
L_MEM  = L_SM
L_KX   = L_SM + 8192
L_VX   = L_SM + 16384
L_Q    = L_SM + 24576
L_K    = L_Q + 2304
L_O    = L_K + 2304
L_SEL  = L_O + 2048
assert L_SEL + 1024 <= 163840
QS = 288

V_L16, V_WO0, V_WO1, V_QW, V_QR, V_KR, V_OW, V_VXR = 1, 2, 3, 4, 5, 6, 7, 8
V_IDX, V_MP, V_MW, V_PST, V_INR, V_PUB, V_SH = 9, 10, 11, 12, 13, 14, 15
MSGQ = 16
V_T = 20
A_MEM = 24
ACC_Q0, ACC_Q1, ACC_K0, ACC_K1, ACC_V0, ACC_V1 = 56, 60, 64, 68, 72, 76
Q_OP = 80
KX_OP = 96
WQ, WK = 0, 128
WV = 128
S_S, S_MEMS, S_TAG = 16, 17, 18
S_IN0 = 20
S_PS0 = 24
S_HI8, S_LO8, S_PUBM = 28, 30, 32
S_KXO, S_VXO, S_KMO, S_TFO = 34, 35, 36, 38
S_C = 40
S_PUBS, S_RSTS = 41, 42
S_TMP = 44
S_PB0 = 76
S_INB = 80
S_TFOK = 82
S_W64 = 83
S_PFD = 84
S_NDUP = 96
S_RINGB = 81
S_STAMP = 50
S_ACC = 68

def smf(a, acc, aop, wfile, wreg):
    w = f"a[{wreg}:{wreg+7}]" if wfile == 'a' else f"v[{wreg}:{wreg+7}]"
    a(f"v_smfmac_f32_16x16x64_bf16 v[{acc}:{acc+3}], v[{aop}:{aop+3}], {w}, v{V_IDX}")

def timeout_check(a, lab_fail_to):
    a(f"s_sub_u32 s{S_TMO}, s{S_TMO}, 1")
    a(f"s_cbranch_scc1 {lab_fail_to}")

def role_R_prologue(a):
    a.c("===== R prologue =====")
    load_qkv_weights(a, [(KA_WQ, 'a', WQ), (KA_WK, 'a', WK), (KA_WV, 'v', WV)], tmp=24)
    srd_from_kernarg(a, S_T0, KA_WO, H * DH * D * 2)
    a(f"v_lshlrev_b32 v24, 4, v0")
    a(f"s_lshl_b32 s16, s{S_H}, 17")
    a(f"s_lshl_b32 s17, s{S_W}, 15")
    a(f"s_add_u32 s16, s16, s17")
    a(f"s_add_u32 s17, s17, 32768")
    for j in range(32):
        key = (j & 3) + 4 * ((j >> 3) & 1)
        a(f"v_xor_b32 v25, {key << 5}, v24")
        a(f"s_mov_b32 m0, s17")
        a(f"s_add_u32 s17, s17, 1024")
        a(f"buffer_load_dwordx4 v25, s[{S_T0}:{S_T0+3}], s16 offen lds")
        a(f"s_add_u32 s16, s16, 1024")
    a("v_lshrrev_b32 v26, 4, v0")
    a("v_bfe_u32 v27, v0, 2, 2")
    a("v_lshl_add_u32 v28, v26, 3, v27")
    a("v_lshlrev_b32 v28, 10, v28")
    a("v_and_b32 v26, 1, v26")
    a("v_lshl_add_u32 v27, v26, 2, v27")
    a("v_lshl_add_u32 v28, v27, 5, v28")
    a("v_and_b32 v26, 3, v0")
    a("v_lshl_add_u32 v28, v26, 3, v28")
    a(f"s_lshl_b32 s16, s{S_W}, 8")
    a("v_add_u32 v28, s16, v28")
    a("v_add_u32 v28, 0x8000, v28")
    a(f"s_lshl_b32 s16, s{S_W}, 13")
    a("v_lshlrev_b32 v29, 4, v0")
    a("v_add_u32 v29, s16, v29")
    for tp in range(8):
        a(f"s_add_u32 s16, s{S_H}, {tp >> 2}")
        a(f"s_and_b32 s16, s16, 1")
        a(f"s_lshl_b32 s16, s16, 2")
        a(f"s_or_b32 s16, s16, {tp & 3}")
        a(f"s_lshl_b32 s{24 + tp}, s16, 5")
    a("s_waitcnt vmcnt(0)")
    a("s_barrier")
    for c in range(4):
        for tt in range(8):
            a(f"v_xor_b32 v30, s{24 + tt}, v28")
            for p in range(2):
                r = 32 + tt * 4 + 2 * p
                a(f"ds_read_b64_tr_b16 v[{r}:{r+1}], v30 offset:{p * 4096}")
        a("s_waitcnt lgkmcnt(0)")
        for tt in range(8):
            r = 32 + tt * 4
            a(f"ds_write_b128 v29, v[{r}:{r+3}] offset:{tt * 1024}")
        a("v_add_u32 v28, 0x8000, v28")
        a("v_add_u32 v29, 0x8000, v29")
        a("s_waitcnt lgkmcnt(0)")
        a("s_barrier")
    a.c("lane constants")
    n, g, t, u = 24, 25, 26, 27
    a(f"v_and_b32 v{n}, 15, v0")
    a(f"v_lshrrev_b32 v{g}, 4, v0")
    a(f"v_lshlrev_b32 v{V_L16}, 4, v0")
    a(f"s_lshl_b32 s16, s{S_W}, 13")
    a(f"v_add_u32 v{V_WO0}, s16, v{V_L16}")
    a(f"v_add_u32 v{V_WO1}, 0x10000, v{V_WO0}")
    a(f"s_lshl_b32 s16, s{S_W}, 11")
    a(f"v_add_u32 v{V_MP}, s16, v{V_L16}")
    a(f"v_add_u32 v{V_MW}, {L_MEM}, v{V_MP}")
    a(f"v_add_u32 v{V_VXR}, {L_VX}, v{V_MP}")
    a(f"v_add_u32 v{V_L16}, {L_SM}, v{V_L16}")
    a(f"v_mul_u32_u24 v{V_QW}, {QS}, v{g}")
    a(f"v_lshrrev_b32 v{t}, 2, v{n}")
    a(f"v_lshl_add_u32 v{V_QW}, v{t}, 4, v{V_QW}")
    a(f"v_and_b32 v{t}, 3, v{n}")
    a(f"v_lshl_add_u32 v{V_QW}, v{t}, 1, v{V_QW}")
    a(f"s_lshl_b32 s16, s{S_W}, 6")
    a(f"s_add_u32 s16, s16, {L_Q}")
    a(f"v_add_u32 v{V_QW}, s16, v{V_QW}")
    a(f"v_and_b32 v{t}, 7, v{n}")
    a(f"v_mul_u32_u24 v{V_QR}, {QS}, v{t}")
    a(f"v_lshl_add_u32 v{V_QR}, v{g}, 4, v{V_QR}")
    a(f"v_add_u32 v{V_QR}, {L_Q}, v{V_QR}")
    a(f"v_lshrrev_b32 v{t}, 2, v{n}")
    a(f"v_and_b32 v{u}, 1, v{n}")
    a(f"v_lshl_add_u32 v{t}, v{u}, 2, v{t}")
    a(f"v_mul_u32_u24 v{V_KR}, {QS}, v{t}")
    a(f"v_lshl_add_u32 v{V_KR}, v{g}, 4, v{V_KR}")
    a(f"v_add_u32 v{V_KR}, {L_K}, v{V_KR}")
    a(f"s_lshl_b32 s{S_W64}, s{S_W}, 6")
    a(f"v_lshrrev_b32 v{t}, 1, v{g}")
    a(f"s_and_b32 s16, s{S_W}, 1")
    a(f"s_lshl_b32 s16, s16, 1")
    a(f"v_add_u32 v{t}, s16, v{t}")
    a(f"v_lshlrev_b32 v{t}, 4, v{t}")
    a(f"v_and_b32 v{u}, 3, v{n}")
    a(f"v_lshl_add_u32 v{t}, v{u}, 2, v{t}")
    a(f"v_lshrrev_b32 v{u}, 2, v{n}")
    a(f"v_add_u32 v{t}, v{t}, v{u}")
    a(f"v_lshlrev_b32 v{V_OW}, 4, v{t}")
    a(f"v_and_b32 v{u}, 1, v{g}")
    a(f"v_lshl_add_u32 v{V_OW}, v{u}, 3, v{V_OW}")
    a(f"s_lshr_b32 s16, s{S_W}, 1")
    a(f"s_lshl_b32 s16, s16, 10")
    a(f"s_add_u32 s16, s16, {L_O}")
    a(f"v_add_u32 v{V_OW}, s16, v{V_OW}")
    a(f"v_bfe_u32 v{t}, v{n}, 1, 1")
    a(f"v_mul_u32_u24 v{t}, 0xAAAA, v{t}")
    a(f"v_add_u32 v{V_IDX}, 0x4444, v{t}")
    a(f"v_lshrrev_b32 v{t}, 3, v{n}")
    a(f"v_lshlrev_b32 v{V_SH}, 4, v{t}")
    a(f"s_lshl_b32 s16, s{S_W}, 3")
    a(f"v_add_u32 v{t}, s16, v{g}")
    a(f"v_lshlrev_b32 v{V_PST}, 13, v{t}")
    a(f"v_lshl_add_u32 v{V_PST}, v{n}, 4, v{V_PST}")
    a(f"s_lshr_b32 s16, s{S_H}, 1")
    a(f"s_lshl_b32 s16, s16, 8")
    a(f"v_add_u32 v{V_PST}, s16, v{V_PST}")
    for k in range(2):
        a(f"s_add_u32 s16, s{S_H}, {k}")
        a(f"s_and_b32 s16, s16, 1")
        a(f"s_lshl_b32 s16, s16, 15")
        a(f"s_add_u32 s{S_PB0+k}, s16, {k*4096}")
    a(f"v_lshrrev_b32 v{t}, 2, v{n}")
    a(f"v_lshl_add_u32 v{t}, v{g}, 2, v{t}")
    a(f"v_lshlrev_b32 v{V_INR}, 8, v{t}")
    a(f"v_and_b32 v{t}, 3, v{n}")
    a(f"v_lshl_add_u32 v{V_INR}, v{t}, 4, v{V_INR}")
    a(f"s_lshl_b32 s16, s{S_H}, 13")
    a(f"s_lshl_b32 s17, s{S_W}, 6")
    a(f"s_add_u32 s16, s16, s17")
    a(f"v_add_u32 v{V_INR}, s16, v{V_INR}")
    a(f"s_lshr_b32 s16, s{S_H}, 2")
    a(f"s_lshl_b32 s16, s16, 6")
    a(f"s_lshl_b32 s17, s{S_W}, 2")
    a(f"s_add_u32 s16, s16, s17")
    a(f"v_lshrrev_b32 v{t}, 1, v{n}")
    a(f"v_lshl_add_u32 v{t}, v{t}, 4, v{g}")
    a(f"v_add_u32 v{t}, s16, v{t}")
    a(f"s_and_b32 s16, s{S_H}, 3")
    a(f"s_lshl_b32 s16, s16, 2")
    a(f"v_and_b32 v{u}, 1, v{n}")
    a(f"v_add_u32 v{u}, s16, v{u}")
    a(f"v_bfe_u32 v20, v{t}, 1, 1")
    a(f"v_lshl_add_u32 v{u}, v20, 1, v{u}")
    a(f"v_bfe_u32 v20, v{t}, 4, 2")
    a(f"v_lshl_add_u32 v{u}, v20, 4, v{u}")
    a(f"v_lshlrev_b32 v{V_PUB}, 4, v{u}")
    a(f"v_bfe_u32 v20, v{t}, 2, 2")
    a(f"v_lshl_add_u32 v{V_PUB}, v20, 2, v{V_PUB}")
    a(f"v_lshrrev_b32 v20, 6, v{t}")
    a(f"v_and_b32 v20, 7, v20")
    a(f"v_lshl_add_u32 v{V_PUB}, v20, 10, v{V_PUB}")
    for r in range(4):
        a(f"v_mov_b32 v{32+r}, 0")
        a(f"v_cmp_eq_u32 vcc, {2*r}, v{n}")
        a(f"v_mov_b32 v20, 0x3f80")
        a(f"s_nop 0")
        a(f"v_cndmask_b32 v{32+r}, v{32+r}, v20, vcc")
        a(f"v_cmp_eq_u32 vcc, {2*r+1}, v{n}")
        a(f"v_mov_b32 v20, 0x3f800000")
        a(f"s_nop 0")
        a(f"v_cndmask_b32 v{32+r}, v{32+r}, v20, vcc")
    a(f"ds_write_b128 v{V_L16}, v[32:35] offset:{L_SEL - L_SM}")

    a(f"s_mov_b32 s{S_HI8}, 0xFF00FF00")
    a(f"s_mov_b32 s{S_HI8+1}, 0xFF00FF00")
    a(f"s_mov_b32 s{S_LO8}, 0x00FF00FF")
    a(f"s_mov_b32 s{S_LO8+1}, 0x00FF00FF")
    a(f"s_mov_b32 s{S_PUBM}, 0x000000FF")
    a(f"s_mov_b32 s{S_PUBM+1}, 0x000000FF")
    a(f"s_mov_b32 s{S_NDUP}, 0x33333333")
    a(f"s_mov_b32 s{S_NDUP+1}, 0x33333333")
    a(f"s_mov_b32 s{S_C}, 0x3e0293ee")
    srd_from_kernarg(a, S_T0, KA_MEM0, M * D * 2)
    a(f"v_lshrrev_b32 v{t}, 2, v{n}")
    a(f"v_and_b32 v{u}, 1, v{n}")
    a(f"v_lshl_add_u32 v{t}, v{u}, 2, v{t}")
    a(f"v_lshlrev_b32 v{t}, 10, v{t}")
    a(f"v_lshl_add_u32 v{t}, v{g}, 5, v{t}")
    a(f"v_bfe_u32 v{u}, v{n}, 1, 1")
    a(f"v_lshl_add_u32 v{t}, v{u}, 2, v{t}")
    a(f"s_lshl_b32 s16, s{S_W}, 8")
    a(f"v_add_u32 v{t}, s16, v{t}")
    for k in range(2):
        for p in range(4):
            a(f"buffer_load_dword v{32 + 4*k + p}, v{t}, s[{S_T0}:{S_T0+3}], 0 offen offset:{128*k + 8*p}")
    a("s_waitcnt vmcnt(0)")
    a(f"ds_write_b128 v{V_MW}, v[32:35]")
    a(f"ds_write_b128 v{V_MW}, v[36:39] offset:1024")
    a(f"s_mul_i32 s{S_KXO}, s{S_L}, {KX_L}")
    a(f"s_lshl_b32 s16, s{S_H}, 13")
    a(f"s_add_u32 s{S_KXO}, s{S_KXO}, s16")
    a(f"s_add_u32 s{S_VXO}, s{S_KXO}, {VX}")
    a(f"s_add_u32 s{S_KXO}, s{S_KXO}, {KX}")
    a(f"s_mul_i32 s{S_KMO}, s{S_L}, {KM_L}")
    a(f"s_lshl_b32 s16, s{S_H}, 12")
    a(f"s_add_u32 s{S_KMO}, s{S_KMO}, s16")
    a(f"s_add_u32 s{S_KMO}, s{S_KMO}, {KM - 131072}")
    a(f"s_lshl_b32 s16, s{S_W}, 10")
    a(f"s_add_u32 s{S_KMO}, s{S_KMO}, s16")
    a(f"s_mul_i32 s{S_TFO}, s{S_L}, {TF_L}")
    a(f"s_add_u32 s{S_TFO}, s{S_TFO}, {TF}")
    a(f"s_lshl_b32 s16, s{S_H}, 4")
    a(f"s_add_u32 s{S_TFO}, s{S_TFO}, s16")
    a(f"s_mul_i32 s{S_INB}, s{S_L}, {INBOX_L}")
    a(f"s_add_u32 s{S_INB}, s{S_INB}, {INBOX}")
    a(f"s_mul_i32 s{S_RINGB}, s{S_L}, {MEMRING_L}")
    a(f"s_add_u32 s{S_RINGB}, s{S_RINGB}, {MEMRING}")
    if L2PF:
        a(f"v_bfe_u32 v23, v{V_MP}, 4, 4")
        a(f"v_lshlrev_b32 v23, 7, v23")
        a(f"v_and_b32 v21, 0x1800, v{V_MP}")
        a(f"v_or_b32 v23, v23, v21")
        a(f"v_bfe_u32 v21, v{V_MP}, 8, 1")
        a(f"v_mul_u32_u24 v21, {(VX - KX) >> 4}, v21")
        a(f"v_lshl_add_u32 v0, v21, 4, v23")
        a(f"s_cmp_eq_u32 s{S_L}, 0")
        a(f"s_cselect_b32 s{S_PFD}, {PF_DIST*32*8192}, 0")
    a(f"s_mov_b32 s{S_S}, 0")

def wait_flag_T(a, uid):
    lab = f"R_tf_{uid}"
    a(f"v_bfe_u32 v21, v{V_L16}, 4, 2")
    a(f"v_lshlrev_b32 v21, 2, v21")
    a.label(lab)
    a(f"buffer_load_dword v20, v21, s[{S_WS}:{S_WS+3}], s{S_TFO} offen sc1")
    a("s_waitcnt vmcnt(0)")
    a("v_cmp_eq_u32 vcc, 0, v20")
    a(f"s_cbranch_vccz {lab}_ok")
    timeout_check(a, lab + "_ok")
    a(f"s_branch {lab}")
    a.label(lab + "_ok")

def dma_kx(a):
    a(f"s_lshl_b32 s{S_TMP}, s{S_W}, 11")
    a(f"s_add_u32 m0, s{S_TMP}, {L_KX}")
    a("s_nop 0")
    a(f"buffer_load_dwordx4 v{V_MP}, s[{S_WS}:{S_WS+3}], s{S_KXO} offen sc1 lds")
    a(f"buffer_load_dwordx4 v{V_MP}, s[{S_WS}:{S_WS+3}], s{S_KXO} offen offset:1024 sc1 lds")
def dma_vx(a):
    a(f"s_lshl_b32 s{S_TMP}, s{S_W}, 11")
    a(f"s_add_u32 m0, s{S_TMP}, {L_VX}")
    a("s_nop 0")
    a(f"buffer_load_dwordx4 v{V_MP}, s[{S_WS}:{S_WS+3}], s{S_VXO} offen sc1 lds")
    a(f"buffer_load_dwordx4 v{V_MP}, s[{S_WS}:{S_WS+3}], s{S_VXO} offen offset:1024 sc1 lds")

REALTIME = False
NOSTREAM = False
L2PF = False
PFF = False
PF_DIST = 1
BAR = set()
SKIP = set()
HOTKV = False
HOP1_DEPTH = 1
HOP2_DEPTH = 1
HOP2_GATE = True
def stamp(a, i, on):
    if on:
        a(f"{'s_memrealtime' if REALTIME else 's_memtime'} s[{S_STAMP+2*i}:{S_STAMP+2*i+1}]")


def step_scalars(a):
    a(f"s_and_b32 s{S_TMP}, s{S_S}, 1")
    a(f"s_mul_i32 s{S_TMP}, s{S_TMP}, {INBOX_SLOT}")
    a(f"s_add_u32 s{S_TMP}, s{S_TMP}, s{S_INB}")
    for k in range(2):
        a(f"s_add_u32 s{S_PS0+k}, s{S_TMP}, s{S_PB0+k}")
        a(f"s_add_u32 s{S_IN0+k}, s{S_TMP}, {k*4096}")
    a(f"s_bfe_u32 s{S_TAG}, s{S_S}, 0x10001")
def ring_scalars(a):
    a(f"s_add_u32 s{S_TMP}, s{S_S}, 1")
    a(f"s_and_b32 s{S_TMP}, s{S_TMP}, 3")
    a(f"s_lshl_b32 s{S_TMP}, s{S_TMP}, 13")
    a(f"s_add_u32 s{S_PUBS}, s{S_TMP}, s{S_RINGB}")
    a(f"s_add_u32 s{S_TMP}, s{S_S}, 3")
    a(f"s_and_b32 s{S_TMP}, s{S_TMP}, 3")
    a(f"s_lshl_b32 s{S_TMP}, s{S_TMP}, 13")
    a(f"s_add_u32 s{S_RSTS}, s{S_TMP}, s{S_RINGB}")

def role_R_main(a, local=True, stamps=False, uid="R", nodma=False, nopub=False, probe=False, trace=False, ldf=None):
    LD = ldf if ldf is not None else ('nt' if local else 'sc1')
    st = "" if local else "sc1"
    WS = f"s[{S_WS}:{S_WS+3}]"
    if stamps:
        for i in range(8):
            a(f"s_mov_b32 s{S_ACC+i}, 0")
        for i in range(84, 89):
            a(f"s_mov_b32 s{i}, 0")
    wait_flag_T(a, uid + "first")
    dma_kx(a)
    dma_vx(a)
    a(f"s_add_u32 s{S_KXO}, s{S_KXO}, {32*8192}")
    a(f"s_add_u32 s{S_VXO}, s{S_VXO}, {32*8192}")
    a(f"s_add_u32 s{S_TFO}, s{S_TFO}, {32*16}")
    a(f"v_bfe_u32 v23, v{V_L16}, 4, 2")
    a(f"v_lshlrev_b32 v23, 2, v23")
    a(f"buffer_load_dword v22, v23, s[{S_WS}:{S_WS+3}], s{S_TFO} offen sc1")
    for r in range(ACC_Q0, ACC_V1 + 4, 2):
        a(f"v_mov_b64 v[{r}:{r+1}], 0")
    step_scalars(a)
    a("s_waitcnt vmcnt(0) lgkmcnt(0)")
    a("s_barrier")
    tails = []
    a.label(f"{uid}_step")
    a.lg = []; a.vm = []
    ptrace(a, 0, S_S)
    stamp(a, 0, stamps and not probe)
    a.c("---- P1: q,k projection")
    for ks in range(8):
        a.ds(f"ds_read_b128 v[{A_MEM+4*ks}:{A_MEM+4*ks+3}], v{V_L16} offset:{L_MEM-L_SM + ks*1024}", f"A{ks}")
    if L2PF:
        a(f"s_add_u32 s{S_TMP}, s{S_PFD}, s{S_KXO}")
        a(f"buffer_load_dword v23, v0, {WS}, s{S_TMP} offen")
    if PFF:
        a(f"s_add_u32 s{S_TMP+1}, s{S_TFO}, {2*32*16}")
        a(f"buffer_load_dword v23, off, {WS}, s{S_TMP+1}")
    for ks in range(8):
        a.ds_wait(f"A{ks}")
        A = A_MEM + 4 * ks
        smf(a, ACC_Q0, A, 'a', WQ + 0 * 64 + ks * 8)
        smf(a, ACC_K0, A, 'a', WK + 0 * 64 + ks * 8)
        a.ds(f"ds_read_b128 v[{KX_OP+4*ks}:{KX_OP+4*ks+3}], v{V_L16} offset:{L_KX-L_SM + ks*1024}", f"KX{ks}")
        smf(a, ACC_Q1, A, 'a', WQ + 1 * 64 + ks * 8)
        smf(a, ACC_K1, A, 'a', WK + 1 * 64 + ks * 8)
    stamp(a, 1, stamps and not probe)
    a.c("---- P2: q,k epilogue")
    def vstep(ks):
        A = A_MEM + 4 * ks
        smf(a, ACC_V0, A, 'v', WV + 0 * 64 + ks * 8)
        smf(a, ACC_V1, A, 'v', WV + 1 * 64 + ks * 8)
    for acc, base, t in ((ACC_Q0, 0, 0), (ACC_K0, L_K - L_Q, 0), (ACC_Q1, 0, 1), (ACC_K1, L_K - L_Q, 1)):
        a(f"v_pk_add_f32 v[{acc}:{acc+1}], v[{acc}:{acc+1}], v[{acc+2}:{acc+3}]")
        a(f"v_cvt_pk_bf16_f32 v{acc}, v{acc}, v{acc+1}")
        a.ds(f"ds_write_b16 v{V_QW}, v{acc} offset:{base + 8*t}", "qkw")
        a.ds(f"ds_write_b16_d16_hi v{V_QW}, v{acc} offset:{base + 8*t + 4*QS}", "qkw")
    vstep(0); vstep(1)
    a.ds_wait("qkw")
    a("s_barrier")
    stamp(a, 2, stamps and not probe)
    a.c("---- P3: scores")
    a(f"s_waitcnt vmcnt({4 + L2PF + PFF})")
    for ks in range(4):
        a.ds(f"ds_read_b128 v[{Q_OP+4*ks}:{Q_OP+4*ks+3}], v{V_QR} offset:{64*ks}", f"q{ks}")
    for ks in range(2):
        a.ds(f"ds_read_b128 v[{A_MEM+4*ks}:{A_MEM+4*ks+3}], v{V_KR} offset:{64*ks}", f"km{ks}")
    a(f"v_add_u32 v21, s{S_W64}, v{V_KR}")
    a.ds(f"ds_read_b128 v[{ACC_K1}:{ACC_K1+3}], v21", "kmo")
    vstep(2); vstep(3)
    for ks in range(2, 4):
        a.ds(f"ds_read_b128 v[{A_MEM+4*ks}:{A_MEM+4*ks+3}], v{V_KR} offset:{64*ks}", f"km{ks}")
    lab = f"{uid}_tf"
    a(f"s_cmp_eq_u32 s{S_S}, 63")
    a(f"s_cbranch_scc1 {lab}_skip")
    a("v_cmp_eq_u32 vcc, 0, v22")
    a(f"s_cbranch_vccnz {lab}_slow")
    a.label(lab + "_ok")
    def tail0(lab=lab):
        a.label(lab + "_slow")
        wait_flag_T(a, uid + "slow")
        a(f"s_branch {lab}_ok")
    tails.append(tail0)
    if not nodma: dma_kx(a)
    a.label(lab + "_skip")
    a.vm = []
    X0, X1, MM = ACC_Q0, ACC_Q1, ACC_K0
    for ks in range(4):
        a.ds_wait(f"q{ks}")
        c0 = "0" if ks == 0 else f"v[{X0}:{X0+3}]"
        c1 = "0" if ks == 0 else f"v[{X1}:{X1+3}]"
        a(f"v_mfma_f32_16x16x32_bf16 v[{X0}:{X0+3}], v[{KX_OP+4*ks}:{KX_OP+4*ks+3}], v[{Q_OP+4*ks}:{Q_OP+4*ks+3}], {c0}")
        a(f"v_mfma_f32_16x16x32_bf16 v[{X1}:{X1+3}], v[{KX_OP+16+4*ks}:{KX_OP+16+4*ks+3}], v[{Q_OP+4*ks}:{Q_OP+4*ks+3}], {c1}")
    for ks in range(4):
        a.ds_wait(f"km{ks}")
        c = "0" if ks == 0 else f"v[{MM}:{MM+3}]"
        a(f"v_mfma_f32_16x16x32_bf16 v[{MM}:{MM+3}], v[{A_MEM+4*ks}:{A_MEM+4*ks+3}], v[{Q_OP+4*ks}:{Q_OP+4*ks+3}], {c}")
    a(f"s_waitcnt vmcnt({4 + L2PF + PFF})")
    for t in range(2):
        for hh in range(2):
            r = KX_OP + 8 * t + 4 * hh
            a.ds(f"ds_read_b64 v[{r}:{r+1}], v{V_VXR} offset:{1024*t + 8*hh}", "vx")
    vstep(4)
    SL = [112, 120, 80, 88, 96, 104, 40, 48]
    def wo_read(i, slot, halves=(0, 1)):
        tt, ks = i // 2, i % 2
        vb = V_WO0 if ks == 0 else V_WO1
        for half in halves:
            r = SL[slot] + 4 * half
            a.ds(f"ds_read_b128 v[{r}:{r+3}], v{vb} offset:{half*32768 + tt*1024}", f"F{i}")
    stamp(a, 3, stamps and not probe)
    a.c("---- softmax")
    for r in range(4):
        a(f"v_cndmask_b32 v{X0+r}, v{X0+r}, v{X1+r}, s[{S_HI8}:{S_HI8+1}]")
    def vhalf(ks, t):
        A = A_MEM + 4 * ks
        smf(a, ACC_V0 if t == 0 else ACC_V1, A, 'v', WV + t * 64 + ks * 8)
    a(f"v_cndmask_b32 v{MM}, v{MM}, v{MM+1}, s[{S_HI8}:{S_HI8+1}]")
    a(f"v_max3_f32 v20, v{X0}, v{X0+1}, v{X0+2}")
    a(f"v_max3_f32 v20, v20, v{X0+3}, v{MM}")
    vhalf(5, 0); a("s_nop 0")
    a("v_max_f32_dpp v20, v20, v20 row_ror:8 row_mask:0xf bank_mask:0xf")
    a("v_mov_b32 v21, v20")
    vhalf(5, 1); a("s_nop 0")
    a("v_permlane16_swap_b32 v20, v21")
    a("v_max_f32 v20, v20, v21")
    a("v_mov_b32 v21, v20")
    vhalf(6, 0); a("s_nop 0")
    a("v_permlane32_swap_b32 v20, v21")
    a("v_max_f32 v20, v20, v21")
    a(f"v_mul_f32 v20, s{S_C}, v20")
    vhalf(6, 1)
    for i, r in enumerate((X0, X0+1, X0+2, X0+3, MM)):
        a(f"v_fma_f32 v{r}, v{r}, s{S_C}, -v20")
        if i == 1: vhalf(7, 0)
        if i == 3: vhalf(7, 1)
    ex = (X0, X0+1, X0+2, X0+3, MM)
    for i, r in enumerate(ex):
        a(f"v_exp_f32 v{r}, v{r}")
        if i < 4: wo_read(i, i, halves=(0,))
    for i in range(4): wo_read(i, i, halves=(1,))
    for t, acc in ((0, ACC_V0), (1, ACC_V1)):
        a(f"v_pk_add_f32 v[{acc}:{acc+1}], v[{acc}:{acc+1}], v[{acc+2}:{acc+3}]")
    P = X1
    a(f"v_cvt_pk_bf16_f32 v{P+2}, v{MM}, 0")
    a(f"v_cvt_pk_bf16_f32 v{P}, v{X0}, v{X0+1}")
    a(f"v_cvt_pk_bf16_f32 v{P+1}, v{X0+2}, v{X0+3}")
    a(f"v_mov_b32 v{P+3}, 0")
    a(f"v_lshlrev_b32 v{P+2}, v{V_SH}, v{P+2}")
    a.ds_wait("vx")
    for t, acc in ((0, ACC_V0), (1, ACC_V1)):
        r = KX_OP + 8 * t
        a(f"v_cvt_pk_bf16_f32 v{r+2}, v{acc}, v{acc+1}")
        a(f"v_cvt_pk_bf16_f32 v{r+6}, v{acc}, v{acc+1}")
    stamp(a, 4, stamps and not probe)
    a.c("---- PV")
    Dq = A_MEM
    a("s_nop 0")
    for t in range(2):
        for hh in range(2):
            r = KX_OP + 8 * t + 4 * hh
            d = Dq + 8 * t + 4 * hh
            a(f"v_mfma_f32_16x16x32_bf16 v[{d}:{d+3}], v[{r}:{r+3}], v[{P}:{P+3}], 0")
    a.ds_wait("kmo")
    a(f"s_mov_b64 vcc, s[{S_NDUP}:{S_NDUP+1}]")
    KQ = ACC_K1
    a(f"v_cndmask_b32_dpp v{MSGQ}, v{KX_OP+2}, v{KQ}, vcc row_shr:2 row_mask:0xf bank_mask:0xf bound_ctrl:0")
    a(f"v_cndmask_b32_dpp v{MSGQ+1}, v{KX_OP+10}, v{KQ+1}, vcc row_shr:2 row_mask:0xf bank_mask:0xf bound_ctrl:0")
    a(f"v_cndmask_b32 v{MSGQ+2}, v{KX_OP+2}, v{KQ+2}, vcc")
    a(f"v_cndmask_b32 v{MSGQ+3}, v{KX_OP+10}, v{KQ+3}, vcc")
    a(f"s_cmp_eq_u32 s{S_S}, 63")
    a(f"s_cbranch_scc1 {uid}_last")
    a(f"v_add_f32 v20, v{X0}, v{X0+1}")
    a(f"v_add_f32 v21, v{X0+2}, v{X0+3}")
    a(f"v_add_f32 v20, v20, v{MM}")
    a(f"v_add_f32 v20, v20, v21")
    wo_read(6, 6)
    a("v_add_f32_dpp v20, v20, v20 row_ror:8 row_mask:0xf bank_mask:0xf")
    a("v_mov_b32 v21, v20")
    wo_read(7, 7)
    a("v_permlane16_swap_b32 v20, v21")
    a("v_add_f32 v20, v20, v21")
    a("v_mov_b32 v21, v20")
    wo_read(4, 4)
    a("v_permlane32_swap_b32 v20, v21")
    a("v_add_f32 v20, v20, v21")
    a("v_rcp_f32 v20, v20")
    wo_read(5, 5)
    for t in range(2):
        for r in range(4):
            d1 = Dq + 8 * t + r; d2 = d1 + 4
            a(f"v_add_f32_dpp v{d1}, v{d2}, v{d1} row_ror:8 row_mask:0xf bank_mask:0xf")
    a("v_mov_b32 v21, v20")
    for t in range(2):
        for r in (0, 2):
            d1 = Dq + 8 * t + r
            a(f"v_pk_mul_f32 v[{d1}:{d1+1}], v[{d1}:{d1+1}], v[20:21]")
    a(f"s_mov_b64 exec, s[{S_LO8}:{S_LO8+1}]")
    for t in range(2):
        for rp in range(2):
            d1 = Dq + 8 * t + 2 * rp
            a(f"v_cvt_pk_bf16_f32 v{d1}, v{d1}, v{d1+1}")
            a.ds(f"ds_write_b32 v{V_OW}, v{d1} offset:{4*t + 32*rp}", "ow")
    a("s_mov_b64 exec, -1")
    WACC = [56, 60, 64, 68, 72, 76, 24, 28]
    for r in range(56, 80, 2):
        a(f"v_mov_b64 v[{r}:{r+1}], 0")
    a.ds_wait("ow")
    a("s_barrier")
    stamp(a, 5, stamps and not probe)
    a.c("---- P5: output projection")
    OOP = 32
    for ks in range(2):
        a.ds(f"ds_read_b128 v[{OOP+4*ks}:{OOP+4*ks+3}], v{V_L16} offset:{L_O-L_SM + ks*1024}", f"o{ks}")
    for r in range(24, 32, 2):
        a(f"v_mov_b64 v[{r}:{r+1}], 0")
    a.ds_wait("o1")
    def wo_epi(stg):
        base = WACC[4*stg]
        for r in range(4):
            A_ = WACC[4*stg + r]
            a(f"v_pk_add_f32 v[{A_}:{A_+1}], v[{A_}:{A_+1}], v[{A_+2}:{A_+3}]")
        mq = MSG[stg]
        for r in range(4):
            A_ = WACC[4*stg + r]
            a(f"v_cvt_pk_bf16_f32 v{mq+r}, v{A_}, v{A_+1}")
        a(f"v_bfi_b32 v{mq}, 1, s{S_TAG}, v{mq}")
        a.vmem(f"buffer_store_dwordx4 v[{mq}:{mq+3}], v{V_PST}, {WS}, s{S_PS0+stg} offen {st}", "pst")
    MSG = [56, 72]
    for i in range(16):
        tt, ks = i // 2, i % 2
        slot = i % 8
        a.ds_wait(f"F{i}")
        smf(a, WACC[tt], OOP + 4 * ks, 'v', SL[slot])
        if i + 8 < 16 and not NOSTREAM:
            wo_read(i + 8, slot)
        if i == 9: wo_epi(0)
    SEL, RD = 80, 84
    mq = MSG[1]
    for r in range(3):
        A_ = WACC[4 + r]
        a(f"v_pk_add_f32 v[{A_}:{A_+1}], v[{A_}:{A_+1}], v[{A_+2}:{A_+3}]")
    for r in range(3):
        A_ = WACC[4 + r]
        a(f"v_cvt_pk_bf16_f32 v{mq+r}, v{A_}, v{A_+1}")
    a(f"v_bfi_b32 v{mq}, 1, s{S_TAG}, v{mq}")
    a.ds(f"ds_read_b128 v[{SEL}:{SEL+3}], v{V_L16} offset:{L_SEL - L_SM}", "sel")
    A_ = WACC[7]
    a(f"v_pk_add_f32 v[{A_}:{A_+1}], v[{A_}:{A_+1}], v[{A_+2}:{A_+3}]")
    a(f"v_cvt_pk_bf16_f32 v{mq+3}, v{A_}, v{A_+1}")
    a.vmem(f"buffer_store_dwordx4 v[{mq}:{mq+3}], v{V_PST}, {WS}, s{S_PS0+1} offen {st}", "pst")
    stamp(a, 0 if probe else 6, stamps)
    a.c("---- P6: reduce")
    INA, INB0, INB1 = 40, 44, 48
    def in_load(u, r):
        a(f"buffer_load_dwordx4 v[{r}:{r+3}], v{V_INR}, {WS}, s{S_IN0+u} offen {LD}")
    def tagtest(r):
        a(f"v_xor_b32 v20, s{S_TAG}, v{r}")
        a(f"v_and_b32 v20, 1, v20")
        a("v_cmp_ne_u32 vcc, 0, v20")
    ring_scalars(a)
    for r in range(ACC_Q0, ACC_V1 + 4, 2):
        a(f"v_mov_b64 v[{r}:{r+1}], 0")
    a("s_waitcnt vmcnt(0)")
    if "b1" in BAR: a("s_barrier")
    if probe: stamp(a, 1, True)
    lab = f"{uid}_in"
    def both(rA, rB):
        in_load(0, rA); in_load(1, rB)
    def test2(rA, rB):
        a(f"v_bitop3_b32 v20, v{rA}, v{rB}, s{S_TAG} bitop3:0x7E")
        a(f"v_and_b32 v20, 1, v20")
        a("v_cmp_ne_u32 vcc, 0, v20")
    def red(rA, rB):
        a(f"v_mfma_f32_16x16x32_bf16 v[{RD}:{RD+3}], v[{rA}:{rA+3}], v[{SEL}:{SEL+3}], 0")
        a(f"v_mfma_f32_16x16x32_bf16 v[{RD}:{RD+3}], v[{rB}:{rB+3}], v[{SEL}:{SEL+3}], v[{RD}:{RD+3}]")
    A0, B0, A1, B1 = 40, 44, 48, 52
    both(A0, B0)
    a.ds_wait("sel")
    if HOP1_DEPTH == 1:
        a("s_waitcnt vmcnt(0)")
        test2(A0, B0)
        a(f"s_cbranch_vccz {lab}_ok0")
        a.label(lab + "_retry")
        a("s_mov_b64 exec, vcc")
        both(A0, B0)
        if probe: a(f"s_add_u32 s85, s85, 1")
        timeout_check(a, lab + "_ok0")
        a("s_waitcnt vmcnt(0)")
        test2(A0, B0)
        a(f"s_cbranch_vccnz {lab}_retry")
        a.label(lab + "_ok0")
        a("s_mov_b64 exec, -1")
        a("s_nop 0")
        red(A0, B0)
    else:
        a.label(lab)
        both(A1, B1)
        a("s_waitcnt vmcnt(2)")
        test2(A0, B0)
        a(f"s_cbranch_vccz {lab}_ok0")
        timeout_check(a, lab + "_ok0")
        if probe: a(f"s_add_u32 s85, s85, 1")
        both(A0, B0)
        a("s_waitcnt vmcnt(2)")
        test2(A1, B1)
        a(f"s_cbranch_vccz {lab}_ok1")
        if probe: a(f"s_add_u32 s85, s85, 1")
        a(f"s_branch {lab}")
        a.label(lab + "_ok1")
        red(A1, B1)
        a(f"s_branch {lab}_done")
        a.label(lab + "_ok0")
        red(A0, B0)
        a.label(lab + "_done")
    if probe:
        stamp(a, 2, True); stamp(a, 3, True); stamp(a, 4, True); stamp(a, 5, True)
    a.vm = []
    a.nops(8)
    a(f"v_permlane32_swap_b32 v{RD}, v{RD+2}")
    a(f"v_permlane32_swap_b32 v{RD+1}, v{RD+3}")
    a(f"v_add_f32 v{RD}, v{RD}, v{RD+2}")
    a(f"v_add_f32 v{RD+1}, v{RD+1}, v{RD+3}")
    a("s_nop 1")
    a(f"v_permlane16_swap_b32 v{RD}, v{RD+1}")
    a(f"v_add_f32 v{RD}, v{RD}, v{RD+1}")
    a(f"v_mov_b32 v{RD+1}, v{RD}")
    a("s_nop 1")
    a(f"v_permlane16_swap_b32 v{RD}, v{RD+1}")
    a(f"v_cvt_pk_bf16_f32 v{RD}, v{RD}, v{RD+1}")
    a(f"s_mov_b64 exec, s[{S_PUBM}:{S_PUBM+1}]")
    a(f"buffer_store_dword v{RD}, v{V_PUB}, {WS}, s{S_PUBS} offen {st}")
    a("s_mov_b64 exec, -1")
    stamp(a, 6 if probe else 7, stamps)
    a.c("---- P0: receive mem(s+1)")
    MP0, MP1 = 80, 88
    lab = f"{uid}_mp"
    def mp_load(r):
        a(f"buffer_load_dwordx4 v[{r}:{r+3}], v{V_MP}, {WS}, s{S_PUBS} offen {LD}")
        a(f"buffer_load_dwordx4 v[{r+4}:{r+7}], v{V_MP}, {WS}, s{S_PUBS} offen offset:1024 {LD}")
    def mp_test(r):
        a(f"v_max3_u32 v20, v{r}, v{r+1}, v{r+2}")
        a(f"v_max3_u32 v21, v{r+3}, v{r+4}, v{r+5}")
        a(f"v_max3_u32 v20, v{r+6}, v{r+7}, v20")
        a(f"v_max_u32 v20, v20, v21")
        a("v_cmp_eq_u32 vcc, -1, v20")
    def mp_write(r):
        a(f"ds_write_b128 v{V_MW}, v[{r}:{r+3}]")
        a(f"ds_write_b128 v{V_MW}, v[{r+4}:{r+7}] offset:1024")
    a(f"s_add_u32 s{S_S}, s{S_S}, 1")
    a(f"s_add_u32 s{S_TFO}, s{S_TFO}, {32*16}")
    if not HOTKV: a(f"s_add_u32 s{S_KXO}, s{S_KXO}, {32*8192}")
    step_scalars(a)
    if HOP2_GATE: a("s_waitcnt vmcnt(0)")
    if "b2" in BAR: a("s_barrier")
    mp_load(MP0)
    if HOP2_DEPTH == 1:
        a("s_waitcnt vmcnt(0)")
        mp_test(MP0)
        a(f"s_cbranch_vccz {lab}_ok0")
        a.label(lab + "_retry")
        a("s_mov_b64 exec, vcc")
        mp_load(MP0)
        if probe: a(f"s_add_u32 s88, s88, 1")
        timeout_check(a, lab + "_ok0")
        a("s_waitcnt vmcnt(0)")
        mp_test(MP0)
        a(f"s_cbranch_vccnz {lab}_retry")
        a.label(lab + "_ok0")
        a("s_mov_b64 exec, -1")
        if probe: stamp(a, 7, True)
        mp_write(MP0)
    else:
        a.label(lab)
        mp_load(MP1)
        a("s_waitcnt vmcnt(2)")
        mp_test(MP0)
        a(f"s_cbranch_vccz {lab}_ok0")
        timeout_check(a, lab + "_ok0")
        if probe: a(f"s_add_u32 s88, s88, 1")
        mp_load(MP0)
        a("s_waitcnt vmcnt(2)")
        mp_test(MP1)
        a(f"s_cbranch_vccz {lab}_ok1")
        if probe: a(f"s_add_u32 s88, s88, 1")
        a(f"s_branch {lab}")
        a.label(lab + "_ok1")
        if probe: stamp(a, 7, True)
        mp_write(MP1)
        a(f"s_branch {lab}_done")
        a.label(lab + "_ok0")
        if probe: stamp(a, 7, True)
        mp_write(MP0)
        a.label(lab + "_done")
    a(f"v_bfe_u32 v23, v{V_L16}, 4, 2")
    a(f"v_lshlrev_b32 v23, 2, v23")
    a(f"buffer_load_dword v22, v23, {WS}, s{S_TFO} offen sc1")
    if not nodma: dma_vx(a)
    if not HOTKV: a(f"s_add_u32 s{S_VXO}, s{S_VXO}, {32*8192}")
    a(f"v_mov_b32 v21, -1")
    a(f"s_mov_b64 exec, s[{S_PUBM}:{S_PUBM+1}]")
    a(f"buffer_store_dword v21, v{V_PUB}, {WS}, s{S_RSTS} offen {st}")
    a(f"s_mov_b64 exec, -1")
    if not nopub: a(f"buffer_store_dwordx4 v[{MSGQ}:{MSGQ+3}], v{V_L16}, {WS}, s{S_KMO} offen sc1")
    a(f"s_add_u32 s{S_KMO}, s{S_KMO}, {32*4096}")
    a("s_waitcnt lgkmcnt(0)")
    a("s_barrier")
    if trace:
        a(f"s_memrealtime s[{S_STAMP+16}:{S_STAMP+17}]")
        a("s_memrealtime s[46:47]")
        a("s_waitcnt lgkmcnt(0)")
        skip = a.newlabel("trskip")
        a(f"s_cmp_lt_u32 s{S_S}, 20")
        a(f"s_cbranch_scc1 {skip}")
        a(f"s_cmp_ge_u32 s{S_S}, 28")
        a(f"s_cbranch_scc1 {skip}")
        a(f"s_lshl_b32 s{S_TMP}, s{S_H}, 2")
        a(f"s_add_u32 s{S_TMP}, s{S_TMP}, s{S_W}")
        a(f"s_lshl_b32 s{S_TMP}, s{S_TMP}, 3")
        a(f"s_add_u32 s{S_TMP}, s{S_TMP}, s{S_S}")
        a(f"s_sub_u32 s{S_TMP}, s{S_TMP}, 20")
        a(f"s_lshl_b32 s{S_TMP}, s{S_TMP}, 6")
        a(f"s_add_u32 s{S_TMP}, s{S_TMP}, {STAMP + 2*MB}")
        for i in range(9):
            a(f"v_mov_b32 v20, s{S_STAMP+2*i}")
            a(f"v_mov_b32 v21, {4*i}")
            a(f"buffer_store_dword v20, v21, {WS}, s{S_TMP} offen")
        a(f"v_mov_b32 v20, s46")
        a(f"v_mov_b32 v21, 36")
        a(f"buffer_store_dword v20, v21, {WS}, s{S_TMP} offen")
        a.label(skip)
    elif stamps:
        a(f"s_memtime s[{S_STAMP+16}:{S_STAMP+17}]")
        a("s_waitcnt lgkmcnt(0)")
        for i in range(8):
            a(f"s_sub_u32 s{S_TMP}, s{S_STAMP+2*i+2}, s{S_STAMP+2*i}")
            a(f"s_add_u32 s{S_ACC+i}, s{S_ACC+i}, s{S_TMP}")
    a(f"s_branch {uid}_step")
    for t_ in tails: t_()
    a.label(f"{uid}_last")
    a("s_waitcnt vmcnt(0)")
    a(f"buffer_store_dwordx4 v[{MSGQ}:{MSGQ+3}], v{V_L16}, {WS}, s{S_KMO} offen sc1")
    a("s_waitcnt vmcnt(0)")
    a(f"s_add_u32 s{S_KMO}, s{S_KMO}, {32*4096}")
    a(f"v_mov_b32 v20, 0")
    a(f"s_mov_b64 exec, 1")
    a(f"buffer_store_dword v20, v{V_L16}, {WS}, s{S_KMO} offen sc1")
    a(f"s_mov_b64 exec, -1")
    a("s_waitcnt vmcnt(0)")
```

```python
from common import *

XS = 1056
XBUF = 32 * XS
V_XR, V_L16, V_KO0, V_KO1, V_VO, V_HF, V_FL, V_FLD = 1, 2, 3, 4, 5, 6, 7, 8
XR = 24
AK, AV, AQ = 56, 72, 88
TO = 104
WQ, WK, WV = 0, 128, 128
S_S, S_HIN, S_HFO, S_KXO, S_VXO, S_QXO, S_TFO, S_QFO, S_PRE, S_BUF, S_QPEND, S_EARLY = 18, 19, 20, 21, 22, 23, 24, 25, 26, 27, 28, 29
S_KVPEND = 34
V_PT = 9
PRETOUCH = False
S_M0, S_M1 = 30, 32
S_TMP = 44

def role_T_prologue(a):
    a.c("===== T prologue =====")
    load_qkv_weights(a, [(KA_WQ, 'a', WQ), (KA_WK, 'a', WK), (KA_WV, 'v', WV)], tmp=24)
    n, g, t = 24, 25, 26
    a(f"v_and_b32 v{n}, 15, v0")
    a(f"v_lshrrev_b32 v{g}, 4, v0")
    a(f"v_mul_u32_u24 v{V_XR}, {XS}, v{n}")
    a(f"v_lshl_add_u32 v{V_XR}, v{g}, 4, v{V_XR}")
    a(f"v_lshlrev_b32 v{V_L16}, 4, v0")
    a(f"s_lshl_b32 s16, s{S_W}, 10")
    a(f"v_add_u32 v{V_KO0}, s16, v{V_L16}")
    a(f"v_add_u32 v{V_KO1}, 4096, v{V_KO0}")
    a(f"s_lshl_b32 s16, s{S_W}, 11")
    a(f"v_add_u32 v{V_VO}, s16, v{V_L16}")
    a(f"v_lshlrev_b32 v{V_HF}, 2, v0")
    a(f"s_mov_b32 s{S_M0}, -1")
    a(f"s_mov_b32 s{S_M0+1}, 0")
    a(f"s_mov_b32 s{S_M1}, 0")
    a(f"s_mov_b32 s{S_M1+1}, -1")
    a(f"s_mov_b32 s{S_EARLY}, 0")
    a(f"s_mov_b32 s{S_KVPEND}, 0")
    a(f"s_lshl_b32 s16, s{S_H}, 4")
    a(f"s_lshl_b32 s17, s{S_W}, 2")
    a(f"s_add_u32 s16, s16, s17")
    a(f"v_mov_b32 v{V_FL}, s16")
    if PRETOUCH:
        a(f"v_and_b32 v{n}, 7, v0")
        a(f"v_lshlrev_b32 v{V_PT}, 7, v{n}")
        a(f"v_bfe_u32 v{t}, v0, 3, 1")
        a(f"v_lshl_add_u32 v{V_PT}, v{t}, 12, v{V_PT}")
        a(f"s_lshl_b32 s16, s{S_W}, 10")
        a(f"v_add_u32 v{V_PT}, s16, v{V_PT}")
        a(f"v_and_b32 v{g}, 15, v0")
        a(f"v_lshlrev_b32 v{g}, 7, v{g}")
        a(f"s_lshl_b32 s16, s{S_W}, 11")
        a(f"v_add_u32 v{g}, s16, v{g}")
        a(f"v_lshrrev_b32 v{t}, 4, v0")
        a(f"v_cmp_eq_u32 vcc, 2, v{t}")
        a(f"s_nop 1")
        a(f"v_cndmask_b32 v{V_PT}, v{V_PT}, v{g}, vcc")
        a(f"v_and_b32 v{t}, 3, v{t}")
        a(f"v_cmp_gt_u32 vcc, 3, v{t}")
        a(f"s_nop 1")
        a(f"v_cndmask_b32 v{t}, 0, v{t}, vcc")
        a(f"v_mul_u32_u24 v{t}, {(KX - QX) >> 5}, v{t}")
        a(f"v_lshl_add_u32 v{V_PT}, v{t}, 5, v{V_PT}")
    a(f"s_lshl_b32 s16, s{S_L}, 1")
    a(f"s_add_u32 s16, s16, 1")
    a(f"s_mul_i32 s{S_HIN}, s16, {ROWS_J}")
    a(f"s_add_u32 s{S_HIN}, s{S_HIN}, {HB}")
    a(f"s_mul_i32 s{S_HFO}, s16, {HF_J}")
    a(f"s_add_u32 s{S_HFO}, s{S_HFO}, {HF}")
    a(f"s_mul_i32 s{S_KXO}, s{S_L}, {KX_L}")
    a(f"s_lshl_b32 s16, s{S_H}, 13")
    a(f"s_add_u32 s{S_KXO}, s{S_KXO}, s16")
    a(f"s_add_u32 s{S_VXO}, s{S_KXO}, {VX}")
    a(f"s_add_u32 s{S_QXO}, s{S_KXO}, {QX}")
    a(f"s_add_u32 s{S_KXO}, s{S_KXO}, {KX}")
    a(f"s_mul_i32 s{S_TFO}, s{S_L}, {TF_L}")
    a(f"s_add_u32 s{S_QFO}, s{S_TFO}, {QF}")
    a(f"s_add_u32 s{S_TFO}, s{S_TFO}, {TF}")
    a(f"s_mov_b32 s{S_S}, 0")
    a(f"s_mov_b32 s{S_BUF}, 0")
    a(f"s_mov_b32 s{S_QPEND}, 0")

def dma_rows(a, srow, sbuf, shift_rows=None):
    a(f"s_lshl_b32 s{S_TMP}, s{S_W}, 13")
    a(f"s_add_u32 s{S_TMP}, s{S_TMP}, s{srow}")
    a(f"s_mul_i32 s{S_TMP+1}, s{S_W}, {8*XS}")
    a(f"s_add_u32 s{S_TMP+1}, s{S_TMP+1}, s{sbuf}")
    for r in range(8):
        a(f"s_mov_b32 m0, s{S_TMP+1}")
        a(f"s_add_u32 s{S_TMP+1}, s{S_TMP+1}, {XS}")
        a(f"buffer_load_dwordx4 v{V_L16}, s[{S_WS}:{S_WS+3}], s{S_TMP} offen sc1 lds")
        a(f"s_add_u32 s{S_TMP}, s{S_TMP}, 1024")

def dma_row_units(srow, sbuf):
    u = [f"s_lshl_b32 s{S_TMP}, s{S_W}, 13\n  s_add_u32 s{S_TMP}, s{S_TMP}, s{srow}\n  s_mul_i32 s{S_TMP+1}, s{S_W}, {8*XS}\n  s_add_u32 s{S_TMP+1}, s{S_TMP+1}, s{sbuf}"]
    for r in range(8):
        u.append(f"s_mov_b32 m0, s{S_TMP+1}\n  s_add_u32 s{S_TMP+1}, s{S_TMP+1}, {XS}\n  buffer_load_dwordx4 v{V_L16}, s[{S_WS}:{S_WS+3}], s{S_TMP} offen sc1 lds\n  s_add_u32 s{S_TMP}, s{S_TMP}, 1024")
    return u

def flag_store(a, soff):
    a(f"v_mov_b32 v{V_FLD}, 1")
    a("s_mov_b64 exec, 1")
    a(f"buffer_store_dword v{V_FLD}, v{V_FL}, s[{S_WS}:{S_WS+3}], s{soff} offen sc1")
    a("s_mov_b64 exec, -1")


def hflag_wait(a, uid):
    WS = f"s[{S_WS}:{S_WS+3}]"
    lab = f"hfw_{uid}"
    a.label(lab)
    a(f"buffer_load_dword v20, v{V_HF}, {WS}, s{S_HFO} offen sc1")
    a("s_waitcnt vmcnt(0)")
    a(f"v_cmp_eq_u32 vcc, 0, v20")
    a(f"s_cmp_eq_u32 vcc_lo, 0")
    a(f"s_cbranch_scc1 {lab}_ok")
    a(f"s_sub_u32 s{S_TMO}, s{S_TMO}, 1")
    a(f"s_cbranch_scc1 {lab}_ok")
    backoff(a)
    a(f"s_branch {lab}")
    a.label(lab + "_ok")

def look(a):
    a("v_cmp_eq_u32 vcc, 0, v20")
    a("s_nop 0")
    a(f"s_cmp_eq_u32 vcc_hi, 0")
    a(f"s_cselect_b32 s{S_EARLY}, 1, 0")
    a(f"s_cmp_ge_u32 s{S_S}, 62")
    a(f"s_cselect_b32 s{S_EARLY}, 0, s{S_EARLY}")
    a(f"s_cmp_eq_u32 vcc_lo, 0")
    a(f"s_cselect_b32 s{S_TMP}, 1, 0")

def role_T_item(a, uid, early, st):
    WS = f"s[{S_WS}:{S_WS+3}]"
    a.lg = []; a.vm = []
    def xread(ks, slot):
        r = XR + 8 * slot
        a.ds(f"ds_read_b128 v[{r}:{r+3}], v{V_XR} offset:{64*ks}", f"x{ks}")
        a.ds(f"ds_read_b128 v[{r+4}:{r+7}], v{V_XR} offset:{16*XS + 64*ks}", f"x{ks}")
    def W(rf, base, t, ks):
        r = base + t * 64 + ks * 4
        return f"{rf}[{r}:{r+3}]"
    def mm(d, A, B, first):
        c = "0" if first else f"v[{d}:{d+3}]"
        a(f"v_mfma_f32_16x16x32_bf16 v[{d}:{d+3}], {A}, {B}, {c}")
    for ks in range(3): xread(ks, ks)
    if PRETOUCH:
        a(f"buffer_load_dword v21, v{V_PT}, {WS}, s{S_QXO} offen")
    DM = []
    if early:
        a(f"s_sub_u32 s{S_TMP+2}, {XBUF}, s{S_BUF}")
        DM = dma_row_units(S_HIN, S_TMP + 2)
    def xread1(ks, slot, tt):
        r = XR + 8 * slot + 4 * tt
        a.ds(f"ds_read_b128 v[{r}:{r+3}], v{V_XR} offset:{16*XS*tt + 64*ks}", f"x{ks}")
    a.ds_wait("x0")
    ndma = 0
    for ks in range(16):
        r = XR + 8 * (ks % 4)
        ms = []
        for t in range(2):
            for tt in range(2):
                ms.append((AK + 8*t + 4*tt, W('a', WK, t, ks), f"v[{r+4*tt}:{r+4*tt+3}]"))
        for t in range(2):
            for tt in range(2):
                ms.append((AV + 8*t + 4*tt, f"v[{r+4*tt}:{r+4*tt+3}]", W('v', WV, t, ks)))
        for i, (d, A, B) in enumerate(ms):
            mm(d, A, B, ks == 0)
            if i in (0, 1) and ks + 3 < 16: xread1(ks + 3, (ks + 3) % 4, i)
            if i == 3 and DM:
                u_ = DM.pop(0); a(u_)
                if "buffer_load" in u_: ndma += 1
            if i == 6 and ks + 1 < 16: a.ds_wait(f"x{ks+1}")
            if i == 7 and ks == 1:
                lab = f"{uid}_kvp"
                a(f"s_cmp_eq_u32 s{S_KVPEND}, 0")
                a(f"s_cbranch_scc1 {lab}")
                a(f"s_waitcnt vmcnt({2 + ndma + PRETOUCH})")
                a(f"s_sub_u32 s{S_TMP+3}, s{S_TFO}, {32*16}")
                flag_store(a, S_TMP + 3)
                import common
                if common.TRACE_ON:
                    a(f"s_sub_u32 s{S_TMP+3}, s{S_S}, 1"); trace(a, 11, S_TMP + 3)
                a(f"s_mov_b32 s{S_KVPEND}, 0")
                a.label(lab)
        if ks == 11:
            lab = f"{uid}_qf"
            a(f"s_cmp_eq_u32 s{S_QPEND}, 0")
            a(f"s_cbranch_scc1 {lab}")
            a(f"s_waitcnt vmcnt({8 if early else 0})")
            a(f"s_sub_u32 s{S_TMP+3}, s{S_QFO}, {32*16}")
            flag_store(a, S_TMP + 3)
            a.label(lab)
    assert not DM
    stamp(a, 1, st)
    a.lg = []
    a(f"buffer_load_dword v20, v{V_HF}, {WS}, s{S_HFO} offen sc1")
    for ks in range(3): xread(ks, ks)
    def cvt4(dst, accA, accB):
        return [f"v_cvt_pk_bf16_f32 v{dst}, v{accA}, v{accA+1}", f"v_cvt_pk_bf16_f32 v{dst+1}, v{accA+2}, v{accA+3}",
                f"v_cvt_pk_bf16_f32 v{dst+2}, v{accB}, v{accB+1}", f"v_cvt_pk_bf16_f32 v{dst+3}, v{accB+2}, v{accB+3}"]
    epi = []
    for tt in range(2):
        epi += cvt4(TO + 4*tt, AK + 4*tt, AK + 8 + 4*tt)
        epi.append(f"buffer_store_dwordx4 v[{TO+4*tt}:{TO+4*tt+3}], v{V_KO0 if tt == 0 else V_KO1}, {WS}, s{S_KXO} offen sc1")
    for t in range(2):
        epi += cvt4(TO + 8 + 4*t, AV + 8*t, AV + 8*t + 4)
        epi.append(f"buffer_store_dwordx4 v[{TO+8+4*t}:{TO+8+4*t+3}], v{V_VO}, {WS}, s{S_VXO} offen offset:{1024*t} sc1")
    a.ds_wait("x0")
    for ks in range(16):
        r = XR + 8 * (ks % 4)
        i = 0
        for t in range(2):
            for tt in range(2):
                mm(AQ + 8*t + 4*tt, W('a', WQ, t, ks), f"v[{r+4*tt}:{r+4*tt+3}]", ks == 0)
                if i in (0, 1) and ks + 3 < 16: xread1(ks + 3, (ks + 3) % 4, i)
                if ks >= 1 and epi and i in (1, 2, 3):
                    a(epi.pop(0))
                    if epi and epi[0].startswith("buffer"): a(epi.pop(0))
                elif DM and (i in (1, 3) or ks >= 13):
                    a(DM.pop(0))
                if i == 2 and ks + 1 < 16: a.ds_wait(f"x{ks+1}")
                i += 1
        if ks == 9:
            assert not epi
            stamp(a, 2, st)
            a("s_waitcnt vmcnt(4)")
            stamp(a, 3, st)
            look(a)
            if early:
                a(f"s_mov_b32 s{S_PRE}, 1")
            else:
                a(f"s_cmp_eq_u32 s{S_S}, 63")
                a(f"s_cselect_b32 s{S_PRE}, 0, s{S_TMP}")
                a(f"s_sub_u32 s{S_TMP+3}, s{S_HIN}, 32768")
                a(f"s_cmp_lg_u32 s{S_PRE}, 0")
                a(f"s_cselect_b32 s{S_TMP+3}, s{S_HIN}, s{S_TMP+3}")
                a(f"s_sub_u32 s{S_TMP+2}, {XBUF}, s{S_BUF}")
                DM = dma_row_units(S_TMP + 3, S_TMP + 2)
                a(DM.pop(0))
    for x in DM: a(x)
    stamp(a, 4, st)
    a.nops(6)
    for tt in range(2):
        for ins in cvt4(TO + 4*tt, AQ + 4*tt, AQ + 8 + 4*tt): a(ins)
        a(f"buffer_store_dwordx4 v[{TO+4*tt}:{TO+4*tt+3}], v{V_KO0 if tt == 0 else V_KO1}, {WS}, s{S_QXO} offen sc1")
    stamp(a, 5, st)
    a(f"s_mov_b32 s{S_KVPEND}, 1")
    stamp(a, 6, st)
    a(f"s_mov_b32 s{S_QPEND}, 1")
    a(f"s_cmp_eq_u32 s{S_S}, 63")
    a(f"s_cbranch_scc1 T_end")
    if not early:
        a(f"s_cmp_lg_u32 s{S_PRE}, 0")
        a(f"s_cbranch_scc1 {uid}_have")
        a(f"buffer_load_dword v20, v{V_HF}, {WS}, s{S_HFO} offen sc1")
        a("s_waitcnt vmcnt(3)")
        flag_store(a, S_TFO)
        trace(a, 11, S_S)
        a(f"s_mov_b32 s{S_KVPEND}, 0")
        a("s_waitcnt vmcnt(1)")
        a("v_cmp_eq_u32 vcc, 0, v20")
        a("s_nop 0")
        a("s_cmp_eq_u32 vcc_lo, 0")
        a(f"s_cbranch_scc1 {uid}_rdy")
        hflag_wait(a, uid + "1")
        a.label(f"{uid}_rdy")
        look(a)
        a(f"s_sub_u32 s{S_TMP+2}, {XBUF}, s{S_BUF}")
        dma_rows(a, S_HIN, S_TMP + 2)
        a("s_waitcnt vmcnt(0)")
        a(f"s_branch T_go")
        a.label(f"{uid}_have")
        a("s_waitcnt vmcnt(2)")
        a(f"s_branch T_go")

def role_T_main(a, uid="T", st=False):
    WS = f"s[{S_WS}:{S_WS+3}]"
    if st: stamps_init(a)
    hflag_wait(a, uid + "0")
    dma_rows(a, S_HIN, S_BUF)
    a("s_waitcnt vmcnt(0)")
    a("s_barrier")
    a.label(f"T_item")
    trace(a, 10, S_S)
    stamp(a, 0, st)
    a(f"s_add_u32 s{S_HFO}, s{S_HFO}, 128")
    a(f"s_add_u32 s{S_HIN}, s{S_HIN}, 32768")
    a(f"s_cmp_lg_u32 s{S_EARLY}, 0")
    a(f"s_cbranch_scc1 T_early")
    role_T_item(a, "Tl", False, st)
    a.label("T_early")
    role_T_item(a, "Te", True, st)
    a.label("T_go")
    stamp(a, 7, st)
    a(f"s_sub_u32 s{S_TMP+2}, {XBUF}, s{S_BUF}")
    a(f"s_sub_u32 s{S_TMP}, s{S_TMP+2}, s{S_BUF}")
    a(f"v_add_u32 v{V_XR}, s{S_TMP}, v{V_XR}")
    a(f"s_mov_b32 s{S_BUF}, s{S_TMP+2}")
    a(f"s_add_u32 s{S_S}, s{S_S}, 1")
    for sreg in (S_KXO, S_VXO, S_QXO):
        a(f"s_add_u32 s{sreg}, s{sreg}, {32*8192}")
    a(f"s_add_u32 s{S_TFO}, s{S_TFO}, {32*16}")
    a(f"s_add_u32 s{S_QFO}, s{S_QFO}, {32*16}")
    a("s_barrier")
    if st:
        stamp(a, 8); stamps_accumulate(a)
    a(f"s_branch T_item")
    a.label(f"T_end")
    a("s_waitcnt vmcnt(0)")
    flag_store(a, S_TFO)
    flag_store(a, S_QFO)
    a("s_waitcnt vmcnt(0)")
    if st:
        a(f"s_cmp_eq_u32 s{S_L}, 0")
        a(f"s_cbranch_scc0 {uid}_nost")
        stamps_store(a)
        a.label(f"{uid}_nost")
```

```python
import sys
from common import *
import role_R, role_T, role_TA, role_O, role_O16, role_Ao, role_Aq
opts = set(sys.argv[2:])
import common
common.TRACE_ON = "trace" in opts
for o_ in opts:
    if o_.startswith("bo="): common.BACKOFF = int(o_[3:])
role_R_L2PF = "pf" in opts
out = sys.argv[1]
NAME = "interleave_layers__sliding_block__memory_aug_recurrent_mem_tr__prompt"
role_R.L2PF = role_R_L2PF
role_T.PRETOUCH = 'pt' in opts
role_R.PFF = 'pff' in opts
for o_ in opts:
    if o_.startswith('pfd='): role_R.PF_DIST = int(o_[4:])
S_LOCAL = 100
S_TEAM = 99
TMO = 1 << 20

HEADER = f"""; Sliding-window attention / recurrent-memory transformer stack, two launches:
;   {NAME}_kernel : persistent dataflow kernel, one workgroup per CU, one role per group of 32 workgroups
; @launch kernel=prep_kernel grid=(256,1,1) block=(256,1,1) lds=0
; @launch kernel={NAME}_kernel grid=(256,1,1) block=(256,1,1) lds=163840
"""

def prep_kernel(a):
    name = "prep_kernel"
    a(kernel_header(name))
    a("s_cmp_ge_u32 s2, 256")
    a("s_cbranch_scc1 prep_exit")
    srd_from_kernarg(a, S_WS, KA_WS, WS_BYTES)
    srd_from_kernarg(a, S_T0, KA_AX, S * D * 2)
    WS = f"s[{S_WS}:{S_WS+3}]"
    a("v_lshrrev_b32 v1, 6, v0")
    a("s_nop 0")
    a(f"v_readfirstlane_b32 s{S_W}, v1")
    a("v_and_b32 v2, 63, v0")
    a("v_lshlrev_b32 v3, 4, v2")
    a("s_lshl_b32 s16, s2, 2")
    a(f"s_add_u32 s16, s16, s{S_W}")
    a("s_lshl_b32 s16, s16, 11")
    a(f"buffer_load_dwordx4 v[16:19], v3, s[{S_T0}:{S_T0+3}], s16 offen")
    a(f"buffer_load_dwordx4 v[20:23], v3, s[{S_T0}:{S_T0+3}], s16 offen offset:1024")
    if "touch" in opts:
        a("v_lshlrev_b32 v6, 20, v0")
        a(f"buffer_load_dword v7, v6, {WS}, 0 offen")
        for k, ka in enumerate((KA_WQ, KA_WK, KA_WV, KA_WO)):
            srd_from_kernarg(a, 24 + 4 * k, ka, D * H * DH * 2)
            a(f"buffer_load_dword v{60 + k}, v6, s[{24 + 4*k}:{27 + 4*k}], 0 offen")
    a("v_lshlrev_b32 v4, 4, v0")
    for r in range(8, 12): a(f"v_mov_b32 v{r}, -1")
    for r in range(12, 16): a(f"v_mov_b32 v{r}, 0")
    assert FF_END == 3 * MB
    a("s_lshl_b32 s17, s2, 12")
    for k in range(3):
        a(f"s_add_u32 s18, s17, {k * MB}")
        a(f"buffer_store_dwordx4 v[8:11], v4, {WS}, s18 offen")
    nfl = (FLAGS_END - FLAGS) // 4096
    a(f"s_cmp_ge_u32 s2, {nfl}")
    a("s_cbranch_scc1 prep_nofl")
    a(f"s_add_u32 s18, s17, {FLAGS}")
    a(f"buffer_store_dwordx4 v[12:15], v4, {WS}, s18 offen")
    a.label("prep_nofl")
    nmark = 2 * 66 * 32 * 4
    a("s_lshl_b32 s18, s2, 8")
    a("v_add_u32 v5, s18, v0")
    a(f"v_cmp_gt_u32 vcc, {nmark}, v5")
    a("s_and_saveexec_b64 s[20:21], vcc")
    a("s_cbranch_execz prep_nomark")
    a("v_lshlrev_b32 v5, 10, v5")
    a(f"s_mov_b32 s18, {KM}")
    a(f"buffer_store_dword v8, v5, {WS}, s18 offen")
    a.label("prep_nomark")
    a("s_mov_b64 exec, s[20:21]")
    a("s_waitcnt vmcnt(0)")
    def ln_only(x, XR, Y, T):
        for k in range(4):
            x(f"v_lshlrev_b32 v{Y+2*k}, 16, v{XR+k}")
            x(f"v_and_b32 v{Y+2*k+1}, 0xffff0000, v{XR+k}")
        m, t = T + 4, T + 5
        x(f"v_pk_add_f32 v[{T}:{T+1}], v[{Y}:{Y+1}], v[{Y+2}:{Y+3}]")
        x(f"v_pk_add_f32 v[{T+2}:{T+3}], v[{Y+4}:{Y+5}], v[{Y+6}:{Y+7}]")
        x(f"v_pk_add_f32 v[{T}:{T+1}], v[{T}:{T+1}], v[{T+2}:{T+3}]")
        x(f"v_add_f32 v{m}, v{T}, v{T+1}")
        wave_allreduce_add(x, m, t)
        x(f"v_mul_f32 v{m}, 0xbb000000, v{m}")
        x(f"v_mov_b32 v{t}, v{m}")
        for k in range(4):
            x(f"v_pk_add_f32 v[{Y+2*k}:{Y+2*k+1}], v[{Y+2*k}:{Y+2*k+1}], v[{m}:{t}]")
        x(f"v_pk_mul_f32 v[{T}:{T+1}], v[{Y}:{Y+1}], v[{Y}:{Y+1}]")
        for k in range(1, 4):
            x(f"v_pk_fma_f32 v[{T}:{T+1}], v[{Y+2*k}:{Y+2*k+1}], v[{Y+2*k}:{Y+2*k+1}], v[{T}:{T+1}]")
        s_, t2 = T + 6, T + 7
        x(f"v_add_f32 v{s_}, v{T}, v{T+1}")
        wave_allreduce_add(x, s_, t2)
        x(f"v_mov_b32 v{t2}, 0x3727c5ac")
        x(f"v_fmac_f32 v{t2}, 0x3b000000, v{s_}")
        x(f"v_rsq_f32 v{s_}, v{t2}")
        x("s_nop 0")
        x(f"v_mov_b32 v{t2}, v{s_}")
        for k in range(4):
            x(f"v_pk_mul_f32 v[{Y+2*k}:{Y+2*k+1}], v[{Y+2*k}:{Y+2*k+1}], v[{s_}:{t2}]")
        for k in range(4):
            x(f"v_cvt_pk_bf16_f32 v{T+k}, v{Y+2*k}, v{Y+2*k+1}")
    interleave2(a, lambda x: ln_only(x, 16, 24, 40), lambda x: ln_only(x, 20, 32, 52))
    a(f"s_add_u32 s16, s16, {HB}")
    a(f"buffer_store_dwordx4 v[40:43], v3, {WS}, s16 offen")
    a(f"buffer_store_dwordx4 v[52:55], v3, {WS}, s16 offen offset:1024")
    a("s_waitcnt vmcnt(0)")
    a.label("prep_exit")
    a("s_endpgm")

def census_wait(a, uid):
    lab = f"census_{uid}"
    srd_from_kernarg(a, S_T0, KA_DBG, 256)
    a("v_and_b32 v21, 7, v0")
    a("v_lshlrev_b32 v21, 4, v21")
    a.label(lab)
    a(f"buffer_load_dword v20, v21, s[{S_T0}:{S_T0+3}], 0 offen sc1")
    a("s_waitcnt vmcnt(0)")
    a("s_mov_b32 s16, 0")
    for k in range(8):
        a(f"v_readlane_b32 s17, v20, {k}")
        a("s_nop 0")
        a("s_add_u32 s16, s16, s17")
    a(f"s_cmp_ge_u32 s16, 256")
    a(f"s_cbranch_scc1 {lab}_ok")
    a(f"s_sub_u32 s{S_TMO}, s{S_TMO}, 1")
    a(f"s_cbranch_scc1 {lab}_ok")
    a(f"s_branch {lab}")
    a.label(lab + "_ok")

def mega_kernel(a):
    name = NAME + "_kernel"
    a(kernel_header(name))
    a("s_cmp_ge_u32 s2, 256")
    a("s_cbranch_scc1 L_exit")
    srd_from_kernarg(a, S_WS, KA_WS, WS_BYTES)
    srd_from_kernarg(a, S_T0, KA_DBG, 256)
    a(f"s_mov_b32 s{S_TMO}, {TMO}")
    a("s_getreg_b32 s20, hwreg(HW_REG_XCC_ID, 0, 4)")
    a("s_and_b32 s20, s20, 7")
    a("s_lshl_b32 s21, s20, 4")
    a("v_mov_b32 v1, s21")
    a("v_mov_b32 v2, 1")
    a("v_cmp_eq_u32 vcc, 0, v0")
    a("s_and_saveexec_b64 s[22:23], vcc")
    a("s_cbranch_execz L_noat")
    a(f"buffer_atomic_add v2, v1, s[{S_T0}:{S_T0+3}], 0 offen sc0")
    a("s_waitcnt vmcnt(0)")
    a("v_mov_b32 v1, 0")
    a("ds_write_b32 v1, v2")
    a("s_waitcnt lgkmcnt(0)")
    a.label("L_noat")
    a("s_mov_b64 exec, s[22:23]")
    a("s_barrier")
    a("v_mov_b32 v1, 0")
    a("ds_read_b32 v2, v1")
    a("s_waitcnt lgkmcnt(0)")
    a(f"v_readfirstlane_b32 s{S_H}, v2")
    a("v_lshrrev_b32 v1, 6, v0")
    a("s_nop 0")
    a(f"v_readfirstlane_b32 s{S_W}, v1")
    a("v_and_b32 v0, 63, v0")
    a(f"s_mov_b32 s{S_TEAM}, s20")
    a("s_barrier")
    a(f"s_cmp_lt_u32 s{S_H}, 32")
    a("s_cbranch_scc1 L_haveslot")
    census_wait(a, "ov")
    a(f"s_sub_u32 s18, s{S_H}, 32")
    for k in range(8):
        a(f"v_readlane_b32 s17, v20, {k}")
        a("s_nop 0")
        a("s_max_u32 s17, s17, 32")
        a("s_sub_u32 s17, s17, 32")
        a(f"s_cmp_lt_u32 {k}, s{S_TEAM}")
        a("s_cselect_b32 s17, s17, 0")
        a("s_add_u32 s18, s18, s17")
    a(f"s_mov_b32 s19, 0")
    for k in range(8):
        lab = f"L_vac{k}"
        a(f"v_readlane_b32 s17, v20, {k}")
        a("s_nop 0")
        a("s_min_u32 s17, s17, 32")
        a("s_sub_u32 s16, 32, s17")
        a("s_cmp_lg_u32 s19, 0")
        a(f"s_cbranch_scc1 {lab}")
        a("s_cmp_lt_u32 s18, s16")
        a(f"s_cbranch_scc0 {lab}_n")
        a(f"s_mov_b32 s{S_TEAM}, {k}")
        a(f"s_add_u32 s{S_H}, s17, s18")
        a("s_mov_b32 s19, 1")
        a(f"s_branch {lab}")
        a.label(lab + "_n")
        a("s_sub_u32 s18, s18, s16")
        a.label(lab)
    a("s_cmp_eq_u32 s19, 0")
    a("s_cbranch_scc1 L_exit")
    a.label("L_haveslot")
    if "mtouch" in opts:
        a(f"s_lshl_b32 s16, s{S_W}, 26")
        a("v_lshlrev_b32 v254, 20, v0")
        a(f"buffer_load_dword v255, v254, s[{S_WS}:{S_WS+3}], s16 offen")
    for t, lab in ((0, "J_R0"), (1, "J_R1"), (5, "J_O0"), (6, "J_O1")):
        a(f"s_cmp_eq_u32 s{S_TEAM}, {t}")
        a(f"s_cbranch_scc1 {lab}")
    a(f"s_sub_u32 s16, s{S_TEAM}, 2")
    a(f"s_cmp_eq_u32 s{S_TEAM}, 7")
    a(f"s_cselect_b32 s16, 3, s16")
    a(f"s_lshr_b32 s17, s{S_H}, 3")
    a(f"s_and_b32 s18, s{S_H}, 7")
    a(f"s_lshl_b32 s19, s16, 3")
    a(f"s_add_u32 s{S_H}, s19, s18")
    a(f"s_cmp_eq_u32 s17, 0")
    a(f"s_cbranch_scc1 J_T0")
    a(f"s_cmp_eq_u32 s17, 1")
    a(f"s_cbranch_scc1 J_T1")
    a(f"s_cmp_eq_u32 s17, 2")
    a(f"s_cbranch_scc1 J_Aq")
    a(f"s_lshl_b32 s18, s18, 2")
    a(f"s_add_u32 s{S_H}, s18, s16")
    a("s_branch X7_entry")
    for lab, layer, dst in (("J_R0", 0, "R_entry"), ("J_R1", 1, "R_entry"), ("J_O0", 0, "O_entry"), ("J_O1", 1, "X6_entry"),
                            ("J_T0", 0, "T_entry"), ("J_T1", 1, "T_entry"), ("J_Aq", 0, "Aq_entry")):
        a.label(lab)
        a(f"s_mov_b32 s{S_L}, {layer}")
        far_jump(a, dst)
    a.label("L_exit")
    a("s_endpgm")
    def local_flag(uid):
        census_wait(a, uid)
        a(f"v_readlane_b32 s17, v20, s{S_TEAM}")
        a("s_nop 0")
        a("s_cmp_ge_u32 s17, 32")
        a(f"s_cselect_b32 s{S_LOCAL}, 1, 0")
    st = "st" in opts
    a.label("R_entry")
    role_R.role_R_prologue(a)
    a(f"s_mov_b32 s{S_TEAM}, s{S_L}")
    local_flag("R")
    a(f"s_mov_b32 s{role_R.S_S}, 0")
    a(f"s_cmp_eq_u32 s{S_LOCAL}, 0")
    a("s_cbranch_scc1 R_nonlocal")
    if common.TRACE_ON:
        a("s_memtime s[86:87]"); a("s_memrealtime s[88:89]"); a("s_waitcnt lgkmcnt(0)")
    role_R.role_R_main(a, local=True, uid="Rl", stamps=("stR" in opts), probe=("probe" in opts))
    if "stR" in opts:
        a(f"s_cmp_eq_u32 s{S_L}, {1 if 'l1' in opts else 0}")
        a("s_cbranch_scc0 R_nost")
        stamps_store(a)
        a.label("R_nost")
    if common.TRACE_ON:
        a("s_memtime s[92:93]"); a("s_memrealtime s[94:95]"); a("s_waitcnt lgkmcnt(0)")
        a("s_sub_u32 s92, s92, s86"); a("s_sub_u32 s94, s94, s88")
        a("s_mov_b32 m0, 63"); a("v_writelane_b32 v20, s92, m0")
        a("s_mov_b32 m0, 62"); a("v_writelane_b32 v20, s94, m0")
        a("v_mov_b32 v17, v20")
    finish(a, "Rl", st)
    a.label("R_nonlocal")
    role_R.role_R_main(a, local=False, uid="Rn")
    a("s_endpgm")
    a.label("T_entry")
    role_T.role_T_prologue(a)
    if common.TRACE_ON:
        a("s_memtime s[86:87]"); a("s_memrealtime s[88:89]"); a("s_waitcnt lgkmcnt(0)")
    role_T.role_T_main(a, st=("stT" in opts))
    if common.TRACE_ON:
        a("s_memtime s[92:93]"); a("s_memrealtime s[94:95]"); a("s_waitcnt lgkmcnt(0)")
        a("s_sub_u32 s92, s92, s86"); a("s_sub_u32 s94, s94, s88")
        a("s_mov_b32 m0, 63"); a("v_writelane_b32 v12, s92, m0")
        a("s_mov_b32 m0, 62"); a("v_writelane_b32 v12, s94, m0")
    finish(a, "T", False)
    a.label("Aq_entry")
    role_Aq.role_Aq_prologue(a)
    role_Aq.role_Aq_main(a, st=st)
    finish(a, "Aq", False)
    a.label("O_entry")
    role_O.role_O_prologue(a)
    a(f"s_mov_b32 s{S_TEAM}, 5")
    local_flag("O")
    a(f"s_mov_b32 s{role_O.S_S}, 0")
    a(f"s_cmp_eq_u32 s{S_LOCAL}, 0")
    a("s_cbranch_scc1 O_l0n")
    role_O.role_O_main(a, 0, local=True, uid="O0l", st=("stO" in opts))
    a("s_barrier")
    role_O.role_O_phase2(a)
    role_O.role_O_main(a, 1, local=True, uid="O2l"); finish(a, "O0l", False)
    a.label("O_l0n")
    role_O.role_O_main(a, 0, local=False, uid="O0n")
    a("s_barrier")
    role_O.role_O_phase2(a)
    role_O.role_O_main(a, 1, local=False, uid="O2n"); a("s_endpgm")
    a.label("X6_entry")
    a(f"s_cmp_lt_u32 s{S_H}, 16")
    a("s_cbranch_scc1 O16_entry")
    a(f"s_sub_u32 s{S_H}, s{S_H}, 16")
    a("s_branch TA_entry")
    a.label("O16_entry")
    role_O16.role_O16_prologue(a)
    a(f"s_mov_b32 s{S_TEAM}, 6")
    local_flag("O16")
    a(f"s_mov_b32 s{role_O16.S_S}, 0")
    a(f"s_cmp_eq_u32 s{S_LOCAL}, 0")
    a("s_cbranch_scc1 O16_n")
    role_O16.role_O16_main(a, local=True, uid="O16l", st=("stO16" in opts)); finish(a, "O1l", False)
    a.label("O16_n")
    role_O16.role_O16_main(a, local=False, uid="O16n"); a("s_endpgm")
    a.label("X7_entry")
    a(f"s_mov_b32 s{S_L}, 0")
    a(f"s_cmp_lt_u32 s{S_H}, 16")
    a("s_cbranch_scc1 TA_entry")
    a(f"s_sub_u32 s{S_H}, s{S_H}, 16")
    role_Ao.role_Ao_prologue(a)
    role_Ao.role_Ao_main(a, st=st)
    finish(a, "Ao", False)
    a.label("TA_entry")
    role_TA.role_TA_prologue(a)
    role_TA.role_TA_main(a, 2, uid="TA", st=("stTA" in opts))
    finish(a, "TA", False)

def far_jump(a, lab):
    a(f"s_branch {lab}")

def finish(a, uid, st):
    if common.TRACE_ON:
        role, regs = {"Rl": (None, [0, 17]), "T": (None, [10, 11, 12]), "Aq": ("aq", [240, 241]), "O0l": (5, [9, 10, 11, 23]), "O1l": (6, [9, 10]),
                      "Ao": ("ao", [12, 13]), "TA": ("ta", [128, 129])}[uid]
        if uid == "Rl": a(f"s_mov_b32 s92, s{S_L}")
        elif uid == "T": a(f"s_add_u32 s92, s{S_L}, 2")
        elif uid == "Aq":
            a(f"s_lshr_b32 s92, s{S_H}, 4")
            a(f"s_mul_i32 s92, s92, 7")
            a(f"s_add_u32 s92, s92, 4")
            a(f"s_and_b32 s{S_H}, s{S_H}, 15")
        elif uid == "TA": a(f"s_add_u32 s92, s{S_L}, 7")
        elif uid == "Ao":
            a(f"s_lshr_b32 s92, s{S_H}, 3")
            a(f"s_add_u32 s92, s92, 9")
            a(f"s_and_b32 s{S_H}, s{S_H}, 7")
        else: a(f"s_mov_b32 s92, {role}")
        trace_dump(a, regs, 92)
    a("s_endpgm")

a = Asm()
a.L.append(HEADER.rstrip("\n"))
a('.amdgcn_target "amdgcn-amd-amdhsa--gfx950"')
a(".text")
prep_kernel(a)
mega_kernel(a)
a('.section .rodata,"a"')
a(".p2align 6")
a(kernel_desc("prep_kernel", vgpr=64, accum=64, sgpr=48))
a(".p2align 6")
a(kernel_desc(NAME + "_kernel"))
open(out, "w").write(a.text())
print(out, len(a.L), "lines", len(a.text()), "bytes")
```

```python
from asmlib import *
from layout import *

S_KA   = 0
S_WS   = 4
S_T0   = 8
S_W    = 12
S_H    = 13
S_L    = 14
S_TMO  = 15

def srd_from_kernarg(a, sreg, ka_off, nbytes):
    a(f"s_load_dwordx2 s[{sreg}:{sreg+1}], s[0:1], {ka_off}")
    a("s_waitcnt lgkmcnt(0)")
    a(f"s_mov_b32 s{sreg+2}, {nbytes}")
    a(f"s_mov_b32 s{sreg+3}, 0x20000")

def load_slabs(a, dests, tmp, row_shift=13, nbytes=D * H * DH * 2, base_sgpr=None):
    vA, vB, vR0, vR1, t0, t1 = range(tmp, tmp + 6)
    a(f"v_lshrrev_b32 v{t0}, 4, v0")
    a(f"v_and_b32 v{t1}, 15, v0")
    a(f"v_lshrrev_b32 v{t1}, 1, v{t1}")
    a(f"v_xor_b32 v{vA}, v{t1}, v{t0}")
    a(f"v_xor_b32 v{vB}, 4, v{vA}")
    a(f"v_lshlrev_b32 v{vA}, 5, v{vA}")
    a(f"v_lshlrev_b32 v{vB}, 5, v{vB}")
    a(f"v_lshlrev_b32 v{t0}, {row_shift}, v{t0}")
    a(f"v_and_b32 v{t1}, 1, v0")
    a(f"v_lshlrev_b32 v{t1}, 4, v{t1}")
    a(f"v_add3_u32 v{vA}, v{vA}, v{t0}, v{t1}")
    a(f"v_add3_u32 v{vB}, v{vB}, v{t0}, v{t1}")
    a(f"v_lshrrev_b32 v{t0}, 4, v0")
    a(f"v_bfe_u32 v{t1}, v0, 2, 2")
    a(f"v_lshlrev_b32 v{vR0}, 3, v{t0}")
    a(f"v_add_u32 v{vR0}, v{vR0}, v{t1}")
    a(f"v_lshlrev_b32 v{vR0}, 8, v{vR0}")
    a(f"v_and_b32 v{t0}, 1, v{t0}")
    a(f"v_lshl_add_u32 v{t1}, v{t0}, 2, v{t1}")
    a(f"v_bfe_u32 v{t0}, v0, 1, 1")
    a(f"s_lshl_b32 s16, s{S_W}, 1")
    a(f"v_add_u32 v{t0}, s16, v{t0}")
    a(f"v_xor_b32 v{t0}, v{t0}, v{t1}")
    a(f"v_lshl_add_u32 v{vR0}, v{t0}, 5, v{vR0}")
    a(f"v_and_b32 v{t0}, 1, v0")
    a(f"v_lshl_add_u32 v{vR0}, v{t0}, 4, v{vR0}")
    a(f"v_add_u32 v{vR1}, 0x10000, v{vR0}")
    for (ka, rf, base) in dests:
        srd_from_kernarg(a, S_T0, ka, nbytes)
        a(f"s_lshl_b32 s16, s{S_W}, {row_shift + 7}")
        if base_sgpr is None:
            a(f"s_lshl_b32 s17, s{S_H}, 8")
            a(f"s_add_u32 s16, s16, s17")
        else:
            a(f"s_add_u32 s16, s16, s{base_sgpr}")
        a(f"s_lshl_b32 s17, s{S_W}, 15")
        for j in range(32):
            a(f"s_mov_b32 m0, s17")
            v = vA if ((j >> 1) & 1) == 0 else vB
            a(f"s_add_u32 s17, s17, 1024")
            a(f"buffer_load_dwordx4 v{v}, s[{S_T0}:{S_T0+3}], s16 offen lds")
            a(f"s_add_u32 s16, s16, {4 << row_shift}")
        a("s_waitcnt vmcnt(0)")
        a("s_barrier")
        for t in range(2):
            for ks in range(16):
                for p in range(2):
                    off = ks * 8192 + p * 1024 + 8 * t
                    vb = vR0
                    if off >= 65536:
                        off -= 65536; vb = vR1
                    r = base + t * 64 + ks * 4 + 2 * p
                    dst = f"a[{r}:{r+1}]" if rf == 'a' else f"v[{r}:{r+1}]"
                    a(f"ds_read_b64_tr_b16 {dst}, v{vb} offset:{off}")
        a("s_waitcnt lgkmcnt(0)")
        a("s_barrier")

def load_qkv_weights(a, dests, tmp):
    load_slabs(a, dests, tmp)

BACKOFF = 24
def backoff(a):
    import common
    if common.BACKOFF: a(f"s_sleep {common.BACKOFF}")

def flag_wait(a, vdst, vaddr, soff, uid, nz_all=True):
    lab = f"fw_{uid}"
    a.label(lab)
    a(f"buffer_load_dword v{vdst}, v{vaddr}, s[{S_WS}:{S_WS+3}], s{soff} offen sc1")
    a("s_waitcnt vmcnt(0)")
    a(f"v_cmp_eq_u32 vcc, 0, v{vdst}")
    a(f"s_cbranch_vccz {lab}_ok")
    a(f"s_sub_u32 s{S_TMO}, s{S_TMO}, 1")
    a(f"s_cbranch_scc1 {lab}_ok")
    backoff(a)
    a(f"s_branch {lab}")
    a.label(lab + "_ok")

S_STAMP = 50
S_ACC = 68
def stamp(a, i, on=True):
    if on: a(f"s_memtime s[{S_STAMP+2*i}:{S_STAMP+2*i+1}]")
def stamps_init(a):
    for i in range(8): a(f"s_mov_b32 s{S_ACC+i}, 0")
def stamps_accumulate(a, n=8):
    a("s_waitcnt lgkmcnt(0)")
    for i in range(n):
        a(f"s_sub_u32 s98, s{S_STAMP+2*i+2}, s{S_STAMP+2*i}")
        a(f"s_add_u32 s{S_ACC+i}, s{S_ACC+i}, s98")
def stamps_store(a):
    a(f"s_lshl_b32 s44, s{S_H}, 2")
    a(f"s_add_u32 s44, s44, s{S_W}")
    a(f"s_lshl_b32 s44, s44, 5")
    a(f"s_add_u32 s44, s44, {STAMP}")
    for i in range(8):
        a(f"v_mov_b32 v20, s{S_ACC+i}")
        a(f"v_mov_b32 v21, {4*i}")
        a(f"buffer_store_dword v20, v21, s[{S_WS}:{S_WS+3}], s44 offen")
    a("s_waitcnt vmcnt(0)")

def wave_allreduce_add(a, v, t):
    a("s_nop 1")
    a(f"v_add_f32_dpp v{v}, v{v}, v{v} quad_perm:[1,0,3,2] row_mask:0xf bank_mask:0xf")
    a("s_nop 1")
    a(f"v_add_f32_dpp v{v}, v{v}, v{v} quad_perm:[2,3,0,1] row_mask:0xf bank_mask:0xf")
    a("s_nop 1")
    a(f"v_add_f32_dpp v{v}, v{v}, v{v} row_ror:4 row_mask:0xf bank_mask:0xf")
    a("s_nop 1")
    a(f"v_add_f32_dpp v{v}, v{v}, v{v} row_ror:8 row_mask:0xf bank_mask:0xf")
    a(f"v_mov_b32 v{t}, v{v}")
    a("s_nop 1")
    a(f"v_permlane16_swap_b32 v{v}, v{t}")
    a(f"v_add_f32 v{v}, v{v}, v{t}")
    a(f"v_mov_b32 v{t}, v{v}")
    a("s_nop 1")
    a(f"v_permlane32_swap_b32 v{v}, v{t}")
    a(f"v_add_f32 v{v}, v{v}, v{t}")

def row_finish(a, Y, XR, T, with_ln):
    for k in range(4):
        a(f"v_cvt_pk_bf16_f32 v{T+k}, v{Y+2*k}, v{Y+2*k+1}")
    for k in range(4):
        a(f"v_lshlrev_b32 v{Y+2*k}, 16, v{T+k}")
        a(f"v_and_b32 v{Y+2*k+1}, 0xffff0000, v{T+k}")
    for k in range(4):
        a(f"v_lshlrev_b32 v{T+4+2*k}, 16, v{XR+k}")
        a(f"v_and_b32 v{T+5+2*k}, 0xffff0000, v{XR+k}")
    for k in range(4):
        a(f"v_pk_add_f32 v[{Y+2*k}:{Y+2*k+1}], v[{Y+2*k}:{Y+2*k+1}], v[{T+4+2*k}:{T+5+2*k}]")
    for k in range(4):
        a(f"v_cvt_pk_bf16_f32 v{XR+k}, v{Y+2*k}, v{Y+2*k+1}")
    if not with_ln:
        return
    for k in range(4):
        a(f"v_lshlrev_b32 v{Y+2*k}, 16, v{XR+k}")
        a(f"v_and_b32 v{Y+2*k+1}, 0xffff0000, v{XR+k}")
    m, t = T + 4, T + 5
    a(f"v_pk_add_f32 v[{T}:{T+1}], v[{Y}:{Y+1}], v[{Y+2}:{Y+3}]")
    a(f"v_pk_add_f32 v[{T+2}:{T+3}], v[{Y+4}:{Y+5}], v[{Y+6}:{Y+7}]")
    a(f"v_pk_add_f32 v[{T}:{T+1}], v[{T}:{T+1}], v[{T+2}:{T+3}]")
    a(f"v_add_f32 v{m}, v{T}, v{T+1}")
    wave_allreduce_add(a, m, t)
    a(f"v_mul_f32 v{m}, 0xbb000000, v{m}")
    a(f"v_mov_b32 v{t}, v{m}")
    for k in range(4):
        a(f"v_pk_add_f32 v[{Y+2*k}:{Y+2*k+1}], v[{Y+2*k}:{Y+2*k+1}], v[{m}:{t}]")
    a(f"v_pk_mul_f32 v[{T}:{T+1}], v[{Y}:{Y+1}], v[{Y}:{Y+1}]")
    for k in range(1, 4):
        a(f"v_pk_fma_f32 v[{T}:{T+1}], v[{Y+2*k}:{Y+2*k+1}], v[{Y+2*k}:{Y+2*k+1}], v[{T}:{T+1}]")
    s, t2 = T + 6, T + 7
    a(f"v_add_f32 v{s}, v{T}, v{T+1}")
    wave_allreduce_add(a, s, t2)
    a(f"v_mov_b32 v{t2}, 0x3727c5ac")
    a(f"v_fmac_f32 v{t2}, 0x3b000000, v{s}")
    a(f"v_rsq_f32 v{s}, v{t2}")
    a("s_nop 0")
    a(f"v_mov_b32 v{t2}, v{s}")
    for k in range(4):
        a(f"v_pk_mul_f32 v[{Y+2*k}:{Y+2*k+1}], v[{Y+2*k}:{Y+2*k+1}], v[{s}:{t2}]")
    for k in range(4):
        a(f"v_cvt_pk_bf16_f32 v{T+k}, v{Y+2*k}, v{Y+2*k+1}")

def build_sel(a, dst, n, tmp):
    for r in range(4):
        a(f"v_mov_b32 v{dst+r}, 0")
        a(f"v_cmp_eq_u32 vcc, {2*r}, v{n}")
        a(f"v_mov_b32 v{tmp}, 0x3f80")
        a(f"s_nop 0")
        a(f"v_cndmask_b32 v{dst+r}, v{dst+r}, v{tmp}, vcc")
        a(f"v_cmp_eq_u32 vcc, {2*r+1}, v{n}")
        a(f"v_mov_b32 v{tmp}, 0x3f800000")
        a(f"s_nop 0")
        a(f"v_cndmask_b32 v{dst+r}, v{dst+r}, v{tmp}, vcc")

def interleave2(a, fa, fb):
    A, B = Asm(), Asm()
    fa(A); fb(B)
    assert len(A.L) == len(B.L)
    for x, y in zip(A.L, B.L):
        xs = x.strip()
        if xs.startswith("s_nop"):
            k = int(xs.split()[1])
            if k > 0: a(f"s_nop {k-1}")
        else:
            a(x); a(y)

def load_rowmajor_chunks(a, ka, nbytes, row0_sgpr, lds_base, nrows_per_wave, tmp):
    a(f"v_lshlrev_b32 v{tmp}, 4, v0")
    a(f"s_mul_i32 s17, s{S_W}, {nrows_per_wave * 1024}")
    a(f"s_lshl_b32 s16, s{row0_sgpr}, 10")
    a(f"s_add_u32 s16, s16, s17")
    a(f"s_add_u32 s17, s17, {lds_base}")
    for j in range(nrows_per_wave):
        key = (j & 3) + 4 * ((j >> 3) & 1)
        a(f"v_xor_b32 v{tmp+1}, {key << 5}, v{tmp}")
        a(f"s_mov_b32 m0, s17")
        a(f"s_add_u32 s17, s17, 1024")
        a(f"buffer_load_dwordx4 v{tmp+1}, s[{S_T0}:{S_T0+3}], s16 offen lds")
        a(f"s_add_u32 s16, s16, 1024")

TRACE_ON = False
TRACE_BASE = STAMP + 5 * MB
def trace(a, vreg, sitem):
    import common
    if not common.TRACE_ON: return
    a("s_memrealtime s[90:91]")
    a("s_waitcnt lgkmcnt(0)")
    a("s_mov_b32 s91, m0")
    a(f"s_mov_b32 m0, s{sitem}")
    a(f"v_writelane_b32 v{vreg}, s90, m0")
    a("s_mov_b32 m0, s91")
def trace_dump(a, vregs, role_expr_sgpr):
    import common
    if not common.TRACE_ON: return
    lab = a.newlabel("trd")
    a(f"s_cmp_lg_u32 s{S_W}, 0")
    a(f"s_cbranch_scc1 {lab}")
    a(f"s_lshl_b32 s91, s{role_expr_sgpr}, 5")
    a(f"s_add_u32 s91, s91, s{S_H}")
    a(f"s_lshl_b32 s91, s91, 10")
    a(f"s_add_u32 s91, s91, {TRACE_BASE}")
    a("v_mbcnt_lo_u32_b32 v20, -1, 0")
    a("v_mbcnt_hi_u32_b32 v20, -1, v20")
    a("v_lshlrev_b32 v20, 2, v20")
    for k, v in enumerate(vregs):
        a(f"buffer_store_dword v{v}, v20, s[{S_WS}:{S_WS+3}], s91 offen offset:{256*k}")
    a("s_waitcnt vmcnt(0)")
    a.label(lab)

TOUCH = False
def touch_pages(a, ranges, layer_sgpr=None, vt=(20, 21, 22, 23), wait=False):
    import common
    if not common.TOUCH: return
    v0_, v1_, v2_, v3_ = vt
    total = sum(r[2] for r in ranges); assert total <= 64
    a(f"v_mov_b32 v{v2_}, 0")
    first = 0
    for (off, lstride, n) in ranges:
        if layer_sgpr is not None and lstride:
            a(f"s_mul_i32 s16, s{layer_sgpr}, {lstride}")
            a(f"s_add_u32 s16, s16, {off}")
        else:
            a(f"s_mov_b32 s16, {off}")
        a(f"s_sub_u32 s16, s16, {first << 20}")
        a(f"v_lshlrev_b32 v{v0_}, 20, v0")
        a(f"v_add_u32 v{v0_}, s16, v{v0_}")
        a(f"v_cmp_le_u32 vcc, {first}, v0")
        a("s_nop 1")
        a(f"v_cndmask_b32 v{v2_}, v{v2_}, v{v0_}, vcc")
        first += n
    a(f"v_cmp_le_u32 vcc, {first}, v0")
    a(f"v_mov_b32 v{v0_}, {ranges[0][0]}")
    a("s_nop 0")
    a(f"v_cndmask_b32 v{v2_}, v{v2_}, v{v0_}, vcc")
    a(f"buffer_load_dword v{v3_}, v{v2_}, s[{S_WS}:{S_WS+3}], 0 offen")
    if wait: a("s_waitcnt vmcnt(0)")
```

```python
from common import *
from common import trace as ptrace

L_WO   = 0
L_SM   = 131072
L_MEM  = L_SM
L_KX   = L_SM + 8192
L_VX   = L_SM + 16384
L_Q    = L_SM + 24576
L_K    = L_Q + 2304
L_O    = L_K + 2304
L_SEL  = L_O + 2048
assert L_SEL + 1024 <= 163840
QS = 288

V_L16, V_WO0, V_WO1, V_QW, V_QR, V_KR, V_OW, V_VXR = 1, 2, 3, 4, 5, 6, 7, 8
V_IDX, V_MP, V_MW, V_PST, V_INR, V_PUB, V_SH = 9, 10, 11, 12, 13, 14, 15
MSGQ = 16
V_T = 20
A_MEM = 24
ACC_Q0, ACC_Q1, ACC_K0, ACC_K1, ACC_V0, ACC_V1 = 56, 60, 64, 68, 72, 76
Q_OP = 80
KX_OP = 96
WQ, WK = 0, 128
WV = 128
S_S, S_MEMS, S_TAG = 16, 17, 18
S_IN0 = 20
S_PS0 = 24
S_HI8, S_LO8, S_PUBM = 28, 30, 32
S_KXO, S_VXO, S_KMO, S_TFO = 34, 35, 36, 38
S_C = 40
S_PUBS, S_RSTS = 41, 42
S_TMP = 44
S_PB0 = 76
S_INB = 80
S_TFOK = 82
S_W64 = 83
S_PFD = 84
S_NDUP = 96
S_RINGB = 81
S_STAMP = 50
S_ACC = 68

def smf(a, acc, aop, wfile, wreg):
    w = f"a[{wreg}:{wreg+7}]" if wfile == 'a' else f"v[{wreg}:{wreg+7}]"
    a(f"v_smfmac_f32_16x16x64_bf16 v[{acc}:{acc+3}], v[{aop}:{aop+3}], {w}, v{V_IDX}")

def timeout_check(a, lab_fail_to):
    a(f"s_sub_u32 s{S_TMO}, s{S_TMO}, 1")
    a(f"s_cbranch_scc1 {lab_fail_to}")

def role_R_prologue(a):
    a.c("===== R prologue =====")
    load_qkv_weights(a, [(KA_WQ, 'a', WQ), (KA_WK, 'a', WK), (KA_WV, 'v', WV)], tmp=24)
    srd_from_kernarg(a, S_T0, KA_WO, H * DH * D * 2)
    a(f"v_lshlrev_b32 v24, 4, v0")
    a(f"s_lshl_b32 s16, s{S_H}, 17")
    a(f"s_lshl_b32 s17, s{S_W}, 15")
    a(f"s_add_u32 s16, s16, s17")
    a(f"s_add_u32 s17, s17, 32768")
    for j in range(32):
        key = (j & 3) + 4 * ((j >> 3) & 1)
        a(f"v_xor_b32 v25, {key << 5}, v24")
        a(f"s_mov_b32 m0, s17")
        a(f"s_add_u32 s17, s17, 1024")
        a(f"buffer_load_dwordx4 v25, s[{S_T0}:{S_T0+3}], s16 offen lds")
        a(f"s_add_u32 s16, s16, 1024")
    a("v_lshrrev_b32 v26, 4, v0")
    a("v_bfe_u32 v27, v0, 2, 2")
    a("v_lshl_add_u32 v28, v26, 3, v27")
    a("v_lshlrev_b32 v28, 10, v28")
    a("v_and_b32 v26, 1, v26")
    a("v_lshl_add_u32 v27, v26, 2, v27")
    a("v_lshl_add_u32 v28, v27, 5, v28")
    a("v_and_b32 v26, 3, v0")
    a("v_lshl_add_u32 v28, v26, 3, v28")
    a(f"s_lshl_b32 s16, s{S_W}, 8")
    a("v_add_u32 v28, s16, v28")
    a("v_add_u32 v28, 0x8000, v28")
    a(f"s_lshl_b32 s16, s{S_W}, 13")
    a("v_lshlrev_b32 v29, 4, v0")
    a("v_add_u32 v29, s16, v29")
    for tp in range(8):
        a(f"s_add_u32 s16, s{S_H}, {tp >> 2}")
        a(f"s_and_b32 s16, s16, 1")
        a(f"s_lshl_b32 s16, s16, 2")
        a(f"s_or_b32 s16, s16, {tp & 3}")
        a(f"s_lshl_b32 s{24 + tp}, s16, 5")
    a("s_waitcnt vmcnt(0)")
    a("s_barrier")
    for c in range(4):
        for tt in range(8):
            a(f"v_xor_b32 v30, s{24 + tt}, v28")
            for p in range(2):
                r = 32 + tt * 4 + 2 * p
                a(f"ds_read_b64_tr_b16 v[{r}:{r+1}], v30 offset:{p * 4096}")
        a("s_waitcnt lgkmcnt(0)")
        for tt in range(8):
            r = 32 + tt * 4
            a(f"ds_write_b128 v29, v[{r}:{r+3}] offset:{tt * 1024}")
        a("v_add_u32 v28, 0x8000, v28")
        a("v_add_u32 v29, 0x8000, v29")
        a("s_waitcnt lgkmcnt(0)")
        a("s_barrier")
    a.c("lane constants")
    n, g, t, u = 24, 25, 26, 27
    a(f"v_and_b32 v{n}, 15, v0")
    a(f"v_lshrrev_b32 v{g}, 4, v0")
    a(f"v_lshlrev_b32 v{V_L16}, 4, v0")
    a(f"s_lshl_b32 s16, s{S_W}, 13")
    a(f"v_add_u32 v{V_WO0}, s16, v{V_L16}")
    a(f"v_add_u32 v{V_WO1}, 0x10000, v{V_WO0}")
    a(f"s_lshl_b32 s16, s{S_W}, 11")
    a(f"v_add_u32 v{V_MP}, s16, v{V_L16}")
    a(f"v_add_u32 v{V_MW}, {L_MEM}, v{V_MP}")
    a(f"v_add_u32 v{V_VXR}, {L_VX}, v{V_MP}")
    a(f"v_add_u32 v{V_L16}, {L_SM}, v{V_L16}")
    a(f"v_mul_u32_u24 v{V_QW}, {QS}, v{g}")
    a(f"v_lshrrev_b32 v{t}, 2, v{n}")
    a(f"v_lshl_add_u32 v{V_QW}, v{t}, 4, v{V_QW}")
    a(f"v_and_b32 v{t}, 3, v{n}")
    a(f"v_lshl_add_u32 v{V_QW}, v{t}, 1, v{V_QW}")
    a(f"s_lshl_b32 s16, s{S_W}, 6")
    a(f"s_add_u32 s16, s16, {L_Q}")
    a(f"v_add_u32 v{V_QW}, s16, v{V_QW}")
    a(f"v_and_b32 v{t}, 7, v{n}")
    a(f"v_mul_u32_u24 v{V_QR}, {QS}, v{t}")
    a(f"v_lshl_add_u32 v{V_QR}, v{g}, 4, v{V_QR}")
    a(f"v_add_u32 v{V_QR}, {L_Q}, v{V_QR}")
    a(f"v_lshrrev_b32 v{t}, 2, v{n}")
    a(f"v_and_b32 v{u}, 1, v{n}")
    a(f"v_lshl_add_u32 v{t}, v{u}, 2, v{t}")
    a(f"v_mul_u32_u24 v{V_KR}, {QS}, v{t}")
    a(f"v_lshl_add_u32 v{V_KR}, v{g}, 4, v{V_KR}")
    a(f"v_add_u32 v{V_KR}, {L_K}, v{V_KR}")
    a(f"s_lshl_b32 s{S_W64}, s{S_W}, 6")
    a(f"v_lshrrev_b32 v{t}, 1, v{g}")
    a(f"s_and_b32 s16, s{S_W}, 1")
    a(f"s_lshl_b32 s16, s16, 1")
    a(f"v_add_u32 v{t}, s16, v{t}")
    a(f"v_lshlrev_b32 v{t}, 4, v{t}")
    a(f"v_and_b32 v{u}, 3, v{n}")
    a(f"v_lshl_add_u32 v{t}, v{u}, 2, v{t}")
    a(f"v_lshrrev_b32 v{u}, 2, v{n}")
    a(f"v_add_u32 v{t}, v{t}, v{u}")
    a(f"v_lshlrev_b32 v{V_OW}, 4, v{t}")
    a(f"v_and_b32 v{u}, 1, v{g}")
    a(f"v_lshl_add_u32 v{V_OW}, v{u}, 3, v{V_OW}")
    a(f"s_lshr_b32 s16, s{S_W}, 1")
    a(f"s_lshl_b32 s16, s16, 10")
    a(f"s_add_u32 s16, s16, {L_O}")
    a(f"v_add_u32 v{V_OW}, s16, v{V_OW}")
    a(f"v_bfe_u32 v{t}, v{n}, 1, 1")
    a(f"v_mul_u32_u24 v{t}, 0xAAAA, v{t}")
    a(f"v_add_u32 v{V_IDX}, 0x4444, v{t}")
    a(f"v_lshrrev_b32 v{t}, 3, v{n}")
    a(f"v_lshlrev_b32 v{V_SH}, 4, v{t}")
    a(f"s_lshl_b32 s16, s{S_W}, 3")
    a(f"v_add_u32 v{t}, s16, v{g}")
    a(f"v_lshlrev_b32 v{V_PST}, 13, v{t}")
    a(f"v_lshl_add_u32 v{V_PST}, v{n}, 4, v{V_PST}")
    a(f"s_lshr_b32 s16, s{S_H}, 1")
    a(f"s_lshl_b32 s16, s16, 8")
    a(f"v_add_u32 v{V_PST}, s16, v{V_PST}")
    for k in range(2):
        a(f"s_add_u32 s16, s{S_H}, {k}")
        a(f"s_and_b32 s16, s16, 1")
        a(f"s_lshl_b32 s16, s16, 15")
        a(f"s_add_u32 s{S_PB0+k}, s16, {k*4096}")
    a(f"v_lshrrev_b32 v{t}, 2, v{n}")
    a(f"v_lshl_add_u32 v{t}, v{g}, 2, v{t}")
    a(f"v_lshlrev_b32 v{V_INR}, 8, v{t}")
    a(f"v_and_b32 v{t}, 3, v{n}")
    a(f"v_lshl_add_u32 v{V_INR}, v{t}, 4, v{V_INR}")
    a(f"s_lshl_b32 s16, s{S_H}, 13")
    a(f"s_lshl_b32 s17, s{S_W}, 6")
    a(f"s_add_u32 s16, s16, s17")
    a(f"v_add_u32 v{V_INR}, s16, v{V_INR}")
    a(f"s_lshr_b32 s16, s{S_H}, 2")
    a(f"s_lshl_b32 s16, s16, 6")
    a(f"s_lshl_b32 s17, s{S_W}, 2")
    a(f"s_add_u32 s16, s16, s17")
    a(f"v_lshrrev_b32 v{t}, 1, v{n}")
    a(f"v_lshl_add_u32 v{t}, v{t}, 4, v{g}")
    a(f"v_add_u32 v{t}, s16, v{t}")
    a(f"s_and_b32 s16, s{S_H}, 3")
    a(f"s_lshl_b32 s16, s16, 2")
    a(f"v_and_b32 v{u}, 1, v{n}")
    a(f"v_add_u32 v{u}, s16, v{u}")
    a(f"v_bfe_u32 v20, v{t}, 1, 1")
    a(f"v_lshl_add_u32 v{u}, v20, 1, v{u}")
    a(f"v_bfe_u32 v20, v{t}, 4, 2")
    a(f"v_lshl_add_u32 v{u}, v20, 4, v{u}")
    a(f"v_lshlrev_b32 v{V_PUB}, 4, v{u}")
    a(f"v_bfe_u32 v20, v{t}, 2, 2")
    a(f"v_lshl_add_u32 v{V_PUB}, v20, 2, v{V_PUB}")
    a(f"v_lshrrev_b32 v20, 6, v{t}")
    a(f"v_and_b32 v20, 7, v20")
    a(f"v_lshl_add_u32 v{V_PUB}, v20, 10, v{V_PUB}")
    for r in range(4):
        a(f"v_mov_b32 v{32+r}, 0")
        a(f"v_cmp_eq_u32 vcc, {2*r}, v{n}")
        a(f"v_mov_b32 v20, 0x3f80")
        a(f"s_nop 0")
        a(f"v_cndmask_b32 v{32+r}, v{32+r}, v20, vcc")
        a(f"v_cmp_eq_u32 vcc, {2*r+1}, v{n}")
        a(f"v_mov_b32 v20, 0x3f800000")
        a(f"s_nop 0")
        a(f"v_cndmask_b32 v{32+r}, v{32+r}, v20, vcc")
    a(f"ds_write_b128 v{V_L16}, v[32:35] offset:{L_SEL - L_SM}")

    a(f"s_mov_b32 s{S_HI8}, 0xFF00FF00")
    a(f"s_mov_b32 s{S_HI8+1}, 0xFF00FF00")
    a(f"s_mov_b32 s{S_LO8}, 0x00FF00FF")
    a(f"s_mov_b32 s{S_LO8+1}, 0x00FF00FF")
    a(f"s_mov_b32 s{S_PUBM}, 0x000000FF")
    a(f"s_mov_b32 s{S_PUBM+1}, 0x000000FF")
    a(f"s_mov_b32 s{S_NDUP}, 0x33333333")
    a(f"s_mov_b32 s{S_NDUP+1}, 0x33333333")
    a(f"s_mov_b32 s{S_C}, 0x3e0293ee")
    srd_from_kernarg(a, S_T0, KA_MEM0, M * D * 2)
    a(f"v_lshrrev_b32 v{t}, 2, v{n}")
    a(f"v_and_b32 v{u}, 1, v{n}")
    a(f"v_lshl_add_u32 v{t}, v{u}, 2, v{t}")
    a(f"v_lshlrev_b32 v{t}, 10, v{t}")
    a(f"v_lshl_add_u32 v{t}, v{g}, 5, v{t}")
    a(f"v_bfe_u32 v{u}, v{n}, 1, 1")
    a(f"v_lshl_add_u32 v{t}, v{u}, 2, v{t}")
    a(f"s_lshl_b32 s16, s{S_W}, 8")
    a(f"v_add_u32 v{t}, s16, v{t}")
    for k in range(2):
        for p in range(4):
            a(f"buffer_load_dword v{32 + 4*k + p}, v{t}, s[{S_T0}:{S_T0+3}], 0 offen offset:{128*k + 8*p}")
    a("s_waitcnt vmcnt(0)")
    a(f"ds_write_b128 v{V_MW}, v[32:35]")
    a(f"ds_write_b128 v{V_MW}, v[36:39] offset:1024")
    a(f"s_mul_i32 s{S_KXO}, s{S_L}, {KX_L}")
    a(f"s_lshl_b32 s16, s{S_H}, 13")
    a(f"s_add_u32 s{S_KXO}, s{S_KXO}, s16")
    a(f"s_add_u32 s{S_VXO}, s{S_KXO}, {VX}")
    a(f"s_add_u32 s{S_KXO}, s{S_KXO}, {KX}")
    a(f"s_mul_i32 s{S_KMO}, s{S_L}, {KM_L}")
    a(f"s_lshl_b32 s16, s{S_H}, 12")
    a(f"s_add_u32 s{S_KMO}, s{S_KMO}, s16")
    a(f"s_add_u32 s{S_KMO}, s{S_KMO}, {KM - 131072}")
    a(f"s_lshl_b32 s16, s{S_W}, 10")
    a(f"s_add_u32 s{S_KMO}, s{S_KMO}, s16")
    a(f"s_mul_i32 s{S_TFO}, s{S_L}, {TF_L}")
    a(f"s_add_u32 s{S_TFO}, s{S_TFO}, {TF}")
    a(f"s_lshl_b32 s16, s{S_H}, 4")
    a(f"s_add_u32 s{S_TFO}, s{S_TFO}, s16")
    a(f"s_mul_i32 s{S_INB}, s{S_L}, {INBOX_L}")
    a(f"s_add_u32 s{S_INB}, s{S_INB}, {INBOX}")
    a(f"s_mul_i32 s{S_RINGB}, s{S_L}, {MEMRING_L}")
    a(f"s_add_u32 s{S_RINGB}, s{S_RINGB}, {MEMRING}")
    if L2PF:
        a(f"v_bfe_u32 v23, v{V_MP}, 4, 5")
        a(f"v_lshlrev_b32 v23, 6, v23")
        a(f"v_and_b32 v21, 0x1800, v{V_MP}")
        a(f"v_or_b32 v23, v23, v21")
        a(f"v_bfe_u32 v21, v{V_MP}, 9, 1")
        a(f"v_mul_u32_u24 v21, {(VX - KX) >> 4}, v21")
        a(f"v_lshl_add_u32 v0, v21, 4, v23")
        a(f"s_cmp_eq_u32 s{S_L}, 0")
        a(f"s_cselect_b32 s{S_PFD}, {PF_DIST*32*8192}, 0")
    a(f"s_mov_b32 s{S_S}, 0")

def wait_flag_T(a, uid):
    lab = f"R_tf_{uid}"
    a(f"v_bfe_u32 v21, v{V_L16}, 4, 2")
    a(f"v_lshlrev_b32 v21, 2, v21")
    a.label(lab)
    a(f"buffer_load_dword v20, v21, s[{S_WS}:{S_WS+3}], s{S_TFO} offen sc1")
    a("s_waitcnt vmcnt(0)")
    a("v_cmp_eq_u32 vcc, 0, v20")
    a(f"s_cbranch_vccz {lab}_ok")
    timeout_check(a, lab + "_ok")
    if RBO: a(f"s_sleep {RBO}")
    a(f"s_branch {lab}")
    a.label(lab + "_ok")

def dma_kx(a):
    a(f"s_lshl_b32 s{S_TMP}, s{S_W}, 11")
    a(f"s_add_u32 m0, s{S_TMP}, {L_KX}")
    a("s_nop 0")
    a(f"buffer_load_dwordx4 v{V_MP}, s[{S_WS}:{S_WS+3}], s{S_KXO} offen sc1 lds")
    a(f"buffer_load_dwordx4 v{V_MP}, s[{S_WS}:{S_WS+3}], s{S_KXO} offen offset:1024 sc1 lds")
def dma_vx(a):
    a(f"s_lshl_b32 s{S_TMP}, s{S_W}, 11")
    a(f"s_add_u32 m0, s{S_TMP}, {L_VX}")
    a("s_nop 0")
    a(f"buffer_load_dwordx4 v{V_MP}, s[{S_WS}:{S_WS+3}], s{S_VXO} offen sc1 lds")
    a(f"buffer_load_dwordx4 v{V_MP}, s[{S_WS}:{S_WS+3}], s{S_VXO} offen offset:1024 sc1 lds")

REALTIME = False
NOSTREAM = False
L2PF = False
PFF = False
RBO = 0
RTOUCH = False
LATEW = False
STCOUNT = None
PF_DIST = 1
BAR = set()
SKIP = set()
HOTKV = False
HOP1_DEPTH = 1
HOP2_DEPTH = 1
HOP2_GATE = True
def stamp(a, i, on):
    if on:
        a(f"{'s_memrealtime' if REALTIME else 's_memtime'} s[{S_STAMP+2*i}:{S_STAMP+2*i+1}]")


def step_scalars(a):
    a(f"s_and_b32 s{S_TMP}, s{S_S}, 1")
    a(f"s_mul_i32 s{S_TMP}, s{S_TMP}, {INBOX_SLOT}")
    a(f"s_add_u32 s{S_TMP}, s{S_TMP}, s{S_INB}")
    for k in range(2):
        a(f"s_add_u32 s{S_PS0+k}, s{S_TMP}, s{S_PB0+k}")
        a(f"s_add_u32 s{S_IN0+k}, s{S_TMP}, {k*4096}")
    a(f"s_bfe_u32 s{S_TAG}, s{S_S}, 0x10001")
def ring_scalars(a):
    a(f"s_add_u32 s{S_TMP}, s{S_S}, 1")
    a(f"s_and_b32 s{S_TMP}, s{S_TMP}, 3")
    a(f"s_lshl_b32 s{S_TMP}, s{S_TMP}, 13")
    a(f"s_add_u32 s{S_PUBS}, s{S_TMP}, s{S_RINGB}")
    a(f"s_add_u32 s{S_TMP}, s{S_S}, 3")
    a(f"s_and_b32 s{S_TMP}, s{S_TMP}, 3")
    a(f"s_lshl_b32 s{S_TMP}, s{S_TMP}, 13")
    a(f"s_add_u32 s{S_RSTS}, s{S_TMP}, s{S_RINGB}")

def role_R_main(a, local=True, stamps=False, uid="R", nodma=False, nopub=False, probe=False, trace=False, ldf=None):
    LD = ldf if ldf is not None else ('nt' if local else 'sc1')
    st = "" if local else "sc1"
    WS = f"s[{S_WS}:{S_WS+3}]"
    if stamps:
        for i in range(8):
            a(f"s_mov_b32 s{S_ACC+i}, 0")
        for i in range(84, 89):
            a(f"s_mov_b32 s{i}, 0")
    if RTOUCH:
        a(f"v_lshrrev_b32 v20, 4, v{V_MP}")
        a(f"v_and_b32 v20, 63, v20")
        a(f"v_and_b32 v21, 15, v20")
        a(f"v_lshlrev_b32 v21, 20, v21")
        a(f"v_lshrrev_b32 v20, 4, v20")
        a(f"s_mul_i32 s{S_TMP}, s{S_L}, {KX_L}")
        a(f"s_add_u32 s{S_TMP+1}, s{S_TMP}, {VX}")
        a(f"s_add_u32 s{S_TMP}, s{S_TMP}, {KX}")
        a(f"s_mul_i32 s{S_TMP+2}, s{S_L}, {KM_L}")
        a(f"s_add_u32 s{S_TMP+2}, s{S_TMP+2}, {KM}")
        a(f"v_mov_b32 v22, s{S_TMP}")
        a(f"v_cmp_eq_u32 vcc, 1, v20")
        a(f"v_mov_b32 v23, s{S_TMP+1}")
        a(f"v_cndmask_b32 v22, v22, v23, vcc")
        a(f"v_cmp_eq_u32 vcc, 2, v20")
        a(f"v_mov_b32 v23, s{S_TMP+2}")
        a(f"v_cndmask_b32 v22, v22, v23, vcc")
        a(f"v_add_u32 v22, v22, v21")
        a(f"buffer_load_dword v23, v22, s[{S_WS}:{S_WS+3}], 0 offen")
    wait_flag_T(a, uid + "first")
    dma_kx(a)
    dma_vx(a)
    a(f"s_add_u32 s{S_KXO}, s{S_KXO}, {32*8192}")
    a(f"s_add_u32 s{S_VXO}, s{S_VXO}, {32*8192}")
    a(f"s_add_u32 s{S_TFO}, s{S_TFO}, {32*16}")
    a(f"v_bfe_u32 v23, v{V_L16}, 4, 2")
    a(f"v_lshlrev_b32 v23, 2, v23")
    a(f"buffer_load_dword v22, v23, s[{S_WS}:{S_WS+3}], s{S_TFO} offen sc1")
    for r in range(ACC_Q0, ACC_V1 + 4, 2):
        a(f"v_mov_b64 v[{r}:{r+1}], 0")
    step_scalars(a)
    a("s_waitcnt vmcnt(0) lgkmcnt(0)")
    a("s_barrier")
    tails = []
    a.label(f"{uid}_step")
    a.lg = []; a.vm = []
    ptrace(a, 0, S_S)
    stamp(a, 0, stamps and not probe)
    a.c("---- P1: q,k projection")
    for ks in range(8):
        a.ds(f"ds_read_b128 v[{A_MEM+4*ks}:{A_MEM+4*ks+3}], v{V_L16} offset:{L_MEM-L_SM + ks*1024}", f"A{ks}")
    if L2PF:
        a(f"s_add_u32 s{S_TMP}, s{S_PFD}, s{S_KXO}")
        a(f"buffer_load_dword v23, v0, {WS}, s{S_TMP} offen")
    if PFF:
        a(f"s_add_u32 s{S_TMP+1}, s{S_TFO}, {2*32*16}")
        a(f"buffer_load_dword v23, off, {WS}, s{S_TMP+1}")
    for ks in range(8):
        a.ds_wait(f"A{ks}")
        A = A_MEM + 4 * ks
        smf(a, ACC_Q0, A, 'a', WQ + 0 * 64 + ks * 8)
        smf(a, ACC_K0, A, 'a', WK + 0 * 64 + ks * 8)
        a.ds(f"ds_read_b128 v[{KX_OP+4*ks}:{KX_OP+4*ks+3}], v{V_L16} offset:{L_KX-L_SM + ks*1024}", f"KX{ks}")
        smf(a, ACC_Q1, A, 'a', WQ + 1 * 64 + ks * 8)
        smf(a, ACC_K1, A, 'a', WK + 1 * 64 + ks * 8)
    stamp(a, 1, stamps and not probe)
    a.c("---- P2: q,k epilogue")
    def vstep(ks):
        A = A_MEM + 4 * ks
        smf(a, ACC_V0, A, 'v', WV + 0 * 64 + ks * 8)
        smf(a, ACC_V1, A, 'v', WV + 1 * 64 + ks * 8)
    for acc, base, t in ((ACC_Q0, 0, 0), (ACC_K0, L_K - L_Q, 0), (ACC_Q1, 0, 1), (ACC_K1, L_K - L_Q, 1)):
        a(f"v_pk_add_f32 v[{acc}:{acc+1}], v[{acc}:{acc+1}], v[{acc+2}:{acc+3}]")
        a(f"v_cvt_pk_bf16_f32 v{acc}, v{acc}, v{acc+1}")
        a.ds(f"ds_write_b16 v{V_QW}, v{acc} offset:{base + 8*t}", "qkw")
        a.ds(f"ds_write_b16_d16_hi v{V_QW}, v{acc} offset:{base + 8*t + 4*QS}", "qkw")
    vstep(0); vstep(1)
    a.ds_wait("qkw")
    a("s_barrier")
    stamp(a, 2, stamps and not probe)
    a.c("---- P3: scores")
    if not LATEW: a(f"s_waitcnt vmcnt({4 + L2PF + PFF})")
    for ks in range(4):
        a.ds(f"ds_read_b128 v[{Q_OP+4*ks}:{Q_OP+4*ks+3}], v{V_QR} offset:{64*ks}", f"q{ks}")
    for ks in range(2):
        a.ds(f"ds_read_b128 v[{A_MEM+4*ks}:{A_MEM+4*ks+3}], v{V_KR} offset:{64*ks}", f"km{ks}")
    a(f"v_add_u32 v21, s{S_W64}, v{V_KR}")
    a.ds(f"ds_read_b128 v[{ACC_K1}:{ACC_K1+3}], v21", "kmo")
    vstep(2); vstep(3)
    for ks in range(2, 4):
        a.ds(f"ds_read_b128 v[{A_MEM+4*ks}:{A_MEM+4*ks+3}], v{V_KR} offset:{64*ks}", f"km{ks}")
    def kx_block():
        lab = f"{uid}_tf"
        a(f"s_cmp_eq_u32 s{S_S}, 63")
        a(f"s_cbranch_scc1 {lab}_skip")
        a("v_cmp_eq_u32 vcc, 0, v22")
        a(f"s_cbranch_vccnz {lab}_slow")
        a.label(lab + "_ok")
        def tail0(lab=lab):
            a.label(lab + "_slow")
            wait_flag_T(a, uid + "slow")
            a(f"s_branch {lab}_ok")
        tails.append(tail0)
        if not nodma: dma_kx(a)
        a.label(lab + "_skip")
        a.vm = []
    if not LATEW: kx_block()
    X0, X1, MM = ACC_Q0, ACC_Q1, ACC_K0
    for ks in range(4):
        a.ds_wait(f"q{ks}")
        c0 = "0" if ks == 0 else f"v[{X0}:{X0+3}]"
        c1 = "0" if ks == 0 else f"v[{X1}:{X1+3}]"
        a(f"v_mfma_f32_16x16x32_bf16 v[{X0}:{X0+3}], v[{KX_OP+4*ks}:{KX_OP+4*ks+3}], v[{Q_OP+4*ks}:{Q_OP+4*ks+3}], {c0}")
        a(f"v_mfma_f32_16x16x32_bf16 v[{X1}:{X1+3}], v[{KX_OP+16+4*ks}:{KX_OP+16+4*ks+3}], v[{Q_OP+4*ks}:{Q_OP+4*ks+3}], {c1}")
    for ks in range(4):
        a.ds_wait(f"km{ks}")
        c = "0" if ks == 0 else f"v[{MM}:{MM+3}]"
        a(f"v_mfma_f32_16x16x32_bf16 v[{MM}:{MM+3}], v[{A_MEM+4*ks}:{A_MEM+4*ks+3}], v[{Q_OP+4*ks}:{Q_OP+4*ks+3}], {c}")
    def vx_block():
        a(f"s_waitcnt vmcnt({4 + L2PF + PFF})")
        for t in range(2):
            for hh in range(2):
                r = KX_OP + 8 * t + 4 * hh
                a.ds(f"ds_read_b64 v[{r}:{r+1}], v{V_VXR} offset:{1024*t + 8*hh}", "vx")
    if LATEW:
        a(f"s_waitcnt vmcnt({4 + L2PF + PFF})")
        kx_block()
    else:
        vx_block()
    vstep(4)
    SL = [112, 120, 80, 88, 96, 104, 40, 48]
    def wo_read(i, slot, halves=(0, 1)):
        tt, ks = i // 2, i % 2
        vb = V_WO0 if ks == 0 else V_WO1
        for half in halves:
            r = SL[slot] + 4 * half
            a.ds(f"ds_read_b128 v[{r}:{r+3}], v{vb} offset:{half*32768 + tt*1024}", f"F{i}")
    stamp(a, 3, stamps and not probe)
    a.c("---- softmax")
    for r in range(4):
        a(f"v_cndmask_b32 v{X0+r}, v{X0+r}, v{X1+r}, s[{S_HI8}:{S_HI8+1}]")
    def vhalf(ks, t):
        A = A_MEM + 4 * ks
        smf(a, ACC_V0 if t == 0 else ACC_V1, A, 'v', WV + t * 64 + ks * 8)
    a(f"v_cndmask_b32 v{MM}, v{MM}, v{MM+1}, s[{S_HI8}:{S_HI8+1}]")
    a(f"v_max3_f32 v20, v{X0}, v{X0+1}, v{X0+2}")
    a(f"v_max3_f32 v20, v20, v{X0+3}, v{MM}")
    vhalf(5, 0); a("s_nop 0")
    a("v_max_f32_dpp v20, v20, v20 row_ror:8 row_mask:0xf bank_mask:0xf")
    a("v_mov_b32 v21, v20")
    vhalf(5, 1); a("s_nop 0")
    a("v_permlane16_swap_b32 v20, v21")
    a("v_max_f32 v20, v20, v21")
    a("v_mov_b32 v21, v20")
    vhalf(6, 0); a("s_nop 0")
    a("v_permlane32_swap_b32 v20, v21")
    a("v_max_f32 v20, v20, v21")
    a(f"v_mul_f32 v20, s{S_C}, v20")
    vhalf(6, 1)
    if LATEW: vx_block()
    for i, r in enumerate((X0, X0+1, X0+2, X0+3, MM)):
        a(f"v_fma_f32 v{r}, v{r}, s{S_C}, -v20")
        if i == 1: vhalf(7, 0)
        if i == 3: vhalf(7, 1)
    ex = (X0, X0+1, X0+2, X0+3, MM)
    for i, r in enumerate(ex):
        a(f"v_exp_f32 v{r}, v{r}")
        if i < 4: wo_read(i, i, halves=(0,))
    for i in range(4): wo_read(i, i, halves=(1,))
    for t, acc in ((0, ACC_V0), (1, ACC_V1)):
        a(f"v_pk_add_f32 v[{acc}:{acc+1}], v[{acc}:{acc+1}], v[{acc+2}:{acc+3}]")
    P = X1
    a(f"v_cvt_pk_bf16_f32 v{P+2}, v{MM}, 0")
    a(f"v_cvt_pk_bf16_f32 v{P}, v{X0}, v{X0+1}")
    a(f"v_cvt_pk_bf16_f32 v{P+1}, v{X0+2}, v{X0+3}")
    a(f"v_mov_b32 v{P+3}, 0")
    a(f"v_lshlrev_b32 v{P+2}, v{V_SH}, v{P+2}")
    a.ds_wait("vx")
    for t, acc in ((0, ACC_V0), (1, ACC_V1)):
        r = KX_OP + 8 * t
        a(f"v_cvt_pk_bf16_f32 v{r+2}, v{acc}, v{acc+1}")
        a(f"v_cvt_pk_bf16_f32 v{r+6}, v{acc}, v{acc+1}")
    stamp(a, 4, stamps and not probe)
    a.c("---- PV")
    Dq = A_MEM
    a("s_nop 0")
    for t in range(2):
        for hh in range(2):
            r = KX_OP + 8 * t + 4 * hh
            d = Dq + 8 * t + 4 * hh
            a(f"v_mfma_f32_16x16x32_bf16 v[{d}:{d+3}], v[{r}:{r+3}], v[{P}:{P+3}], 0")
    a.ds_wait("kmo")
    a(f"s_mov_b64 vcc, s[{S_NDUP}:{S_NDUP+1}]")
    KQ = ACC_K1
    a(f"v_cndmask_b32_dpp v{MSGQ}, v{KX_OP+2}, v{KQ}, vcc row_shr:2 row_mask:0xf bank_mask:0xf bound_ctrl:0")
    a(f"v_cndmask_b32_dpp v{MSGQ+1}, v{KX_OP+10}, v{KQ+1}, vcc row_shr:2 row_mask:0xf bank_mask:0xf bound_ctrl:0")
    a(f"v_cndmask_b32 v{MSGQ+2}, v{KX_OP+2}, v{KQ+2}, vcc")
    a(f"v_cndmask_b32 v{MSGQ+3}, v{KX_OP+10}, v{KQ+3}, vcc")
    a(f"s_cmp_eq_u32 s{S_S}, 63")
    a(f"s_cbranch_scc1 {uid}_last")
    a(f"v_add_f32 v20, v{X0}, v{X0+1}")
    a(f"v_add_f32 v21, v{X0+2}, v{X0+3}")
    a(f"v_add_f32 v20, v20, v{MM}")
    a(f"v_add_f32 v20, v20, v21")
    wo_read(6, 6)
    a("v_add_f32_dpp v20, v20, v20 row_ror:8 row_mask:0xf bank_mask:0xf")
    a("v_mov_b32 v21, v20")
    wo_read(7, 7)
    a("v_permlane16_swap_b32 v20, v21")
    a("v_add_f32 v20, v20, v21")
    a("v_mov_b32 v21, v20")
    wo_read(4, 4)
    a("v_permlane32_swap_b32 v20, v21")
    a("v_add_f32 v20, v20, v21")
    a("v_rcp_f32 v20, v20")
    wo_read(5, 5)
    for t in range(2):
        for r in range(4):
            d1 = Dq + 8 * t + r; d2 = d1 + 4
            a(f"v_add_f32_dpp v{d1}, v{d2}, v{d1} row_ror:8 row_mask:0xf bank_mask:0xf")
    a("v_mov_b32 v21, v20")
    for t in range(2):
        for r in (0, 2):
            d1 = Dq + 8 * t + r
            a(f"v_pk_mul_f32 v[{d1}:{d1+1}], v[{d1}:{d1+1}], v[20:21]")
    a(f"s_mov_b64 exec, s[{S_LO8}:{S_LO8+1}]")
    for t in range(2):
        for rp in range(2):
            d1 = Dq + 8 * t + 2 * rp
            a(f"v_cvt_pk_bf16_f32 v{d1}, v{d1}, v{d1+1}")
            a.ds(f"ds_write_b32 v{V_OW}, v{d1} offset:{4*t + 32*rp}", "ow")
    a("s_mov_b64 exec, -1")
    WACC = [56, 60, 64, 68, 72, 76, 24, 28]
    for r in range(56, 80, 2):
        a(f"v_mov_b64 v[{r}:{r+1}], 0")
    a.ds_wait("ow")
    a("s_barrier")
    stamp(a, 5, stamps and not probe)
    a.c("---- P5: output projection")
    OOP = 32
    for ks in range(2):
        a.ds(f"ds_read_b128 v[{OOP+4*ks}:{OOP+4*ks+3}], v{V_L16} offset:{L_O-L_SM + ks*1024}", f"o{ks}")
    for r in range(24, 32, 2):
        a(f"v_mov_b64 v[{r}:{r+1}], 0")
    a.ds_wait("o1")
    def wo_epi(stg):
        base = WACC[4*stg]
        for r in range(4):
            A_ = WACC[4*stg + r]
            a(f"v_pk_add_f32 v[{A_}:{A_+1}], v[{A_}:{A_+1}], v[{A_+2}:{A_+3}]")
        mq = MSG[stg]
        for r in range(4):
            A_ = WACC[4*stg + r]
            a(f"v_cvt_pk_bf16_f32 v{mq+r}, v{A_}, v{A_+1}")
        a(f"v_bfi_b32 v{mq}, 1, s{S_TAG}, v{mq}")
        a.vmem(f"buffer_store_dwordx4 v[{mq}:{mq+3}], v{V_PST}, {WS}, s{S_PS0+stg} offen {st}", "pst")
    MSG = [56, 72]
    for i in range(16):
        tt, ks = i // 2, i % 2
        slot = i % 8
        a.ds_wait(f"F{i}")
        smf(a, WACC[tt], OOP + 4 * ks, 'v', SL[slot])
        if i + 8 < 16 and not NOSTREAM:
            wo_read(i + 8, slot)
        if i == 9: wo_epi(0)
    SEL, RD = 80, 84
    mq = MSG[1]
    for r in range(3):
        A_ = WACC[4 + r]
        a(f"v_pk_add_f32 v[{A_}:{A_+1}], v[{A_}:{A_+1}], v[{A_+2}:{A_+3}]")
    for r in range(3):
        A_ = WACC[4 + r]
        a(f"v_cvt_pk_bf16_f32 v{mq+r}, v{A_}, v{A_+1}")
    a(f"v_bfi_b32 v{mq}, 1, s{S_TAG}, v{mq}")
    a.ds(f"ds_read_b128 v[{SEL}:{SEL+3}], v{V_L16} offset:{L_SEL - L_SM}", "sel")
    A_ = WACC[7]
    a(f"v_pk_add_f32 v[{A_}:{A_+1}], v[{A_}:{A_+1}], v[{A_+2}:{A_+3}]")
    a(f"v_cvt_pk_bf16_f32 v{mq+3}, v{A_}, v{A_+1}")
    a.vmem(f"buffer_store_dwordx4 v[{mq}:{mq+3}], v{V_PST}, {WS}, s{S_PS0+1} offen {st}", "pst")
    stamp(a, 0 if probe else 6, stamps)
    a.c("---- P6: reduce")
    INA, INB0, INB1 = 40, 44, 48
    def in_load(u, r):
        a(f"buffer_load_dwordx4 v[{r}:{r+3}], v{V_INR}, {WS}, s{S_IN0+u} offen {LD}")
    def tagtest(r):
        a(f"v_xor_b32 v20, s{S_TAG}, v{r}")
        a(f"v_and_b32 v20, 1, v20")
        a("v_cmp_ne_u32 vcc, 0, v20")
    ring_scalars(a)
    for r in range(ACC_Q0, ACC_V1 + 4, 2):
        a(f"v_mov_b64 v[{r}:{r+1}], 0")
    a("s_waitcnt vmcnt(0)")
    if "b1" in BAR: a("s_barrier")
    if probe: stamp(a, 1, True)
    lab = f"{uid}_in"
    def both(rA, rB):
        in_load(0, rA); in_load(1, rB)
    def test2(rA, rB):
        a(f"v_bitop3_b32 v20, v{rA}, v{rB}, s{S_TAG} bitop3:0x7E")
        a(f"v_and_b32 v20, 1, v20")
        a("v_cmp_ne_u32 vcc, 0, v20")
    def red(rA, rB):
        a(f"v_mfma_f32_16x16x32_bf16 v[{RD}:{RD+3}], v[{rA}:{rA+3}], v[{SEL}:{SEL+3}], 0")
        a(f"v_mfma_f32_16x16x32_bf16 v[{RD}:{RD+3}], v[{rB}:{rB+3}], v[{SEL}:{SEL+3}], v[{RD}:{RD+3}]")
    A0, B0, A1, B1 = 40, 44, 48, 52
    both(A0, B0)
    a.ds_wait("sel")
    if HOP1_DEPTH == 1:
        a("s_waitcnt vmcnt(0)")
        test2(A0, B0)
        a(f"s_cbranch_vccz {lab}_ok0")
        a.label(lab + "_retry")
        a("s_mov_b64 exec, vcc")
        both(A0, B0)
        if probe: a(f"s_add_u32 s85, s85, 1")
        timeout_check(a, lab + "_ok0")
        a("s_waitcnt vmcnt(0)")
        test2(A0, B0)
        a(f"s_cbranch_vccnz {lab}_retry")
        a.label(lab + "_ok0")
        a("s_mov_b64 exec, -1")
        a("s_nop 0")
        red(A0, B0)
    else:
        a.label(lab)
        both(A1, B1)
        a("s_waitcnt vmcnt(2)")
        test2(A0, B0)
        a(f"s_cbranch_vccz {lab}_ok0")
        timeout_check(a, lab + "_ok0")
        if probe: a(f"s_add_u32 s85, s85, 1")
        both(A0, B0)
        a("s_waitcnt vmcnt(2)")
        test2(A1, B1)
        a(f"s_cbranch_vccz {lab}_ok1")
        if probe: a(f"s_add_u32 s85, s85, 1")
        a(f"s_branch {lab}")
        a.label(lab + "_ok1")
        red(A1, B1)
        a(f"s_branch {lab}_done")
        a.label(lab + "_ok0")
        red(A0, B0)
        a.label(lab + "_done")
    if probe:
        stamp(a, 2, True); stamp(a, 3, True); stamp(a, 4, True); stamp(a, 5, True)
    a.vm = []
    a.nops(8)
    a(f"v_permlane32_swap_b32 v{RD}, v{RD+2}")
    a(f"v_permlane32_swap_b32 v{RD+1}, v{RD+3}")
    a(f"v_add_f32 v{RD}, v{RD}, v{RD+2}")
    a(f"v_add_f32 v{RD+1}, v{RD+1}, v{RD+3}")
    a("s_nop 1")
    a(f"v_permlane16_swap_b32 v{RD}, v{RD+1}")
    a(f"v_add_f32 v{RD}, v{RD}, v{RD+1}")
    a(f"v_mov_b32 v{RD+1}, v{RD}")
    a("s_nop 1")
    a(f"v_permlane16_swap_b32 v{RD}, v{RD+1}")
    a(f"v_cvt_pk_bf16_f32 v{RD}, v{RD}, v{RD+1}")
    a(f"s_mov_b64 exec, s[{S_PUBM}:{S_PUBM+1}]")
    a(f"buffer_store_dword v{RD}, v{V_PUB}, {WS}, s{S_PUBS} offen {st}")
    a("s_mov_b64 exec, -1")
    stamp(a, 6 if probe else 7, stamps)
    a.c("---- P0: receive mem(s+1)")
    MP0, MP1 = 80, 88
    lab = f"{uid}_mp"
    def mp_load(r):
        a(f"buffer_load_dwordx4 v[{r}:{r+3}], v{V_MP}, {WS}, s{S_PUBS} offen {LD}")
        a(f"buffer_load_dwordx4 v[{r+4}:{r+7}], v{V_MP}, {WS}, s{S_PUBS} offen offset:1024 {LD}")
    def mp_test(r):
        a(f"v_max3_u32 v20, v{r}, v{r+1}, v{r+2}")
        a(f"v_max3_u32 v21, v{r+3}, v{r+4}, v{r+5}")
        a(f"v_max3_u32 v20, v{r+6}, v{r+7}, v20")
        a(f"v_max_u32 v20, v20, v21")
        a("v_cmp_eq_u32 vcc, -1, v20")
    def mp_write(r):
        a(f"ds_write_b128 v{V_MW}, v[{r}:{r+3}]")
        a(f"ds_write_b128 v{V_MW}, v[{r+4}:{r+7}] offset:1024")
    a(f"s_add_u32 s{S_S}, s{S_S}, 1")
    a(f"s_add_u32 s{S_TFO}, s{S_TFO}, {32*16}")
    if not HOTKV: a(f"s_add_u32 s{S_KXO}, s{S_KXO}, {32*8192}")
    step_scalars(a)
    if HOP2_GATE: a("s_waitcnt vmcnt(0)")
    if "b2" in BAR: a("s_barrier")
    mp_load(MP0)
    if HOP2_DEPTH == 1:
        a("s_waitcnt vmcnt(0)")
        mp_test(MP0)
        a(f"s_cbranch_vccz {lab}_ok0")
        a.label(lab + "_retry")
        a("s_mov_b64 exec, vcc")
        mp_load(MP0)
        if probe: a(f"s_add_u32 s88, s88, 1")
        timeout_check(a, lab + "_ok0")
        a("s_waitcnt vmcnt(0)")
        mp_test(MP0)
        a(f"s_cbranch_vccnz {lab}_retry")
        a.label(lab + "_ok0")
        a("s_mov_b64 exec, -1")
        if probe: stamp(a, 7, True)
        mp_write(MP0)
    else:
        a.label(lab)
        mp_load(MP1)
        a("s_waitcnt vmcnt(2)")
        mp_test(MP0)
        a(f"s_cbranch_vccz {lab}_ok0")
        timeout_check(a, lab + "_ok0")
        if probe: a(f"s_add_u32 s88, s88, 1")
        mp_load(MP0)
        a("s_waitcnt vmcnt(2)")
        mp_test(MP1)
        a(f"s_cbranch_vccz {lab}_ok1")
        if probe: a(f"s_add_u32 s88, s88, 1")
        a(f"s_branch {lab}")
        a.label(lab + "_ok1")
        if probe: stamp(a, 7, True)
        mp_write(MP1)
        a(f"s_branch {lab}_done")
        a.label(lab + "_ok0")
        if probe: stamp(a, 7, True)
        mp_write(MP0)
        a.label(lab + "_done")
    a(f"v_bfe_u32 v23, v{V_L16}, 4, 2")
    a(f"v_lshlrev_b32 v23, 2, v23")
    a(f"buffer_load_dword v22, v23, {WS}, s{S_TFO} offen sc1")
    if not nodma: dma_vx(a)
    if not HOTKV: a(f"s_add_u32 s{S_VXO}, s{S_VXO}, {32*8192}")
    a(f"v_mov_b32 v21, -1")
    a(f"s_mov_b64 exec, s[{S_PUBM}:{S_PUBM+1}]")
    a(f"buffer_store_dword v21, v{V_PUB}, {WS}, s{S_RSTS} offen {st}")
    a(f"s_mov_b64 exec, -1")
    if not nopub: a(f"buffer_store_dwordx4 v[{MSGQ}:{MSGQ+3}], v{V_L16}, {WS}, s{S_KMO} offen sc1")
    a(f"s_add_u32 s{S_KMO}, s{S_KMO}, {32*4096}")
    a("s_waitcnt lgkmcnt(0)")
    a("s_barrier")
    if trace:
        a(f"s_memrealtime s[{S_STAMP+16}:{S_STAMP+17}]")
        a("s_memrealtime s[46:47]")
        a("s_waitcnt lgkmcnt(0)")
        skip = a.newlabel("trskip")
        a(f"s_cmp_lt_u32 s{S_S}, 20")
        a(f"s_cbranch_scc1 {skip}")
        a(f"s_cmp_ge_u32 s{S_S}, 28")
        a(f"s_cbranch_scc1 {skip}")
        a(f"s_lshl_b32 s{S_TMP}, s{S_H}, 2")
        a(f"s_add_u32 s{S_TMP}, s{S_TMP}, s{S_W}")
        a(f"s_lshl_b32 s{S_TMP}, s{S_TMP}, 3")
        a(f"s_add_u32 s{S_TMP}, s{S_TMP}, s{S_S}")
        a(f"s_sub_u32 s{S_TMP}, s{S_TMP}, 20")
        a(f"s_lshl_b32 s{S_TMP}, s{S_TMP}, 6")
        a(f"s_add_u32 s{S_TMP}, s{S_TMP}, {STAMP + 2*MB}")
        for i in range(9):
            a(f"v_mov_b32 v20, s{S_STAMP+2*i}")
            a(f"v_mov_b32 v21, {4*i}")
            a(f"buffer_store_dword v20, v21, {WS}, s{S_TMP} offen")
        a(f"v_mov_b32 v20, s46")
        a(f"v_mov_b32 v21, 36")
        a(f"buffer_store_dword v20, v21, {WS}, s{S_TMP} offen")
        a.label(skip)
    elif stamps:
        a(f"s_memtime s[{S_STAMP+16}:{S_STAMP+17}]")
        a("s_waitcnt lgkmcnt(0)")
        for i in range(8):
            a(f"s_sub_u32 s{S_TMP}, s{S_STAMP+2*i+2}, s{S_STAMP+2*i}")
            if STCOUNT:
                a(f"s_cmp_gt_u32 s{S_TMP}, {STCOUNT[i]}")
                a(f"s_addc_u32 s{S_ACC+i}, s{S_ACC+i}, 0")
            else:
                a(f"s_add_u32 s{S_ACC+i}, s{S_ACC+i}, s{S_TMP}")
    a(f"s_branch {uid}_step")
    for t_ in tails: t_()
    a.label(f"{uid}_last")
    a("s_waitcnt vmcnt(0)")
    a(f"buffer_store_dwordx4 v[{MSGQ}:{MSGQ+3}], v{V_L16}, {WS}, s{S_KMO} offen sc1")
    a("s_waitcnt vmcnt(0)")
    a(f"s_add_u32 s{S_KMO}, s{S_KMO}, {32*4096}")
    a(f"v_mov_b32 v20, 0")
    a(f"s_mov_b64 exec, 1")
    a(f"buffer_store_dword v20, v{V_L16}, {WS}, s{S_KMO} offen sc1")
    a(f"s_mov_b64 exec, -1")
    a("s_waitcnt vmcnt(0)")
```

```python
from common import *
V_L16, V_F4, V_M4, V_VM, V_D, V_Z, V_F = 1, 2, 3, 4, 5, 6, 7
Q_, K_, V_, KM_, VM_ = 200, 32, 64, 96, 112
XS_ = 232
MM = 136
P_, PM_ = 140, 144
OD = 148
T0 = 180
S_S, S_HH, S_QT0, S_BASE, S_KMO, S_TFO, S_OFO, S_C, S_PRE = 18, 19, 21, 23, 24, 25, 27, 28, 29
S_MSK = 30
S_TMP = 46
SPEC = True

def role_TA_prologue(a, split=False):
    a.c("===== TA prologue =====")
    a(f"s_and_b32 s16, s{S_H}, 7")
    a(f"s_lshl_b32 s16, s16, 2")
    a(f"s_add_u32 s16, s16, s{S_W}")
    if split:
        a(f"s_lshr_b32 s{S_HH}, s16, 1")
        a(f"s_and_b32 s{S_QT0}, s16, 1")
    else:
        a(f"s_mov_b32 s{S_HH}, s16")
        a(f"s_mov_b32 s{S_QT0}, 0")
    n, g, t = 16, 17, 18
    a(f"v_and_b32 v{n}, 15, v0")
    a(f"v_lshrrev_b32 v{g}, 4, v0")
    a(f"v_lshlrev_b32 v{V_L16}, 4, v0")
    a(f"v_and_b32 v{t}, 3, v0")
    a(f"v_lshlrev_b32 v{V_F4}, 2, v{t}")
    a(f"v_bfe_u32 v19, v0, 2, 1")
    a(f"v_mul_u32_u24 v19, {QF - TF}, v19")
    a(f"v_add_u32 v{V_F4}, v{V_F4}, v19")
    a(f"v_lshlrev_b32 v{V_M4}, 10, v{t}")
    a(f"v_or_b32 v{t}, 2, v{n}")
    a(f"v_lshl_add_u32 v{t}, v{g}, 4, v{t}")
    a(f"v_lshlrev_b32 v{V_VM}, 4, v{t}")
    a(f"v_bfe_u32 v{t}, v{n}, 1, 1")
    a(f"v_lshl_add_u32 v{V_VM}, v{t}, 3, v{V_VM}")
    a(f"v_lshlrev_b32 v{t}, 2, v{g}")
    a(f"v_sub_u32 v{V_D}, v{n}, v{t}")
    a(f"v_mov_b32 v{V_Z}, 0")
    for w in range(8):
        a(f"v_mov_b32 v{VM_ + 2*w + 1}, 0")
    a(f"v_mov_b32 v{PM_+1}, 0")
    a(f"v_mov_b32 v197, 0")
    a(f"s_mul_i32 s{S_BASE}, s{S_L}, {KX_L}")
    a(f"s_lshl_b32 s16, s{S_HH}, 13")
    a(f"s_add_u32 s{S_BASE}, s{S_BASE}, s16")
    a(f"s_mul_i32 s{S_KMO}, s{S_L}, {KM_L}")
    a(f"s_lshl_b32 s16, s{S_HH}, 12")
    a(f"s_add_u32 s{S_KMO}, s{S_KMO}, s16")
    a(f"s_add_u32 s{S_KMO}, s{S_KMO}, {KM}")
    a(f"s_mul_i32 s{S_TFO}, s{S_L}, {TF_L}")
    a(f"s_lshl_b32 s16, s{S_HH}, 4")
    a(f"s_add_u32 s{S_TFO}, s{S_TFO}, s16")
    a(f"s_add_u32 s{S_TFO}, s{S_TFO}, {TF}")
    a(f"s_mul_i32 s{S_OFO}, s{S_L}, {OF_L}")
    a(f"s_lshl_b32 s16, s{S_HH}, 3")
    a(f"s_add_u32 s{S_OFO}, s{S_OFO}, s16")
    a(f"s_add_u32 s{S_OFO}, s{S_OFO}, {OF}")
    a(f"s_mov_b32 s{S_C}, 0x3e0293ee")
    a(f"s_lshr_b32 s{S_S}, s{S_H}, 3")
    a(f"s_mul_i32 s16, s{S_S}, {32*8192}")
    a(f"s_add_u32 s{S_BASE}, s{S_BASE}, s16")
    a(f"s_mul_i32 s16, s{S_S}, {32*4096}")
    a(f"s_add_u32 s{S_KMO}, s{S_KMO}, s16")
    a(f"s_mul_i32 s16, s{S_S}, {32*16}")
    a(f"s_add_u32 s{S_TFO}, s{S_TFO}, s16")
    a(f"s_mul_i32 s16, s{S_S}, {64*4}")
    a(f"s_add_u32 s{S_OFO}, s{S_OFO}, s16")

def role_TA_main(a, nqt, uid="TA", st=False):
    WS = f"s[{S_WS}:{S_WS+3}]"
    NLD = 16 + 4 * nqt
    if st: stamps_init(a)
    def issue_qkv():
        a(f"s_add_u32 s{S_TMP}, s{S_BASE}, {KX}")
        a(f"s_add_u32 s{S_TMP+1}, s{S_TMP}, 4096")
        for i in range(8):
            so = S_TMP if i < 4 else S_TMP + 1
            a(f"buffer_load_dwordx4 v[{K_+4*i}:{K_+4*i+3}], v{V_L16}, {WS}, s{so} offen offset:{1024*(i%4)} sc1")
        for u in range(nqt):
            a(f"s_add_u32 s{S_TMP+2}, s{S_QT0}, {u}")
            a(f"s_lshl_b32 s{S_TMP+2}, s{S_TMP+2}, 12")
            a(f"s_add_u32 s{S_TMP+2}, s{S_TMP+2}, s{S_BASE}")
            a(f"s_add_u32 s{S_TMP+2}, s{S_TMP+2}, {QX}")
            for i in range(4):
                r = Q_ + 16 * u + 4 * i
                a(f"buffer_load_dwordx4 v[{r}:{r+3}], v{V_L16}, {WS}, s{S_TMP+2} offen offset:{1024*i} sc1")
        a(f"s_add_u32 s{S_TMP}, s{S_BASE}, {VX}")
        a(f"s_add_u32 s{S_TMP+1}, s{S_TMP}, 4096")
        for i in range(8):
            so = S_TMP if i < 4 else S_TMP + 1
            a(f"buffer_load_dwordx4 v[{V_+4*i}:{V_+4*i+3}], v{V_L16}, {WS}, s{so} offen offset:{1024*(i%4)} sc1")
    def mloads():
        a(f"s_add_u32 s{S_TMP}, s{S_KMO}, {32*4096}")
        a(f"buffer_load_dword v{T0+2}, v{V_M4}, {WS}, s{S_TMP} offen sc1")
        for ks in range(4):
            a(f"buffer_load_dwordx4 v[{KM_+4*ks}:{KM_+4*ks+3}], v{V_L16}, {WS}, s{S_KMO} offen offset:{1024*ks} sc1")
        for w in range(4):
            for t in range(2):
                a(f"buffer_load_dword v{VM_+2*(2*w+t)}, v{V_VM}, {WS}, s{S_KMO} offen offset:{1024*w + 4*t} sc1")
    NM = 13 if SPEC else 0
    flag_wait(a, T0, V_F4, S_TFO, uid + "0")
    issue_qkv()
    if SPEC: mloads()
    a(f"s_waitcnt vmcnt({8 + NM})")
    a.label(f"{uid}_item")
    stamp(a, 0, st)
    for u in range(nqt):
        X0, X1 = XS_ + 8 * u, XS_ + 8 * u + 4
        for ks in range(4):
            q = Q_ + 16 * u + 4 * ks
            c0 = "0" if ks == 0 else f"v[{X0}:{X0+3}]"
            c1 = "0" if ks == 0 else f"v[{X1}:{X1+3}]"
            a(f"v_mfma_f32_16x16x32_bf16 v[{X0}:{X0+3}], v[{K_+4*ks}:{K_+4*ks+3}], v[{q}:{q+3}], {c0}")
            a(f"v_mfma_f32_16x16x32_bf16 v[{X1}:{X1+3}], v[{K_+16+4*ks}:{K_+16+4*ks+3}], v[{q}:{q+3}], {c1}")
    a(f"s_add_u32 s{S_TFO}, s{S_TFO}, {2*32*16}")
    a(f"buffer_load_dword v{V_F}, v{V_F4}, {WS}, s{S_TFO} offen sc1")
    lab = f"{uid}_m"
    stamp(a, 1, st)
    for u in range(nqt):
        X0, X1 = XS_ + 8 * u, XS_ + 8 * u + 4
        a(f"s_add_u32 s{S_TMP+3}, s{S_QT0}, {u}")
        a(f"s_lshl_b32 s{S_TMP+3}, s{S_TMP+3}, 4")
        a(f"v_add_u32 v{T0}, s{S_TMP+3}, v{V_D}")
        for kt in range(2):
            for r in range(4):
                m = S_MSK + 2 * (4*kt + r)
                a(f"v_cmp_le_i32 s[{m}:{m+1}], {16*kt + r}, v{T0}")
        a(f"v_mov_b32 v{T0+1}, 0xff800000")
        for kt, X in ((0, X0), (1, X1)):
            for r in range(4):
                m = S_MSK + 2 * (4*kt + r)
                a(f"v_cndmask_b32 v{X+r}, v{T0+1}, v{X+r}, s[{m}:{m+1}]")
    a("s_waitcnt vmcnt(0)")
    if SPEC:
        a(f"s_cmp_ge_u32 s{S_S}, 62")
        a(f"s_cbranch_scc1 {lab}_strict")
        a(f"v_cmp_eq_u32 vcc, -1, v{T0+2}")
        a(f"s_cbranch_vccz {lab}_ok")
        a.label(lab + "_strict")
    a(f"s_add_u32 s{S_TMP}, s{S_KMO}, {32*4096}")
    a.label(lab)
    a(f"buffer_load_dword v{T0+2}, v{V_M4}, {WS}, s{S_TMP} offen sc1")
    a("s_waitcnt vmcnt(0)")
    a(f"v_cmp_eq_u32 vcc, -1, v{T0+2}")
    a(f"s_cbranch_vccz {lab}_got")
    backoff(a)
    a(f"s_sub_u32 s{S_TMO}, s{S_TMO}, 1")
    a(f"s_cbranch_scc0 {lab}")
    a.label(lab + "_got")
    mloads()
    a("s_waitcnt vmcnt(0)")
    a.label(lab + "_ok")
    trace(a, 128, S_S)
    stamp(a, 2, st)
    UR = (dict(MM=136, P=140, PM=144, OD=148, T=180), dict(MM=8, P=12, PM=196, OD=32, T=16))
    def unit(x, u):
        X0, X1 = XS_ + 8 * u, XS_ + 8 * u + 4
        MM, P_, PM_, OD, T0 = (UR[u][k] for k in ("MM", "P", "PM", "OD", "T"))
        for ks in range(4):
            q = Q_ + 16 * u + 4 * ks
            c = "0" if ks == 0 else f"v[{MM}:{MM+3}]"
            x(f"v_mfma_f32_16x16x32_bf16 v[{MM}:{MM+3}], v[{KM_+4*ks}:{KM_+4*ks+3}], v[{q}:{q+3}], {c}")
        x(f"v_max3_f32 v{T0}, v{X0}, v{X0+1}, v{X0+2}")
        x(f"v_max3_f32 v{T0+1}, v{X0+3}, v{X1}, v{X1+1}")
        x(f"v_max3_f32 v{T0}, v{T0}, v{X1+2}, v{X1+3}")
        x(f"v_max_f32 v{T0}, v{T0}, v{T0+1}")
        x("s_nop 4")
        x(f"v_max3_f32 v{T0}, v{T0}, v{MM}, v{MM+1}")
        x(f"v_mov_b32 v{T0+1}, v{T0}")
        x("s_nop 1")
        x(f"v_permlane16_swap_b32 v{T0}, v{T0+1}")
        x(f"v_max_f32 v{T0}, v{T0}, v{T0+1}")
        x(f"v_mov_b32 v{T0+1}, v{T0}")
        x("s_nop 1")
        x(f"v_permlane32_swap_b32 v{T0}, v{T0+1}")
        x(f"v_max_f32 v{T0}, v{T0}, v{T0+1}")
        x(f"v_mul_f32 v{T0}, s{S_C}, v{T0}")
        vals = [X0+r for r in range(4)] + [X1+r for r in range(4)] + [MM, MM+1]
        for r in vals: x(f"v_fma_f32 v{r}, v{r}, s{S_C}, -v{T0}")
        for r in vals: x(f"v_exp_f32 v{r}, v{r}")
        x("s_nop 1")
        x(f"v_cvt_pk_bf16_f32 v{P_}, v{X0}, v{X0+1}")
        x(f"v_cvt_pk_bf16_f32 v{P_+1}, v{X0+2}, v{X0+3}")
        x(f"v_cvt_pk_bf16_f32 v{P_+2}, v{X1}, v{X1+1}")
        x(f"v_cvt_pk_bf16_f32 v{P_+3}, v{X1+2}, v{X1+3}")
        x(f"v_cvt_pk_bf16_f32 v{PM_}, v{MM}, v{MM+1}")
        x("s_nop 2")
        for i in range(8):
            d = OD + 4 * i
            x(f"v_mfma_f32_16x16x32_bf16 v[{d}:{d+3}], v[{V_+4*i}:{V_+4*i+3}], v[{P_}:{P_+3}], 0")
        for i in range(8):
            d = OD + 4 * i
            x(f"v_mfma_f32_16x16x16_bf16 v[{d}:{d+3}], v[{VM_+2*i}:{VM_+2*i+1}], v[{PM_}:{PM_+1}], v[{d}:{d+3}]")
        x(f"v_add_f32 v{T0}, v{X0}, v{X0+1}")
        x(f"v_add_f32 v{T0+1}, v{X0+2}, v{X0+3}")
        x(f"v_add_f32 v{T0+2}, v{X1}, v{X1+1}")
        x(f"v_add_f32 v{T0+3}, v{X1+2}, v{X1+3}")
        x(f"v_add_f32 v{T0}, v{T0}, v{T0+1}")
        x(f"v_add_f32 v{T0+2}, v{T0+2}, v{T0+3}")
        x(f"v_add_f32 v{T0+1}, v{MM}, v{MM+1}")
        x(f"v_add_f32 v{T0}, v{T0}, v{T0+2}")
        x(f"v_add_f32 v{T0}, v{T0}, v{T0+1}")
        x(f"v_mov_b32 v{T0+1}, v{T0}")
        x("s_nop 1")
        x(f"v_permlane16_swap_b32 v{T0}, v{T0+1}")
        x(f"v_add_f32 v{T0}, v{T0}, v{T0+1}")
        x(f"v_mov_b32 v{T0+1}, v{T0}")
        x("s_nop 1")
        x(f"v_permlane32_swap_b32 v{T0}, v{T0+1}")
        x(f"v_add_f32 v{T0}, v{T0}, v{T0+1}")
        x(f"v_rcp_f32 v{T0}, v{T0}")
        x("s_nop 1")
        x(f"v_mov_b32 v{T0+1}, v{T0}")
    def unit_out(x, u):
        OD, T0 = UR[u]["OD"], UR[u]["T"]
        so = S_TMP + 2 + u
        for w in range(4):
            d = OD + 8 * w
            for k in range(0, 8, 2):
                x(f"v_pk_mul_f32 v[{d+k}:{d+k+1}], v[{d+k}:{d+k+1}], v[{T0}:{T0+1}]")
            o = T0 + 4 + 4 * (w & 1)
            for k in range(4):
                x(f"v_cvt_pk_bf16_f32 v{o+k}, v{d+2*k}, v{d+2*k+1}")
            x(f"buffer_store_dwordx4 v[{o}:{o+3}], v{V_L16}, {WS}, s{so} offen offset:{1024*w} sc1")
    assert nqt == 2
    interleave2(a, lambda x: unit(x, 0), lambda x: unit(x, 1))
    for u in range(2):
        a(f"s_add_u32 s{S_TMP+2+u}, s{S_BASE}, {OB + 4096*u}")
    interleave2(a, lambda x: unit_out(x, 0), lambda x: unit_out(x, 1))
    stamp(a, 3, st)
    a(f"s_add_u32 s{S_BASE}, s{S_BASE}, {2*32*8192}")
    a(f"s_add_u32 s{S_KMO}, s{S_KMO}, {2*32*4096}")
    lab = f"{uid}_pre"
    a(f"s_cmp_ge_u32 s{S_S}, 62")
    a(f"s_cbranch_scc1 {lab}_last")
    def oflag():
        a(f"v_mov_b32 v{T0}, 1")
        a(f"v_lshlrev_b32 v{T0+1}, 2, v0")
        a(f"s_mov_b64 exec, {(1 << nqt) - 1}")
        a(f"buffer_store_dword v{T0}, v{T0+1}, {WS}, s{S_OFO} offen sc1")
        a("s_mov_b64 exec, -1")
        trace(a, 129, S_S)
    a(f"buffer_load_dword v{V_F}, v{V_F4}, {WS}, s{S_TFO} offen sc1")
    a("s_waitcnt vmcnt(0)")
    stamp(a, 4, st)
    oflag()
    a(f"v_cmp_eq_u32 vcc, 0, v{V_F}")
    a(f"s_cbranch_vccz {lab}_cp")
    flag_wait(a, T0, V_F4, S_TFO, uid + "1")
    a.label(lab + "_cp")
    issue_qkv()
    if SPEC: mloads()
    a(f"s_waitcnt vmcnt({8 + NM})")
    a.label(f"{uid}_go")
    a(f"s_add_u32 s{S_S}, s{S_S}, 2")
    a(f"s_add_u32 s{S_OFO}, s{S_OFO}, {2*64*4}")
    if st:
        stamp(a, 5); stamp(a, 6); stamp(a, 7); stamp(a, 8); stamps_accumulate(a)
    a(f"s_branch {uid}_item")
    a.label(lab + "_last")
    a("s_waitcnt vmcnt(0)")
    oflag()
    a.label(f"{uid}_end")
    a("s_waitcnt vmcnt(0)")
    if st:
        a(f"s_cmp_eq_u32 s{S_L}, 0")
        a(f"s_cbranch_scc0 {uid}_nost")
        stamps_store(a)
        a.label(f"{uid}_nost")
```

```python
import sys
opts = set(sys.argv[2:])
import layout
for o_ in opts:
    if o_.startswith('split='): layout.O2_SPLIT = int(o_[6:])
from common import *
import role_R, role_T, role_TA, role_O, role_O16, role_Ao, role_Aq
import common
common.TRACE_ON = "trace" in opts
common.TOUCH = "touch2" in opts
for o_ in opts:
    if o_.startswith("bo="): common.BACKOFF = int(o_[3:])
role_R_L2PF = "pf" in opts
out = sys.argv[1]
NAME = "interleave_layers__sliding_block__memory_aug_recurrent_mem_tr__prompt"
role_R.L2PF = role_R_L2PF
role_T.PRETOUCH = 'pt' in opts
role_R.PFF = 'pff' in opts
for o_ in opts:
    if o_.startswith('rbo='): role_R.RBO = int(o_[4:])
role_TA.SPEC = 'spec' in opts
role_R.RTOUCH = 'rtouch' in opts or 'touch2' in opts
role_R.LATEW = 'nolatew' not in opts
if 'stc' in opts: role_R.STCOUNT = [650, 300, 620, 380, 560, 680, 1300, 1200]
for o_ in opts:
    if o_.startswith('pfd='): role_R.PF_DIST = int(o_[4:])
S_LOCAL = 100
S_TEAM = 99
TMO = 1 << 20

HEADER = f"""; Sliding-window attention / recurrent-memory transformer stack, two launches:
;   {NAME}_kernel : persistent dataflow kernel, one workgroup per CU, one role per group of 32 workgroups
; @launch kernel=prep_kernel grid=(256,1,1) block=(256,1,1) lds=0
; @launch kernel={NAME}_kernel grid=(256,1,1) block=(256,1,1) lds=163840
"""

def prep_kernel(a):
    name = "prep_kernel"
    a(kernel_header(name))
    a("s_cmp_ge_u32 s2, 256")
    a("s_cbranch_scc1 prep_exit")
    srd_from_kernarg(a, S_WS, KA_WS, WS_BYTES)
    srd_from_kernarg(a, S_T0, KA_AX, S * D * 2)
    WS = f"s[{S_WS}:{S_WS+3}]"
    a("v_lshrrev_b32 v1, 6, v0")
    a("s_nop 0")
    a(f"v_readfirstlane_b32 s{S_W}, v1")
    a("v_and_b32 v2, 63, v0")
    a("v_lshlrev_b32 v3, 4, v2")
    a("s_lshl_b32 s16, s2, 2")
    a(f"s_add_u32 s16, s16, s{S_W}")
    a("s_lshl_b32 s16, s16, 11")
    a(f"buffer_load_dwordx4 v[16:19], v3, s[{S_T0}:{S_T0+3}], s16 offen")
    a(f"buffer_load_dwordx4 v[20:23], v3, s[{S_T0}:{S_T0+3}], s16 offen offset:1024")
    if "touch" in opts:
        a("v_lshlrev_b32 v6, 20, v0")
        a(f"buffer_load_dword v7, v6, {WS}, 0 offen")
        for k, ka in enumerate((KA_WQ, KA_WK, KA_WV, KA_WO)):
            srd_from_kernarg(a, 24 + 4 * k, ka, D * H * DH * 2)
            a(f"buffer_load_dword v{60 + k}, v6, s[{24 + 4*k}:{27 + 4*k}], 0 offen")
    a("v_lshlrev_b32 v4, 4, v0")
    for r in range(8, 12): a(f"v_mov_b32 v{r}, -1")
    for r in range(12, 16): a(f"v_mov_b32 v{r}, 0")
    assert FF_END == 3 * MB
    a("s_lshl_b32 s17, s2, 12")
    for k in range(3):
        a(f"s_add_u32 s18, s17, {k * MB}")
        a(f"buffer_store_dwordx4 v[8:11], v4, {WS}, s18 offen")
    nfl = (FLAGS_END - FLAGS) // 4096
    a(f"s_cmp_ge_u32 s2, {nfl}")
    a("s_cbranch_scc1 prep_nofl")
    a(f"s_add_u32 s18, s17, {FLAGS}")
    a(f"buffer_store_dwordx4 v[12:15], v4, {WS}, s18 offen")
    a.label("prep_nofl")
    nmark = 2 * 66 * 32 * 4
    a("s_lshl_b32 s18, s2, 8")
    a("v_add_u32 v5, s18, v0")
    a(f"v_cmp_gt_u32 vcc, {nmark}, v5")
    a("s_and_saveexec_b64 s[20:21], vcc")
    a("s_cbranch_execz prep_nomark")
    a("v_lshlrev_b32 v5, 10, v5")
    a(f"s_mov_b32 s18, {KM}")
    a(f"buffer_store_dword v8, v5, {WS}, s18 offen")
    a.label("prep_nomark")
    a("s_mov_b64 exec, s[20:21]")
    a("s_waitcnt vmcnt(0)")
    def ln_only(x, XR, Y, T):
        for k in range(4):
            x(f"v_lshlrev_b32 v{Y+2*k}, 16, v{XR+k}")
            x(f"v_and_b32 v{Y+2*k+1}, 0xffff0000, v{XR+k}")
        m, t = T + 4, T + 5
        x(f"v_pk_add_f32 v[{T}:{T+1}], v[{Y}:{Y+1}], v[{Y+2}:{Y+3}]")
        x(f"v_pk_add_f32 v[{T+2}:{T+3}], v[{Y+4}:{Y+5}], v[{Y+6}:{Y+7}]")
        x(f"v_pk_add_f32 v[{T}:{T+1}], v[{T}:{T+1}], v[{T+2}:{T+3}]")
        x(f"v_add_f32 v{m}, v{T}, v{T+1}")
        wave_allreduce_add(x, m, t)
        x(f"v_mul_f32 v{m}, 0xbb000000, v{m}")
        x(f"v_mov_b32 v{t}, v{m}")
        for k in range(4):
            x(f"v_pk_add_f32 v[{Y+2*k}:{Y+2*k+1}], v[{Y+2*k}:{Y+2*k+1}], v[{m}:{t}]")
        x(f"v_pk_mul_f32 v[{T}:{T+1}], v[{Y}:{Y+1}], v[{Y}:{Y+1}]")
        for k in range(1, 4):
            x(f"v_pk_fma_f32 v[{T}:{T+1}], v[{Y+2*k}:{Y+2*k+1}], v[{Y+2*k}:{Y+2*k+1}], v[{T}:{T+1}]")
        s_, t2 = T + 6, T + 7
        x(f"v_add_f32 v{s_}, v{T}, v{T+1}")
        wave_allreduce_add(x, s_, t2)
        x(f"v_mov_b32 v{t2}, 0x3727c5ac")
        x(f"v_fmac_f32 v{t2}, 0x3b000000, v{s_}")
        x(f"v_rsq_f32 v{s_}, v{t2}")
        x("s_nop 0")
        x(f"v_mov_b32 v{t2}, v{s_}")
        for k in range(4):
            x(f"v_pk_mul_f32 v[{Y+2*k}:{Y+2*k+1}], v[{Y+2*k}:{Y+2*k+1}], v[{s_}:{t2}]")
        for k in range(4):
            x(f"v_cvt_pk_bf16_f32 v{T+k}, v{Y+2*k}, v{Y+2*k+1}")
    interleave2(a, lambda x: ln_only(x, 16, 24, 40), lambda x: ln_only(x, 20, 32, 52))
    a(f"s_add_u32 s16, s16, {HB}")
    a(f"buffer_store_dwordx4 v[40:43], v3, {WS}, s16 offen")
    a(f"buffer_store_dwordx4 v[52:55], v3, {WS}, s16 offen offset:1024")
    a("s_waitcnt vmcnt(0)")
    a.label("prep_exit")
    a("s_endpgm")

def census_wait(a, uid):
    lab = f"census_{uid}"
    srd_from_kernarg(a, S_T0, KA_DBG, 256)
    a("v_and_b32 v21, 7, v0")
    a("v_lshlrev_b32 v21, 4, v21")
    a.label(lab)
    a(f"buffer_load_dword v20, v21, s[{S_T0}:{S_T0+3}], 0 offen sc1")
    a("s_waitcnt vmcnt(0)")
    a("s_mov_b32 s16, 0")
    for k in range(8):
        a(f"v_readlane_b32 s17, v20, {k}")
        a("s_nop 0")
        a("s_add_u32 s16, s16, s17")
    a(f"s_cmp_ge_u32 s16, 256")
    a(f"s_cbranch_scc1 {lab}_ok")
    a(f"s_sub_u32 s{S_TMO}, s{S_TMO}, 1")
    a(f"s_cbranch_scc1 {lab}_ok")
    a(f"s_branch {lab}")
    a.label(lab + "_ok")

def mega_kernel(a):
    name = NAME + "_kernel"
    a(kernel_header(name))
    a("s_cmp_ge_u32 s2, 256")
    a("s_cbranch_scc1 L_exit")
    srd_from_kernarg(a, S_WS, KA_WS, WS_BYTES)
    srd_from_kernarg(a, S_T0, KA_DBG, 256)
    a(f"s_mov_b32 s{S_TMO}, {TMO}")
    a("s_getreg_b32 s20, hwreg(HW_REG_XCC_ID, 0, 4)")
    a("s_and_b32 s20, s20, 7")
    a("s_lshl_b32 s21, s20, 4")
    a("v_mov_b32 v1, s21")
    a("v_mov_b32 v2, 1")
    a("v_cmp_eq_u32 vcc, 0, v0")
    a("s_and_saveexec_b64 s[22:23], vcc")
    a("s_cbranch_execz L_noat")
    a(f"buffer_atomic_add v2, v1, s[{S_T0}:{S_T0+3}], 0 offen sc0")
    a("s_waitcnt vmcnt(0)")
    a("v_mov_b32 v1, 0")
    a("ds_write_b32 v1, v2")
    a("s_waitcnt lgkmcnt(0)")
    a.label("L_noat")
    a("s_mov_b64 exec, s[22:23]")
    a("s_barrier")
    a("v_mov_b32 v1, 0")
    a("ds_read_b32 v2, v1")
    a("s_waitcnt lgkmcnt(0)")
    a(f"v_readfirstlane_b32 s{S_H}, v2")
    a("v_lshrrev_b32 v1, 6, v0")
    a("s_nop 0")
    a(f"v_readfirstlane_b32 s{S_W}, v1")
    a("v_and_b32 v0, 63, v0")
    a(f"s_mov_b32 s{S_TEAM}, s20")
    a("s_barrier")
    a(f"s_cmp_lt_u32 s{S_H}, 32")
    a("s_cbranch_scc1 L_haveslot")
    census_wait(a, "ov")
    a(f"s_sub_u32 s18, s{S_H}, 32")
    for k in range(8):
        a(f"v_readlane_b32 s17, v20, {k}")
        a("s_nop 0")
        a("s_max_u32 s17, s17, 32")
        a("s_sub_u32 s17, s17, 32")
        a(f"s_cmp_lt_u32 {k}, s{S_TEAM}")
        a("s_cselect_b32 s17, s17, 0")
        a("s_add_u32 s18, s18, s17")
    a(f"s_mov_b32 s19, 0")
    for k in range(8):
        lab = f"L_vac{k}"
        a(f"v_readlane_b32 s17, v20, {k}")
        a("s_nop 0")
        a("s_min_u32 s17, s17, 32")
        a("s_sub_u32 s16, 32, s17")
        a("s_cmp_lg_u32 s19, 0")
        a(f"s_cbranch_scc1 {lab}")
        a("s_cmp_lt_u32 s18, s16")
        a(f"s_cbranch_scc0 {lab}_n")
        a(f"s_mov_b32 s{S_TEAM}, {k}")
        a(f"s_add_u32 s{S_H}, s17, s18")
        a("s_mov_b32 s19, 1")
        a(f"s_branch {lab}")
        a.label(lab + "_n")
        a("s_sub_u32 s18, s18, s16")
        a.label(lab)
    a("s_cmp_eq_u32 s19, 0")
    a("s_cbranch_scc1 L_exit")
    a.label("L_haveslot")
    if "mtouch" in opts:
        a(f"s_lshl_b32 s16, s{S_W}, 26")
        a("v_lshlrev_b32 v254, 20, v0")
        a(f"buffer_load_dword v255, v254, s[{S_WS}:{S_WS+3}], s16 offen")
    for t, lab in ((0, "J_R0"), (1, "J_R1"), (5, "J_O0"), (6, "J_O1")):
        a(f"s_cmp_eq_u32 s{S_TEAM}, {t}")
        a(f"s_cbranch_scc1 {lab}")
    a(f"s_sub_u32 s16, s{S_TEAM}, 2")
    a(f"s_cmp_eq_u32 s{S_TEAM}, 7")
    a(f"s_cselect_b32 s16, 3, s16")
    a(f"s_lshr_b32 s17, s{S_H}, 3")
    a(f"s_and_b32 s18, s{S_H}, 7")
    a(f"s_lshl_b32 s19, s16, 3")
    a(f"s_add_u32 s{S_H}, s19, s18")
    a(f"s_cmp_eq_u32 s17, 0")
    a(f"s_cbranch_scc1 J_T0")
    a(f"s_cmp_eq_u32 s17, 1")
    a(f"s_cbranch_scc1 J_T1")
    a(f"s_cmp_eq_u32 s17, 2")
    a(f"s_cbranch_scc1 J_Aq")
    a(f"s_lshl_b32 s18, s18, 2")
    a(f"s_add_u32 s{S_H}, s18, s16")
    a("s_branch X7_entry")
    for lab, layer, dst in (("J_R0", 0, "R_entry"), ("J_R1", 1, "R_entry"), ("J_O0", 0, "O_entry"), ("J_O1", 1, "X6_entry"),
                            ("J_T0", 0, "T_entry"), ("J_T1", 1, "T_entry"), ("J_Aq", 0, "Aq_entry")):
        a.label(lab)
        a(f"s_mov_b32 s{S_L}, {layer}")
        far_jump(a, dst)
    a.label("L_exit")
    a("s_endpgm")
    def local_flag(uid):
        census_wait(a, uid)
        a(f"v_readlane_b32 s17, v20, s{S_TEAM}")
        a("s_nop 0")
        a("s_cmp_ge_u32 s17, 32")
        a(f"s_cselect_b32 s{S_LOCAL}, 1, 0")
    st = "st" in opts
    a.label("R_entry")
    role_R.role_R_prologue(a)
    a(f"s_mov_b32 s{S_TEAM}, s{S_L}")
    local_flag("R")
    a(f"s_mov_b32 s{role_R.S_S}, 0")
    a(f"s_cmp_eq_u32 s{S_LOCAL}, 0")
    a("s_cbranch_scc1 R_nonlocal")
    if common.TRACE_ON:
        a("s_memtime s[86:87]"); a("s_memrealtime s[88:89]"); a("s_waitcnt lgkmcnt(0)")
    role_R.role_R_main(a, local=True, uid="Rl", stamps=("stR" in opts), probe=("probe" in opts))
    if "stR" in opts:
        a(f"s_cmp_eq_u32 s{S_L}, {1 if 'l1' in opts else 0}")
        a("s_cbranch_scc0 R_nost")
        stamps_store(a)
        a.label("R_nost")
    if common.TRACE_ON:
        a("s_memtime s[92:93]"); a("s_memrealtime s[94:95]"); a("s_waitcnt lgkmcnt(0)")
        a("s_sub_u32 s92, s92, s86"); a("s_sub_u32 s94, s94, s88")
        a("s_mov_b32 m0, 63"); a("v_writelane_b32 v20, s92, m0")
        a("s_mov_b32 m0, 62"); a("v_writelane_b32 v20, s94, m0")
        a("v_mov_b32 v17, v20")
    finish(a, "Rl", st)
    a.label("R_nonlocal")
    role_R.role_R_main(a, local=False, uid="Rn")
    a("s_endpgm")
    a.label("T_entry")
    role_T.role_T_prologue(a)
    touch_pages(a, [(QX, KX_L, 16), (KX, KX_L, 16), (VX, KX_L, 16), (HB, 0, 8), (FLAGS, 0, 1)], S_L, vt=(20, 21, 22, 23))
    if common.TRACE_ON:
        a("s_memtime s[86:87]"); a("s_memrealtime s[88:89]"); a("s_waitcnt lgkmcnt(0)")
    role_T.role_T_main(a, st=("stT" in opts))
    if common.TRACE_ON:
        a("s_memtime s[92:93]"); a("s_memrealtime s[94:95]"); a("s_waitcnt lgkmcnt(0)")
        a("s_sub_u32 s92, s92, s86"); a("s_sub_u32 s94, s94, s88")
        a("s_mov_b32 m0, 63"); a("v_writelane_b32 v12, s92, m0")
        a("s_mov_b32 m0, 62"); a("v_writelane_b32 v12, s94, m0")
    finish(a, "T", False)
    a.label("Aq_entry")
    role_Aq.role_Aq_prologue(a)
    touch_pages(a, [(HB, 0, 8), (AO, 0, 4), (FLAGS, 0, 1)], None, vt=(8, 9, 10, 11))
    role_Aq.role_Aq_main(a, st=st)
    finish(a, "Aq", False)
    a.label("O_entry")
    role_O.role_O_prologue(a)
    touch_pages(a, [(OB, 0, 32), (XB, 0, 8), (HB, 0, 8), (FLAGS, 0, 1), (OIN, 0, 1)], None, vt=(20, 21, 22, 23))
    a(f"s_mov_b32 s{S_TEAM}, 5")
    local_flag("O")
    a(f"s_mov_b32 s{role_O.S_S}, 0")
    a(f"s_cmp_eq_u32 s{S_LOCAL}, 0")
    a("s_cbranch_scc1 O_l0n")
    role_O.role_O_main(a, 0, local=True, uid="O0l", st=("stO" in opts))
    a("s_barrier")
    role_O.role_O_phase2(a)
    role_O.role_O_main(a, 1, local=True, uid="O2l"); finish(a, "O0l", False)
    a.label("O_l0n")
    role_O.role_O_main(a, 0, local=False, uid="O0n")
    a("s_barrier")
    role_O.role_O_phase2(a)
    role_O.role_O_main(a, 1, local=False, uid="O2n"); a("s_endpgm")
    a.label("X6_entry")
    a(f"s_cmp_lt_u32 s{S_H}, 16")
    a("s_cbranch_scc1 O16_entry")
    a(f"s_sub_u32 s{S_H}, s{S_H}, 16")
    a("s_branch TA_entry")
    a.label("O16_entry")
    role_O16.role_O16_prologue(a)
    touch_pages(a, [(OB + OB_L, 0, 16), (XB, 0, 8), (FLAGS, 0, 1), (OIN, 0, 1)], None, vt=(20, 21, 22, 23))
    a(f"s_mov_b32 s{S_TEAM}, 6")
    local_flag("O16")
    a(f"s_mov_b32 s{role_O16.S_S}, 0")
    a(f"s_cmp_eq_u32 s{S_LOCAL}, 0")
    a("s_cbranch_scc1 O16_n")
    role_O16.role_O16_main(a, local=True, uid="O16l", st=("stO16" in opts)); finish(a, "O1l", False)
    a.label("O16_n")
    role_O16.role_O16_main(a, local=False, uid="O16n"); a("s_endpgm")
    a.label("X7_entry")
    a(f"s_mov_b32 s{S_L}, 0")
    a(f"s_cmp_lt_u32 s{S_H}, 16")
    a("s_cbranch_scc1 TA_entry")
    a(f"s_sub_u32 s{S_H}, s{S_H}, 16")
    role_Ao.role_Ao_prologue(a)
    touch_pages(a, [(AO, 0, 4), (XB, 0, 8), (HB, 0, 8), (FLAGS, 0, 1)], None, vt=(24, 25, 26, 27))
    role_Ao.role_Ao_main(a, st=st)
    finish(a, "Ao", False)
    a.label("TA_entry")
    role_TA.role_TA_prologue(a)
    touch_pages(a, [(QX, KX_L, 16), (KX, KX_L, 16), (VX, KX_L, 16), (KM, KM_L, 9), (FLAGS, 0, 1)], S_L, vt=(180, 181, 182, 183))
    touch_pages(a, [(OB, OB_L, 16)], S_L, vt=(180, 181, 182, 184))
    role_TA.role_TA_main(a, 2, uid="TA", st=("stTA" in opts))
    finish(a, "TA", False)

def far_jump(a, lab):
    a(f"s_branch {lab}")

def finish(a, uid, st):
    if common.TRACE_ON:
        role, regs = {"Rl": (None, [0, 17]), "T": (None, [10, 11, 12]), "Aq": ("aq", [240, 241]), "O0l": (5, [9, 10, 11, 23]), "O1l": (6, [9, 10]),
                      "Ao": ("ao", [12, 13]), "TA": ("ta", [128, 129])}[uid]
        if uid == "Rl": a(f"s_mov_b32 s92, s{S_L}")
        elif uid == "T": a(f"s_add_u32 s92, s{S_L}, 2")
        elif uid == "Aq":
            a(f"s_lshr_b32 s92, s{S_H}, 4")
            a(f"s_mul_i32 s92, s92, 7")
            a(f"s_add_u32 s92, s92, 4")
            a(f"s_and_b32 s{S_H}, s{S_H}, 15")
        elif uid == "TA": a(f"s_add_u32 s92, s{S_L}, 7")
        elif uid == "Ao":
            a(f"s_lshr_b32 s92, s{S_H}, 3")
            a(f"s_add_u32 s92, s92, 9")
            a(f"s_and_b32 s{S_H}, s{S_H}, 7")
        else: a(f"s_mov_b32 s92, {role}")
        trace_dump(a, regs, 92)
    a("s_endpgm")

a = Asm()
a.L.append(HEADER.rstrip("\n"))
a('.amdgcn_target "amdgcn-amd-amdhsa--gfx950"')
a(".text")
prep_kernel(a)
mega_kernel(a)
a('.section .rodata,"a"')
a(".p2align 6")
a(kernel_desc("prep_kernel", vgpr=64, accum=64, sgpr=48))
a(".p2align 6")
a(kernel_desc(NAME + "_kernel"))
open(out, "w").write(a.text())
print(out, len(a.L), "lines", len(a.text()), "bytes")
```
